```python
import torch

def _softmax(x, axis=-1):
    return torch.softmax(x, dim=axis)
def _gelu(x):
    return torch.nn.functional.gelu(x, approximate="tanh")
def _silu(x):
    return torch.nn.functional.silu(x)
def _sigmoid(x):
    return torch.sigmoid(x)
def _layernorm(x, axis=-1, eps=1e-5):
    m = x.mean(dim=axis, keepdim=True)
    v = x.var(dim=axis, keepdim=True, unbiased=False)
    return (x - m) / torch.sqrt(v + eps)
def _scatter_add(tgt, idx, src, axis=0):
    return tgt.clone().index_add_(axis, idx, src)
def _segment_sum(src, seg, n):
    out = torch.zeros((n,) + src.shape[1:], dtype=src.dtype)
    return out.index_add_(0, seg, src)
def _pad(x, pw):
    flat = tuple(v for pair in reversed(pw) for v in pair)
    return torch.nn.functional.pad(x, flat)

kernel_name = 'standalone__cheap_equivariant_egnn__graph'

def setup_inputs():

    _w = (lambda a: (lambda t: t.to(torch.bfloat16) if t.is_floating_point() else t)(torch.as_tensor(a)))
    N, deg, D, De = 10000, 16, 128, max(0, 1)
    E = N * deg
    return {
        "h": _w((lambda *s: torch.randn(*s, dtype=torch.bfloat16) * 0.2)(N, D)),
        "pos": _w((lambda *s: torch.randn(*s, dtype=torch.bfloat16) * 0.8)(N, 3)),
        "e_attr": _w((lambda *s: torch.randn(*s, dtype=torch.bfloat16) * 0.8)(E, De)),
        "src": _w((lambda lo, hi, *s: torch.randint(lo, hi, s))(0, N, E).to(torch.int64)),
        "dst": _w((lambda lo, hi, *s: torch.randint(lo, hi, s))(0, N, E).to(torch.int64)),
        "w_e": _w(0.1 * (lambda *s: torch.randn(*s, dtype=torch.bfloat16) * 0.8)(2 * D + 1 + De, D)),
        "w_x": _w(0.1 * (lambda *s: torch.randn(*s, dtype=torch.bfloat16) * 0.2)(D, 1)),
        "w_h": _w(0.1 * (lambda *s: torch.randn(*s, dtype=torch.bfloat16) * 0.2)(2 * D, D)),
    }

def reference(h, pos, e_attr, src, dst, w_e, w_x, w_h):
    N, D = h.shape[0], h.shape[1]
    diff = pos[dst] - pos[src]
    dist2 = torch.sum(diff * diff, axis=-1, keepdims=True)
    e_in = torch.concatenate([h[dst], h[src], dist2, e_attr], axis=-1)
    m_ij = _silu(e_in @ w_e)
    coord_scale = m_ij @ w_x
    pos_new = pos + _segment_sum(diff * coord_scale, dst, N)
    m_i = _segment_sum(m_ij, dst, N)
    h_new = h + _silu(torch.concatenate([h, m_i], axis=-1) @ w_h)
    return h_new, pos_new
```

```python
class Asm:
    def __init__(self):
        self.lines = []
        self.uid = 0
    def __call__(self, s):
        for ln in s.strip('\n').split('\n'):
            self.lines.append('    ' + ln.strip() if not ln.strip().endswith(':') else ln.strip())
    def c(self, s):
        self.lines.append('    ; ' + s)
    def label(self, name):
        self.lines.append(name + ':')
    def newlabel(self, base='L'):
        self.uid += 1
        return f'{base}_{self.uid}'
    def raw(self, s):
        self.lines.append(s)
    def text(self):
        return '\n'.join(self.lines) + '\n'
    def srd(self, d, lo, size, off=0):
        if off:
            self(f's_add_u32 s{d}, s{lo}, {off}')
            self(f's_addc_u32 s{d+1}, s{lo+1}, 0')
        else:
            self(f's_mov_b32 s{d}, s{lo}')
            self(f's_mov_b32 s{d+1}, s{lo+1}')
        self(f's_mov_b32 s{d+2}, {size}')
        self(f's_mov_b32 s{d+3}, 0x20000')

def vr(b, n):
    return f'v[{b}:{b+n-1}]'
def sr(b, n):
    return f's[{b}:{b+n-1}]'
```

```python
from asmlib import Asm, vr, sr
import gen as G

RING = 0; RSLOT = 8192; NRING = 3
X1 = 24576
X2 = 32768; X2S = 1792
RAW = 61440
HS = 65536; HSS = 272
CNT = 70976
WX = 71008
K2_LDS = 71296
TS = 328
CAP = 128
J = 8

ACC = 16
Y1 = 80
DD = 96
EE = 112
MP = 128
X1R = 136
X2R = 140
CP = 148
WH2 = 164
REC = 196
V_LANE = 1; V_X1B = 2; V_X2B = 3; V_CB = 4; V_RAWB = 5; V_L16 = 6; V_K0 = 7; V_DONE = 8; V_CNT = 9; V_RB = 10
NV = 224

def gen_k2(a):
    name = 'egnn_edge_kernel'
    G.kernel_head(a, name)
    a(f's_cmp_ge_u32 s2, {G.NB}')
    a('s_cbranch_scc1 K2_END')
    G.load_kernargs(a)
    a(f'v_and_b32 v{V_LANE}, 63, v0')
    a('v_lshrrev_b32 v11, 6, v0')
    a('s_nop 0')
    a('v_readfirstlane_b32 s4, v11')
    a('v_mov_b32 v12, 0'); a('v_mov_b32 v13, 0'); a('v_mov_b32 v14, 0'); a('v_mov_b32 v15, 0')
    def zero_lds():
        a('v_lshlrev_b32 v11, 4, v0')
        a(f'v_add_u32 v11, {X1}, v11')
        for i in range(10):
            a(f'ds_write_b128 v11, v[12:15] offset:{i*4096}')
        a(f'v_mov_b32 v11, {CNT}')
        a('ds_write_b128 v11, v[12:15]')
        a('ds_write_b128 v11, v[12:15] offset:16')
    zero_lds()
    a('s_waitcnt lgkmcnt(0)')
    a.srd(40, 36, G.TAB_BYTES, G.WS_TAB)
    a.srd(44, 36, G.REC_BYTES, G.WS_REC)
    a.srd(48, 36, G.N*256, G.WS_B)
    a.srd(52, 16, G.N*256)
    a.srd(56, 36, 3*32768, G.WS_W)
    a.srd(60, 36, G.N*8, G.WS_POS8)
    a.srd(64, 26, 258*256)
    a.srd(68, 32, G.N*256 + G.N*6)
    a.srd(72, 28, 256)
    a('v_lshrrev_b32 v11, 1, v0')
    a('v_lshlrev_b32 v212, 2, v11')
    a(f's_mul_i32 s5, s2, {G.NCH*4}')
    a(f'buffer_load_dword v{V_CNT}, v212, s[40:43], s5 offen')
    a(f'v_mul_u32_u24 v{V_RB}, {G.CH}, v11')
    a(f'v_and_b32 v{V_L16}, 15, v0')
    a(f'v_lshlrev_b32 v{V_L16}, 4, v{V_L16}')
    a(f's_mul_i32 s6, s2, {G.NPB*256}')
    a('s_mul_i32 s7, s4, 5')
    a('s_mov_b64 exec, 0xffff')
    for i in range(5):
        a(f's_add_u32 s8, s7, {i}')
        a(f's_mul_i32 s9, s8, {HSS}')
        a(f's_add_u32 m0, s9, {HS}')
        a('s_lshl_b32 s8, s8, 8')
        a('s_add_u32 s8, s8, s6')
        a(f'buffer_load_dwordx4 v{V_L16}, s[52:55], s8 offen lds')
    a('s_cmp_lg_u32 s4, 0')
    a('s_cbranch_scc1 K2_NOWX')
    a(f's_mov_b32 m0, {WX}')
    a('s_nop 0')
    a(f'buffer_load_dwordx4 v{V_L16}, s[72:75], 0 offen lds')
    a.label('K2_NOWX')
    a('s_mov_b64 exec, -1')
    a(f'v_lshlrev_b32 v212, 4, v{V_LANE}')
    a('s_lshl_b32 s8, s4, 13')
    for m, base in ((0, ACC), (1, ACC+32), (2, WH2)):
        a(f's_add_u32 s9, s8, {m*32768}')
        a('s_add_u32 s10, s9, 4096')
        for s in range(8):
            a(f'buffer_load_dwordx4 {vr(base+4*s,4)}, v212, s[56:59], s{9 + s//4} offen offset:{(s%4)*1024}')
    a(f'v_and_b32 v213, 31, v{V_LANE}')
    a('v_lshlrev_b32 v214, 1, v213')
    a('s_lshl_b32 s9, s4, 6')
    a('v_add_u32 v214, s9, v214')
    a('s_mov_b32 s10, 65536')
    a('buffer_load_ushort v216, v214, s[64:67], s10 offen')
    a('buffer_load_ushort v217, v214, s[64:67], s10 offen offset:256')
    a(f'v_lshrrev_b32 v215, 5, v{V_LANE}')
    a(f'v_lshlrev_b32 v{V_X1B}, 4, v213')
    a(f'v_add_u32 v{V_X1B}, {X1}, v{V_X1B}')
    a('v_min_u32 v11, 27, v213')
    a('v_lshlrev_b32 v11, 4, v11')
    a('v_mul_u32_u24 v218, 448, v215')
    a(f'v_add3_u32 v{V_X2B}, v11, v218, 0')
    a(f'v_add_u32 v{V_X2B}, {X2}, v{V_X2B}')
    a(f'v_lshl_add_u32 v{V_CB}, v215, 10, v214')
    a(f'v_lshrrev_b32 v11, 4, v{V_LANE}')
    a('s_lshl_b32 s9, s4, 3')
    a('v_add_u32 v11, s9, v11')
    a(f'v_lshlrev_b32 v{V_RAWB}, 3, v11')
    a(f'v_add_u32 v{V_RAWB}, {RAW}, v{V_RAWB}')
    a('s_mov_b32 s76, 1')
    a('s_mov_b32 s77, 0xffffff00')
    a('v_cmp_lt_u32 s[78:79], 31, v%d' % V_LANE)
    a('s_waitcnt vmcnt(0)')
    a(f'v_and_b32 v11, 0xffff, v{V_CNT}')
    a(f'v_lshrrev_b32 v{V_CNT}, 16, v{V_CNT}')
    a(f'v_add_u32 v{V_RB}, v{V_RB}, v11')
    a(f'v_and_b32 v{V_K0}, 1, v0')
    a(f'v_add_u32 v{V_RB}, v{V_RB}, v{V_K0}')
    a(f'v_lshlrev_b32 v{V_RB}, 3, v{V_RB}')
    a(f'v_mov_b32 v{V_DONE}, 0')
    a('s_waitcnt lgkmcnt(0)')
    a('s_barrier')

    a.label('K2_ROUND')
    for j in range(J):
        a(f'v_add_u32 v11, {2*j}, v{V_K0}')
        a(f'v_cmp_lt_u32 vcc, v11, v{V_CNT}')
        a(f'v_and_b32 v212, {1<<j}, v{V_DONE}')
        a(f'v_cmp_eq_u32 s[14:15], 0, v212')
        a(f's_and_b64 s[{80+2*j}:{81+2*j}], vcc, s[14:15]')
        lab = a.newlabel('K2_SKL')
        a(f's_mov_b64 exec, s[{80+2*j}:{81+2*j}]')
        a(f's_cbranch_execz {lab}')
        a(f'buffer_load_dwordx2 {vr(REC+2*j,2)}, v{V_RB}, s[44:47], 0 offen offset:{16*j}')
        a.label(lab)
        a('s_mov_b64 exec, -1')
    a('v_mov_b32 v212, 1')
    a('s_waitcnt vmcnt(0)')
    for j in range(J):
        lab = a.newlabel('K2_SKA')
        a(f's_mov_b64 exec, s[{80+2*j}:{81+2*j}]')
        a(f's_cbranch_execz {lab}')
        a(f'v_bfe_u32 v213, v{REC+2*j}, 4, 2')
        a(f'v_lshlrev_b32 v214, 2, v213')
        a(f'v_add_u32 v214, {CNT}, v214')
        a(f'ds_add_rtn_u32 v215, v214, v212')
        a(f'v_lshlrev_b32 v213, 7, v213')
        a('s_waitcnt lgkmcnt(0)')
        a(f'v_cmp_gt_u32 vcc, {CAP}, v215')
        a('s_and_b64 exec, exec, vcc')
        a('v_add_lshl_u32 v213, v213, v215, 3')
        a(f'v_add_u32 v213, {RAW}, v213')
        a(f'ds_write_b64 v213, {vr(REC+2*j,2)}')
        a(f'v_or_b32 v{V_DONE}, {1<<j}, v{V_DONE}')
        a.label(lab)
        a('s_mov_b64 exec, -1')
    a('s_waitcnt lgkmcnt(0)')
    a('s_barrier')
    a(f'v_mov_b32 v11, {CNT}')
    a('ds_read_b128 v[212:215], v11')
    a('v_lshlrev_b32 v216, 3, v0')
    a(f'v_add_u32 v216, {RAW}, v216')
    a(f'ds_read_b64 {vr(REC,2)}, v216')
    a(f'ds_read_b64 {vr(REC+2,2)}, v216 offset:2048')
    a('s_waitcnt lgkmcnt(2)')
    for g in range(4):
        a(f'v_readfirstlane_b32 s{8+g}, v{212+g}')
    a('s_mov_b64 s[96:97], 0')
    a('s_mov_b32 s12, 0')
    for g in range(4):
        a(f's_min_u32 s{8+g}, s{8+g}, {CAP}')
        a(f's_add_u32 s13, s{8+g}, 31')
        a('s_lshr_b32 s13, s13, 5')
        a('s_lshl_b32 s13, s13, 2')
        a('s_bfm_b32 s14, s13, 0')
        pat = sum((4*g+t) << (4*t) for t in range(4))
        a(f's_and_b32 s14, s14, {pat}')
        a('s_mov_b32 s15, 0')
        a('s_lshl_b64 s[14:15], s[14:15], s12')
        a('s_or_b64 s[96:97], s[96:97], s[14:15]')
        a('s_add_u32 s12, s12, s13')
    a('s_lshr_b32 s98, s12, 2')
    def dma_reads(stau, vt0, vt1):
        a(f's_lshl_b32 s13, s{stau}, 2')
        a('s_lshr_b64 s[14:15], s[96:97], s13')
        a('s_and_b32 s14, s14, 15')
        a('s_lshl_b32 s14, s14, 8')
        a(f'v_add_u32 v{vt0}, s14, v{V_RAWB}')
        a(f'ds_read_b32 v{vt1}, v{vt0} offset:32')
        a(f'ds_read_b32 v{vt0}, v{vt0}')
    def dma_issue(sring, vt0, vt1):
        a(f'v_and_or_b32 v{vt0}, v{vt0}, s77, v{V_L16}')
        a(f'v_and_or_b32 v{vt1}, v{vt1}, s77, v{V_L16}')
        a('s_lshl_b32 s13, s4, 11')
        a(f's_add_u32 s13, s13, s{sring}')
        a('s_mov_b32 m0, s13')
        a('s_add_u32 s13, s13, 1024')
        a(f'buffer_load_dwordx4 v{vt0}, s[48:51], 0 offen lds')
        a('s_mov_b32 m0, s13')
        a('s_nop 0')
        a(f'buffer_load_dwordx4 v{vt1}, s[48:51], 0 offen lds')
    for tau in range(2):
        lab = a.newlabel('K2_NODMA')
        a(f's_cmp_le_u32 s98, {tau}')
        a(f's_cbranch_scc1 {lab}')
        a(f's_mov_b32 s5, {tau}')
        dma_reads(5, 218, 219)
        a('s_waitcnt lgkmcnt(0)')
        a(f's_mov_b32 s6, {tau*RSLOT}')
        dma_issue(6, 218, 219)
        a.label(lab)
    a('s_waitcnt lgkmcnt(0)')
    a('s_lshr_b32 s5, s4, 1')
    a('s_cmp_eq_u32 s5, 0')
    a('s_cselect_b32 s6, s8, s9')
    a('s_cselect_b32 s7, s10, s11')
    a('v_and_b32 v220, 127, v0')
    a('v_cmp_gt_u32 s[80:81], s6, v220')
    a('v_cmp_gt_u32 s[82:83], s7, v220')
    a(f's_mul_i32 s12, s2, {G.NPB}')
    a('s_mul_i32 s13, s5, 5')
    a('s_add_u32 s12, s12, s13')
    for u in range(2):
        w0 = REC + 2*u
        PS = REC + 4 + 4*u
        a(f'v_lshrrev_b32 v212, 8, v{w0}')
        a('v_lshlrev_b32 v212, 3, v212')
        a(f'v_and_b32 v213, 7, v{w0}')
        a(f'v_add_u32 v213, s12, v213')
        if u == 1:
            a('v_add_u32 v213, 10, v213')
        a('v_lshlrev_b32 v213, 3, v213')
        a(f'buffer_load_dwordx2 {vr(PS,2)}, v212, s[60:63], 0 offen')
        a(f'buffer_load_dwordx2 {vr(PS+2,2)}, v213, s[60:63], 0 offen')

    a('s_cmp_eq_u32 s76, 0')
    a('s_cbranch_scc1 K2_SKIPA')
    a(f'v_and_b32 v212, 31, v{V_LANE}')
    a(f'v_lshrrev_b32 v213, 5, v{V_LANE}')
    a('v_lshrrev_b32 v214, 3, v212')
    a('v_and_b32 v215, 3, v212')
    a('v_and_b32 v216, 7, v212')
    a('v_lshl_add_u32 v217, v214, 2, v215')
    a('v_add_u32 v218, 16, v215')
    a('v_min_u32 v216, 4, v216')
    a('v_mul_u32_u24 v219, 5, v214')
    a('v_add_u32 v219, v219, v216')
    for vv in (217, 218, 219):
        a(f'v_mul_u32_u24 v{vv}, {HSS}, v{vv}')
        a(f'v_lshl_add_u32 v{vv}, v213, 4, v{vv}')
        a(f'v_add_u32 v{vv}, {HS}, v{vv}')
    A0 = DD; A1 = EE
    XT = MP
    for s in range(8):
        a(f'ds_read_b128 {vr(128,4)}, v217 offset:{s*32}')
        a(f'ds_read_b128 {vr(132,4)}, v218 offset:{s*32}')
        a(f'ds_read_b128 {vr(136,4)}, v219 offset:{s*32}')
        a('s_waitcnt lgkmcnt(0)')
        c0 = '0' if s == 0 else vr(A0,16)
        c1 = '0' if s == 0 else vr(A1,16)
        c2 = '0' if s == 0 else vr(CP,16)
        a(f'v_mfma_f32_32x32x16_bf16 {vr(A0,16)}, {vr(128,4)}, {vr(ACC+4*s,4)}, {c0}')
        a(f'v_mfma_f32_32x32x16_bf16 {vr(A1,16)}, {vr(132,4)}, {vr(ACC+4*s,4)}, {c1}')
        a(f'v_mfma_f32_32x32x16_bf16 {vr(CP,16)}, {vr(136,4)}, {vr(ACC+32+4*s,4)}, {c2}')
        a('s_nop 7')
    a(f's_mov_b32 s12, {G.NLOG2E}')
    a('s_nop 7')
    a('s_nop 7')
    def areg(n):
        return A0 + n if n < 16 else A1 + (n - 16)
    for n in range(20):
        a(f'v_mul_f32 v{areg(n)}, s12, v{areg(n)}')
    a(f'v_and_b32 v212, 31, v{V_LANE}')
    a('v_lshlrev_b32 v212, 1, v212')
    a('s_lshl_b32 s13, s4, 6')
    a('v_add_u32 v212, s13, v212')
    a('s_mov_b32 s13, 65536')
    a('buffer_load_short_d16_hi v220, v212, s[64:67], s13 offen')
    a('buffer_load_short_d16_hi v221, v212, s[64:67], s13 offen offset:256')
    a('s_waitcnt vmcnt(0)')
    a('v_mul_f32 v220, s12, v220')
    a('v_mul_f32 v221, s12, v221')
    a('v_mov_b32 v222, 0')
    def packsel(dst, ra, rb):
        a(f'v_cvt_pk_bf16_f32 v212, v{ra}, v{rb}')
        a('v_lshlrev_b32 v213, 16, v212')
        a('v_and_b32 v214, 0xffff0000, v212')
        a(f'v_sub_f32 v213, v{ra}, v213')
        a(f'v_sub_f32 v214, v{rb}, v214')
        a('v_cvt_pk_bf16_f32 v213, v213, v214')
        a(f'v_cndmask_b32 v{dst}, v212, v213, s[78:79]')
    for g in range(4):
        packsel(Y1+4*g+0, areg(5*g), areg(5*g+1))
        packsel(Y1+4*g+1, areg(5*g+2), areg(5*g+3))
        packsel(Y1+4*g+2, areg(5*g+4), 220)
        packsel(Y1+4*g+3, 221, 222)
    for i in range(64):
        a(f'v_mov_b32 v{ACC+i}, 0')
    for i in range(8):
        a(f'v_mov_b32 v{MP+i}, 0')
    a.label('K2_SKIPA')

    a('s_waitcnt vmcnt(0)')
    a('s_lshr_b32 s5, s4, 1')
    for u in range(2):
        w0 = REC + 2*u; w1 = w0 + 1
        PS = REC + 4 + 4*u
        lab = a.newlabel('K2_DSK')
        a(f's_mov_b64 exec, s[{80+2*u}:{81+2*u}]')
        a(f's_cbranch_execz {lab}')
        a(f'v_lshlrev_b32 v212, 16, v{PS}')
        a(f'v_and_b32 v213, 0xffff0000, v{PS}')
        a(f'v_lshlrev_b32 v214, 16, v{PS+1}')
        a(f'v_lshlrev_b32 v215, 16, v{PS+2}')
        a(f'v_and_b32 v216, 0xffff0000, v{PS+2}')
        a(f'v_lshlrev_b32 v217, 16, v{PS+3}')
        a('v_sub_f32 v212, v215, v212')
        a('v_sub_f32 v213, v216, v213')
        a('v_sub_f32 v214, v217, v214')
        a('v_cvt_pk_bf16_f32 v215, v212, v213')
        a('v_cvt_pk_bf16_f32 v216, v214, v214')
        a('v_lshlrev_b32 v212, 16, v215')
        a('v_and_b32 v213, 0xffff0000, v215')
        a('v_lshlrev_b32 v214, 16, v216')
        a('v_mul_f32 v212, v212, v212')
        a('v_mul_f32 v213, v213, v213')
        a('v_mul_f32 v214, v214, v214')
        a('v_cvt_pk_bf16_f32 v212, v212, v213')
        a('v_cvt_pk_bf16_f32 v214, v214, v214')
        a('v_lshlrev_b32 v213, 16, v212')
        a('v_and_b32 v212, 0xffff0000, v212')
        a('v_lshlrev_b32 v214, 16, v214')
        a('v_add_f32 v212, v213, v212')
        a('v_add_f32 v212, v212, v214')
        a('v_cvt_pk_bf16_f32 v212, v212, v212')
        a(f'v_and_b32 v217, 7, v{w0}')
        a('v_and_b32 v213, 1, v217')
        a('v_lshlrev_b32 v213, 4, v213')
        a('v_mov_b32 v214, 0x3f80')
        a('v_lshlrev_b32 v214, v213, v214')
        a('v_lshrrev_b32 v213, 1, v217')
        a('v_cmp_eq_u32 vcc, 0, v213')
        a('v_and_b32 v212, 0xffff0000, v212')
        a('s_nop 0')
        a(f'v_cndmask_b32 v{PS+0}, 0, v214, vcc')
        a('v_cmp_eq_u32 vcc, 1, v213')
        a('s_nop 1')
        a(f'v_cndmask_b32 v{PS+1}, 0, v214, vcc')
        a('v_cmp_eq_u32 vcc, 2, v213')
        a('s_nop 1')
        a(f'v_cndmask_b32 v{PS+2}, 0, v214, vcc')
        a(f'v_or_b32 v{PS+2}, v{PS+2}, v212')
        a(f'v_mov_b32 v{PS+3}, v{w1}')
        a('v_and_b32 v212, 127, v0')
        a(f's_lshl_b32 s12, s5, 7')
        a(f's_add_u32 s12, s12, {256*u}')
        a('v_add_u32 v213, s12, v212')
        a('v_lshlrev_b32 v214, 4, v213')
        a(f'v_add_u32 v214, {X1}, v214')
        a(f'ds_write_b128 v214, {vr(PS,4)}')
        a('v_lshrrev_b32 v214, 5, v213')
        a(f'v_mul_u32_u24 v214, {X2S}, v214')
        a('v_bfe_u32 v213, v212, 4, 1')
        a('v_bfe_u32 v218, v212, 2, 1')
        a('v_lshl_add_u32 v213, v213, 1, v218')
        a('v_mul_u32_u24 v213, 448, v213')
        a('v_bfe_u32 v218, v212, 3, 1')
        a('v_lshlrev_b32 v218, 3, v218')
        a('v_and_b32 v212, 3, v212')
        a('v_lshl_add_u32 v218, v212, 1, v218')
        a('v_add3_u32 v214, v214, v213, v218')
        a(f'v_add_u32 v214, {X2}, v214')
        a('v_lshlrev_b32 v213, 4, v217')
        a('v_add_u32 v213, v214, v213')
        a('v_mov_b32 v218, 0x3f80')
        a('ds_write_b16 v213, v218')
        a('v_lshlrev_b32 v213, 6, v217')
        a('v_add_u32 v213, v214, v213')
        a('ds_write_b16 v213, v215 offset:128')
        a('ds_write_b16_d16_hi v213, v215 offset:144')
        a('ds_write_b16 v213, v216 offset:160')
        a.label(lab)
        a('s_mov_b64 exec, -1')

    a('s_mov_b32 s5, 0')
    a('s_mov_b32 s6, 0')
    a(f's_mov_b32 s7, {2*RSLOT}')
    for g in range(4):
        LT = f'K2_G{g}'; LE = f'K2_G{g}_END'
        acc = ACC + 16*g
        a(f's_mov_b32 s12, s{8+g}')
        a(f's_mov_b32 s99, {4*g}')
        a.label(LT)
        a('s_cmp_eq_u32 s12, 0')
        a(f's_cbranch_scc1 {LE}')
        l1 = a.newlabel('K2_W'); l2 = a.newlabel('K2_W')
        a('s_add_u32 s13, s5, 1')
        a('s_cmp_lt_u32 s13, s98')
        a(f's_cbranch_scc1 {l1}')
        a('s_waitcnt vmcnt(0) lgkmcnt(0)')
        a(f's_branch {l2}')
        a.label(l1)
        a('s_waitcnt vmcnt(2) lgkmcnt(0)')
        a.label(l2)
        a('s_barrier')
        a('s_lshl_b32 s13, s99, 9')
        a(f'v_add_u32 v212, s13, v{V_X1B}')
        a(f'ds_read_b128 {vr(X1R,4)}, v212')
        a(f'v_add_u32 v213, s6, v{V_CB}')
        a('s_add_u32 s100, s12, 7')
        a('s_lshr_b32 s100, s100, 3')
        a('s_min_u32 s100, s100, 4')
        lc = a.newlabel('K2_CR')
        for q in range(4):
            if q > 0:
                a(f's_cmp_le_u32 s100, {q}')
                a(f's_cbranch_scc1 {lc}')
            for i in range(4):
                a(f'ds_read_u16_d16_hi v{DD+4*q+i}, v213 offset:{(8*q+i)*256}')
        a.label(lc)
        a(f's_mul_i32 s13, s99, {X2S}')
        a(f'v_add_u32 v212, s13, v{V_X2B}')
        a('s_waitcnt lgkmcnt(0)')
        a(f'v_mfma_f32_32x32x16_bf16 {vr(DD,16)}, {vr(X1R,4)}, {vr(Y1+4*g,4)}, {vr(DD,16)}')
        a(f'ds_read_b128 {vr(X2R,4)}, v212')
        a(f'ds_read_b128 {vr(X2R+4,4)}, v212 offset:896')
        lnp = a.newlabel('K2_NP')
        a('s_add_u32 s101, s5, 2')
        a('s_cmp_ge_u32 s101, s98')
        a(f's_cbranch_scc1 {lnp}')
        dma_reads(101, 214, 215)
        a('s_waitcnt lgkmcnt(0)')
        dma_issue(7, 214, 215)
        a.label(lnp)
        a('s_nop 7')
        a('s_nop 3')
        lv = a.newlabel('K2_V')
        for q in range(4):
            if q > 0:
                a(f's_cmp_le_u32 s100, {q}')
                a(f's_cbranch_scc1 {lv}')
            d = DD+4*q; e = EE+4*q
            for i in range(4):
                a(f'v_exp_f32 v{e+i}, v{d+i}')
            a(f'v_pk_add_f32 {vr(e,2)}, {vr(e,2)}, 1.0 op_sel_hi:[1,0]')
            a(f'v_pk_add_f32 {vr(e+2,2)}, {vr(e+2,2)}, 1.0 op_sel_hi:[1,0]')
            for i in range(4):
                a(f'v_rcp_f32 v{e+i}, v{e+i}')
            a(f'v_pk_mul_f32 {vr(d,2)}, {vr(d,2)}, {vr(e,2)}')
            a(f'v_pk_mul_f32 {vr(d+2,2)}, {vr(d+2,2)}, {vr(e+2,2)}')
            a(f'v_cvt_pk_bf16_f32 v{MP+2*q}, v{d}, v{d+1}')
            a(f'v_cvt_pk_bf16_f32 v{MP+2*q+1}, v{d+2}, v{d+3}')
        a.label(lv)
        a('s_waitcnt lgkmcnt(0)')
        a('s_nop 1')
        a(f'v_mfma_f32_32x32x16_bf16 {vr(acc,16)}, {vr(X2R,4)}, {vr(MP,4)}, {vr(acc,16)}')
        lb = a.newlabel('K2_B')
        a('s_cmp_le_u32 s100, 2')
        a(f's_cbranch_scc1 {lb}')
        a(f'v_mfma_f32_32x32x16_bf16 {vr(acc,16)}, {vr(X2R+4,4)}, {vr(MP+4,4)}, {vr(acc,16)}')
        a.label(lb)
        a('s_add_u32 s5, s5, 1')
        a('s_add_u32 s99, s99, 1')
        a(f's_add_u32 s6, s6, {RSLOT}')
        a(f's_cmp_eq_u32 s6, {NRING*RSLOT}')
        a('s_cselect_b32 s6, 0, s6')
        a(f's_add_u32 s7, s7, {RSLOT}')
        a(f's_cmp_eq_u32 s7, {NRING*RSLOT}')
        a('s_cselect_b32 s7, 0, s7')
        a('s_cmp_le_u32 s12, 32')
        a(f's_cbranch_scc1 {LE}')
        a('s_sub_u32 s12, s12, 32')
        a(f's_branch {LT}')
        a.label(LE)

    a('v_mov_b32 v212, 0')
    for j in range(J):
        a(f'v_add_u32 v11, {2*j}, v{V_K0}')
        a(f'v_cmp_lt_u32 vcc, v11, v{V_CNT}')
        a('s_nop 1')
        a(f'v_cndmask_b32 v213, 0, {1<<j}, vcc' if (1 << j) <= 64 else f'v_cndmask_b32 v213, 0, v221, vcc')
        if j == 6:
            a('v_mov_b32 v221, 128')
        a('v_or_b32 v212, v212, v213')
    a(f'v_not_b32 v213, v{V_DONE}')
    a('v_and_b32 v212, v212, v213')
    a('v_cmp_eq_u32 vcc, 0, v212')
    a('s_nop 1')
    a(f'v_add_u32 v213, {2*J}, v{V_K0}')
    a(f'v_cndmask_b32 v{V_K0}, v{V_K0}, v213, vcc')
    a(f'v_add_u32 v213, {2*J*8}, v{V_RB}')
    a(f'v_cndmask_b32 v{V_RB}, v{V_RB}, v213, vcc')
    a(f'v_cndmask_b32 v{V_DONE}, v{V_DONE}, 0, s[14:15]' if False else f'v_mov_b32 v213, 0')
    a(f'v_cndmask_b32 v{V_DONE}, v{V_DONE}, v213, vcc')
    a(f'v_cmp_lt_u32 vcc, v{V_K0}, v{V_CNT}')
    a('s_cmp_lg_u64 vcc, 0')
    a('s_cselect_b32 s12, 1, 0')
    a('v_mov_b32 v212, s12')
    a(f'v_mov_b32 v213, {CNT+16}')
    a('s_barrier')
    a('ds_or_b32 v213, v212')
    a('s_waitcnt lgkmcnt(0)')
    a('s_barrier')
    a('ds_read_b32 v212, v213')
    a('s_waitcnt lgkmcnt(0)')
    a('v_readfirstlane_b32 s12, v212')
    a('s_cmp_eq_u32 s12, 0')
    a('s_cbranch_scc1 K2_EPI')
    a('s_barrier')
    a('v_mov_b32 v12, 0'); a('v_mov_b32 v13, 0'); a('v_mov_b32 v14, 0'); a('v_mov_b32 v15, 0')
    zero_lds()
    a('s_mov_b32 s76, 0')
    a('s_waitcnt lgkmcnt(0)')
    a('s_barrier')
    a('s_branch K2_ROUND')

    a.label('K2_EPI')
    a(f'v_and_b32 v212, 31, v{V_LANE}')
    a('s_lshl_b32 s12, s4, 5')
    a('v_add_u32 v212, s12, v212')
    a(f'v_mul_u32_u24 v213, {TS}, v212')
    a(f'v_lshrrev_b32 v214, 5, v{V_LANE}')
    a('v_lshl_add_u32 v213, v214, 3, v213')
    a('s_nop 7'); a('s_nop 7')
    for g in range(4):
        acc = ACC + 16*g
        for q in range(4):
            a(f'v_cvt_pk_bf16_f32 v{DD+2*(q%2)}, v{acc+4*q}, v{acc+4*q+1}')
            a(f'v_cvt_pk_bf16_f32 v{DD+2*(q%2)+1}, v{acc+4*q+2}, v{acc+4*q+3}')
            off = 16*g if q == 0 else (32 + 20*g + 8*(q-1))*2
            if q == 3:
                a('s_mov_b32 exec_hi, 0')
            a(f'ds_write_b64 v213, {vr(DD+2*(q%2),2)} offset:{off}')
            if q == 3:
                a('s_mov_b64 exec, -1')
    a('s_waitcnt lgkmcnt(0)')
    a('s_barrier')
    a(f'v_and_b32 v215, 15, v{V_LANE}')
    a('v_lshrrev_b32 v216, 2, v215')
    a('v_and_b32 v217, 3, v215')
    a('v_lshl_add_u32 v216, v214, 3, v216')
    a(f'v_mul_u32_u24 v216, {TS}, v216')
    a(f'v_bfe_u32 v218, v{V_LANE}, 4, 1')
    a('v_lshlrev_b32 v218, 5, v218')
    a('v_lshl_add_u32 v218, v217, 3, v218')
    a('v_add_u32 v216, v216, v218')
    XO = DD
    for s in range(8):
        a(f'ds_read_b64_tr_b16 {vr(XO+4*s,2)}, v216 offset:{16*s*TS}')
        a(f'ds_read_b64_tr_b16 {vr(XO+4*s+2,2)}, v216 offset:{(16*s+4)*TS}')
    OA = ACC
    for s in range(8):
        a(f's_waitcnt lgkmcnt({14-2*s})')
        c0 = '0' if s == 0 else vr(OA,16)
        a(f'v_mfma_f32_32x32x16_bf16 {vr(OA,16)}, {vr(XO+4*s,4)}, {vr(WH2+4*s,4)}, {c0}')
    ZA = ACC + 16
    a('s_cmp_ge_u32 s4, 3')
    a('s_cbranch_scc1 K2_NOZ')
    a('s_lshl_b32 s12, s4, 6')
    a('s_add_u32 s12, s12, 64')
    a('v_add_u32 v217, s12, v216')
    a('v_lshlrev_b32 v218, 4, v214')
    a(f'v_add_u32 v218, {WX}, v218')
    YB = ACC + 32
    WB = WH2
    for s in range(8):
        a(f'ds_read_b64_tr_b16 {vr(YB+4*s,2)}, v217 offset:{16*s*TS}')
        a(f'ds_read_b64_tr_b16 {vr(YB+4*s+2,2)}, v217 offset:{(16*s+4)*TS}')
    a('s_waitcnt lgkmcnt(0)')
    for s in range(8):
        a(f'ds_read_b128 {vr(MP+4*(s%4),4)}, v218 offset:{s*32}')
        a('s_waitcnt lgkmcnt(0)')
        c0 = '0' if s == 0 else vr(ZA,16)
        a(f'v_mfma_f32_32x32x16_bf16 {vr(ZA,16)}, {vr(MP+4*(s%4),4)}, {vr(YB+4*s,4)}, {c0}')
    a(f'v_and_b32 v212, 31, v{V_LANE}')
    a('s_lshl_b32 s12, s4, 5')
    a('v_add_u32 v212, s12, v212')
    a('v_lshrrev_b32 v215, 2, v212')
    a('v_and_b32 v217, 3, v212')
    a(f's_mul_i32 s12, s2, {G.NPB}')
    a('v_add_u32 v215, s12, v215')
    a('v_lshlrev_b32 v218, 3, v215')
    a('v_lshl_add_u32 v218, v217, 1, v218')
    a('v_cmp_gt_u32 vcc, 80, v212')
    a('v_cmp_gt_u32 s[14:15], 3, v217')
    a('s_and_b64 vcc, vcc, s[14:15]')
    a('s_mov_b32 vcc_hi, 0')
    a('s_and_saveexec_b64 s[14:15], vcc')
    a('s_cbranch_execz K2_ZDONE')
    a('buffer_load_short_d16_hi v219, v218, s[60:63], 0 offen')
    a('v_mul_u32_u24 v215, 3, v215')
    a('v_add_lshl_u32 v215, v215, v217, 1')
    a(f'v_add_u32 v215, {G.N*256}, v215')
    a(f's_mov_b32 s12, {G.NLN2}')
    a('s_nop 7')
    a('s_waitcnt vmcnt(0)')
    a(f'v_fma_f32 v219, s12, v{ZA}, v219')
    a('v_cvt_pk_bf16_f32 v219, v219, v219')
    a('buffer_store_short v219, v215, s[68:71], 0 offen')
    a.label('K2_ZDONE')
    a('s_mov_b64 exec, s[14:15]')
    a.label('K2_NOZ')
    a(f'v_and_b32 v212, 31, v{V_LANE}')
    a('s_lshl_b32 s12, s4, 5')
    a('v_add_u32 v212, s12, v212')
    a('v_lshlrev_b32 v212, 1, v212')
    a(f'v_mul_u32_u24 v213, {4*HSS}, v214')
    a('v_add_u32 v213, v213, v212')
    a(f'v_add_u32 v213, {HS}, v213')
    for q in range(4):
        for i in range(4):
            a(f'ds_read_u16_d16_hi v{EE+4*q+i}, v213 offset:{(5*q+i)*HSS}')
    a('v_lshlrev_b32 v215, 10, v214')
    a('v_add_u32 v215, v215, v212')
    a(f's_mul_i32 s13, s2, {G.NPB*256}')
    a(f's_mov_b32 s12, {G.NLN2}')
    a(f's_mov_b32 s14, {G.NLOG2E}')
    a('s_nop 7')
    for j in range(16):
        a(f'v_fma_f32 v{OA+j}, s12, v{OA+j}, v{CP+j}')
    for q in range(4):
        for i in range(4):
            j = 4*q+i
            a(f'v_mul_f32 v{DD+i}, s14, v{OA+j}')
        for i in range(4):
            a(f'v_exp_f32 v{DD+i}, v{DD+i}')
        a('s_nop 0')
        for i in range(4):
            a(f'v_add_f32 v{DD+i}, 1.0, v{DD+i}')
        for i in range(4):
            a(f'v_rcp_f32 v{DD+i}, v{DD+i}')
        a('s_waitcnt lgkmcnt(0)')
        for i in range(4):
            j = 4*q+i
            a(f'v_fma_f32 v{DD+i}, v{OA+j}, v{DD+i}, v{EE+j}')
        for i in range(4):
            a(f'v_cvt_pk_bf16_f32 v{DD+i}, v{DD+i}, v{DD+i}')
        if q == 2:
            a('s_add_u32 s13, s13, 2560')
        a(f'buffer_store_short v{DD}, v215, s[68:71], s13 offen offset:{(5*(q%2))*256}')
        a('s_mov_b32 exec_hi, 0')
        for i in range(1,4):
            a(f'buffer_store_short v{DD+i}, v215, s[68:71], s13 offen offset:{(5*(q%2)+i)*256}')
        a('s_mov_b64 exec, -1')
        a('s_nop 1')
    a.label('K2_END')
    a('s_endpgm')
    a.raw(G.kd(name, NV))
```

```python
import sys
from asmlib import Asm, vr, sr

N = 10000; E = 160000; D = 128
NCH = 128
CH = E // NCH
NPB = 20
NB = N // NPB
WS_B = 0
WS_W = 0x280000
WS_TAB = 0x2A0000
WS_REC = 0x300000
WS_POS8 = 0x2E0000
TAB_BYTES = NB * NCH * 4
REC_BYTES = E * 8
GEMM_NODES = 64
N_GEMM = (N + GEMM_NODES - 1) // GEMM_NODES
N_TR = 12
K1_GRID = NCH + N_GEMM + N_TR
K1_LDS = 32768 + 64
NLOG2E = 0xbfb8aa3b
NLN2 = 0xbf317218

HEADER = open('standalone__cheap_equivariant_egnn__graph.s.ref').read().split('; Override')[0]

def kd(name, vgpr, sgpr=102):
    acc = (vgpr + 3) // 4 * 4
    return f'''.section .rodata,"a"
.p2align 6
.amdhsa_kernel {name}
  .amdhsa_next_free_vgpr {vgpr}
  .amdhsa_next_free_sgpr {sgpr}
  .amdhsa_accum_offset {acc}
  .amdhsa_group_segment_fixed_size 0
  .amdhsa_kernarg_size 88
  .amdhsa_user_sgpr_count 2
  .amdhsa_user_sgpr_kernarg_segment_ptr 1
  .amdhsa_system_sgpr_workgroup_id_x 1
.end_amdhsa_kernel
.text
'''

def kernel_head(a, name):
    a.raw(f'.globl {name}')
    a.raw('.p2align 8')
    a.raw(f'.type {name},@function')
    a.label(name)

def load_kernargs(a):
    a('s_load_dwordx16 s[16:31], s[0:1], 0')
    a('s_load_dwordx4 s[32:35], s[0:1], 64')
    a('s_load_dwordx2 s[36:37], s[0:1], 80')

def gen_k1(a):
    name = 'egnn_prep_kernel'
    kernel_head(a, name)
    a(f's_cmp_ge_u32 s2, {K1_GRID}')
    a('s_cbranch_scc1 K1_END')
    load_kernargs(a)
    a(f's_cmp_lt_u32 s2, {NCH}')
    a('s_cbranch_scc1 K1_BIN')
    a(f's_cmp_lt_u32 s2, {NCH + N_GEMM}')
    a('s_cbranch_scc1 K1_GEMM')
    a('s_branch K1_TR')

    a.label('K1_BIN')
    a('v_lshlrev_b32 v1, 2, v0')
    a('v_lshlrev_b32 v2, 1, v0')
    a('v_mov_b32 v4, 0')
    a('v_mov_b32 v5, 0')
    a('v_lshlrev_b32 v3, 3, v0')
    a('ds_write_b64 v3, v[4:5]')
    a('v_mov_b32 v6, 1')
    a(f's_mul_i32 s60, s2, {CH*4}')
    a('s_add_u32 s61, s60, 4096')
    a(f's_mul_i32 s62, s2, {CH*2}')
    a('s_waitcnt lgkmcnt(0)')
    a.srd(40, 24, E*4)
    a.srd(44, 22, E*4)
    a.srd(48, 20, E*2)
    a.srd(52, 36, TAB_BYTES, WS_TAB)
    a.srd(56, 36, REC_BYTES, WS_REC)
    for j in range(4):
        a(f'buffer_load_dword v{10+j}, v1, s[40:43], s60 offen offset:{j*1024}')
    a('buffer_load_dword v14, v1, s[40:43], s61 offen')
    for j in range(4):
        a(f'buffer_load_dword v{15+j}, v1, s[44:47], s60 offen offset:{j*1024}')
    a('buffer_load_dword v19, v1, s[44:47], s61 offen')
    for j in range(5):
        a(f'buffer_load_ushort v{20+j}, v2, s[48:51], s62 offen offset:{j*512}')
    a('s_barrier')
    a('s_mov_b32 s63, 52429')
    TAIL = CH - 1024
    a(f'v_cmp_gt_u32 vcc, {TAIL}, v0')
    a('s_mov_b64 s[64:65], vcc')
    for j in range(5):
        a(f's_waitcnt vmcnt({14-j})')
        a(f'v_mul_u32_u24 v{25+j}, s63, v{10+j}')
        a(f'v_lshrrev_b32 v{25+j}, 20, v{25+j}')
        a(f'v_mul_u32_u24 v7, 20, v{25+j}')
        a(f'v_sub_u32 v{10+j}, v{10+j}, v7')
        a(f'v_lshlrev_b32 v{25+j}, 2, v{25+j}')
        if j == 4:
            a('s_mov_b64 exec, s[64:65]')
        a(f'ds_add_rtn_u32 v{30+j}, v{25+j}, v6')
        if j == 4:
            a('s_mov_b64 exec, -1')
    for j in range(5):
        a(f'v_mul_u32_u24 v7, 13, v{10+j}')
        a('v_lshrrev_b32 v7, 6, v7')
        a('v_mul_u32_u24 v8, 5, v7')
        a(f'v_sub_u32 v8, v{10+j}, v8')
        a('v_lshl_or_b32 v8, v7, 4, v8')
        a(f's_waitcnt vmcnt({9-j})')
        a(f'v_lshl_or_b32 v{40+2*j}, v{15+j}, 8, v8')
    for j in range(5):
        a(f's_waitcnt vmcnt({4-j})')
        a(f'v_mov_b32 v{41+2*j}, v{20+j}')
    a('s_waitcnt lgkmcnt(0)')
    a('s_barrier')
    a('ds_read_b64 v[4:5], v3')
    a('s_waitcnt lgkmcnt(0)')
    a('v_add_u32 v7, v4, v5')
    a('v_mov_b32 v8, v7')
    a('s_nop 1')
    for sh in (1, 2, 4, 8):
        a(f'v_add_u32_dpp v8, v8, v8 row_shr:{sh} row_mask:0xf bank_mask:0xf bound_ctrl:0')
        a('s_nop 1')
    a('v_add_u32_dpp v8, v8, v8 row_bcast:15 row_mask:0xa bank_mask:0xf')
    a('s_nop 1')
    a('v_add_u32_dpp v8, v8, v8 row_bcast:31 row_mask:0xc bank_mask:0xf')
    a('v_lshrrev_b32 v9, 6, v0')
    a('v_lshlrev_b32 v50, 2, v9')
    a('v_add_u32 v50, 2048, v50')
    a('v_and_b32 v51, 63, v0')
    a('v_cmp_eq_u32 vcc, 63, v51')
    a('s_and_saveexec_b64 s[66:67], vcc')
    a('ds_write_b32 v50, v8')
    a('s_mov_b64 exec, s[66:67]')
    a('s_waitcnt lgkmcnt(0)')
    a('s_barrier')
    a('v_mov_b32 v50, 2048')
    a('ds_read_b128 v[52:55], v50')
    a('v_sub_u32 v8, v8, v7')
    a('s_waitcnt lgkmcnt(0)')
    a('v_cmp_lt_u32 vcc, 0, v9')
    a('s_nop 1')
    a('v_cndmask_b32 v52, 0, v52, vcc')
    a('v_cmp_lt_u32 vcc, 1, v9')
    a('s_nop 1')
    a('v_cndmask_b32 v53, 0, v53, vcc')
    a('v_cmp_lt_u32 vcc, 2, v9')
    a('s_nop 1')
    a('v_cndmask_b32 v54, 0, v54, vcc')
    a('v_add3_u32 v8, v8, v52, v53')
    a('v_add_u32 v56, v8, v54')
    a('v_add_u32 v57, v56, v4')
    a('ds_write_b64 v3, v[56:57]')
    a('v_lshl_or_b32 v58, v4, 16, v56')
    a('v_lshl_or_b32 v59, v5, 16, v57')
    a(f'v_lshlrev_b32 v60, {(2*NCH*4).bit_length()-1}, v0')
    a('s_lshl_b32 s66, s2, 2')
    a(f'buffer_store_dword v58, v60, s[52:55], s66 offen')
    a(f'buffer_store_dword v59, v60, s[52:55], s66 offen offset:{NCH*4}')
    a('s_waitcnt lgkmcnt(0)')
    a('s_barrier')
    for j in range(5):
        a(f'ds_read_b32 v{25+j}, v{25+j}')
    a(f's_mul_i32 s66, s2, {CH*8}')
    for j in range(5):
        a(f's_waitcnt lgkmcnt({4-j})')
        a(f'v_add_lshl_u32 v{25+j}, v{25+j}, v{30+j}, 3')
        if j == 4:
            a('s_mov_b64 exec, s[64:65]')
        a(f'buffer_store_dwordx2 v[{40+2*j}:{41+2*j}], v{25+j}, s[56:59], s66 offen')
    a('s_endpgm')

    a.label('K1_GEMM')
    a(f's_sub_u32 s3, s2, {NCH}')
    a('v_and_b32 v1, 63, v0')
    a('v_lshrrev_b32 v2, 6, v0')
    a('s_nop 0')
    a('v_readfirstlane_b32 s4, v2')
    a('s_waitcnt lgkmcnt(0)')
    a.srd(40, 26, 258*256)
    a.srd(44, 16, N*256)
    a.srd(48, 36, N*256, WS_B)
    a('v_lshlrev_b32 v3, 4, v1')
    a('s_lshl_b32 s5, s4, 13')
    a('s_add_u32 s6, s5, 32768')
    for i in range(8):
        a(f's_add_u32 m0, s5, {i*1024}')
        a(f's_add_u32 s7, s6, {i*1024}')
        a('buffer_load_dwordx4 v3, s[40:43], s7 offen lds')
    a('v_and_b32 v4, 31, v1')
    a('v_lshrrev_b32 v5, 5, v1')
    a('v_lshlrev_b32 v6, 8, v4')
    a('v_lshl_add_u32 v6, v5, 4, v6')
    a(f's_mul_i32 s8, s3, {GEMM_NODES*256}')
    a('s_add_u32 s9, s8, 8192')
    HB = 16
    for nt in range(2):
        for s in range(8):
            b = HB + (nt*8 + s)*4
            a(f'buffer_load_dwordx4 {vr(b,4)}, v6, s[44:47], s{8+nt} offen offset:{s*32}')
    a('v_and_b32 v7, 15, v1')
    a('v_lshrrev_b32 v8, 2, v7')
    a('v_and_b32 v9, 3, v7')
    a('v_lshl_add_u32 v8, v5, 3, v8')
    a('v_lshlrev_b32 v8, 8, v8')
    a('v_and_b32 v10, 1, v9')
    a('v_lshlrev_b32 v10, 5, v10')
    a('v_lshrrev_b32 v11, 1, v9')
    a('v_lshlrev_b32 v11, 3, v11')
    a('v_bfe_u32 v12, v1, 4, 1')
    a('v_lshlrev_b32 v12, 4, v12')
    a('v_add3_u32 v8, v8, v10, v11')
    a('v_add_u32 v8, v8, v12')
    a('s_lshl_b32 s10, s4, 6')
    a('v_add_u32 v8, s10, v8')
    a.srd(52, 18, N*6)
    a.srd(56, 36, N*8, WS_POS8)
    a('v_mul_u32_u24 v13, 6, v0')
    a(f's_mul_i32 s11, s3, {GEMM_NODES*6}')
    a('v_cmp_gt_u32 vcc, 64, v0')
    a('s_and_saveexec_b64 s[60:61], vcc')
    a('s_cbranch_execz K1_NOPOS')
    a('buffer_load_ushort v14, v13, s[52:55], s11 offen')
    a('buffer_load_ushort v15, v13, s[52:55], s11 offen offset:2')
    a('buffer_load_ushort v144, v13, s[52:55], s11 offen offset:4')
    a('v_lshlrev_b32 v13, 3, v0')
    a(f's_mul_i32 s11, s3, {GEMM_NODES*8}')
    a('s_waitcnt vmcnt(0)')
    a('v_lshl_or_b32 v14, v15, 16, v14')
    a('v_mov_b32 v15, v144')
    a('buffer_store_dwordx2 v[14:15], v13, s[56:59], s11 offen')
    a.label('K1_NOPOS')
    a('s_mov_b64 exec, s[60:61]')
    a('s_waitcnt vmcnt(0)')
    a('s_barrier')
    XB = 80
    for s in range(8):
        a(f'ds_read_b64_tr_b16 {vr(XB+4*s,2)}, v8 offset:{s*4096}')
        a(f'ds_read_b64_tr_b16 {vr(XB+4*s+2,2)}, v8 offset:{s*4096+1024}')
    DB = 112
    for nt in range(2):
        for s in range(8):
            if nt == 0:
                a(f's_waitcnt lgkmcnt({14-2*s})')
            cin = '0' if s == 0 else vr(DB+16*nt, 16)
            a(f'v_mfma_f32_32x32x16_bf16 {vr(DB+16*nt,16)}, {vr(XB+4*s,4)}, {vr(HB+(nt*8+s)*4,4)}, {cin}')
    a('v_lshlrev_b32 v6, 8, v4')
    a('v_lshl_add_u32 v6, v5, 5, v6')
    a('v_add_u32 v6, s10, v6')
    a(f's_mov_b32 s12, {NLOG2E}')
    a('s_nop 7')
    for nt in range(2):
        if nt == 1:
            a('s_nop 7')
        for j in range(16):
            a(f'v_mul_f32 v{DB+16*nt+j}, s12, v{DB+16*nt+j}')
        for p in range(8):
            a(f'v_cvt_pk_bf16_f32 v{HB+8*nt+p}, v{DB+16*nt+2*p}, v{DB+16*nt+2*p+1}')
        a(f'buffer_store_dwordx4 {vr(HB+8*nt,4)}, v6, s[48:51], s{8+nt} offen')
        a(f'buffer_store_dwordx4 {vr(HB+8*nt+4,4)}, v6, s[48:51], s{8+nt} offen offset:16')
    a('s_endpgm')

    a.label('K1_TR')
    a(f's_sub_u32 s3, s2, {NCH + N_GEMM}')
    a('s_lshr_b32 s4, s3, 2')
    a('s_and_b32 s5, s3, 3')
    a('s_waitcnt lgkmcnt(0)')
    a('s_cmp_eq_u32 s4, 0')
    a('s_cselect_b32 s40, s26, s30')
    a('s_cselect_b32 s41, s27, s31')
    a('s_mov_b32 s42, 65536')
    a('s_mov_b32 s43, 0x20000')
    a('s_cmp_eq_u32 s4, 2')
    a('s_cselect_b32 s6, 32768, 0')
    a.srd(44, 36, 3*32768, WS_W)
    a('v_and_b32 v1, 63, v0')
    a('v_lshrrev_b32 v2, 6, v0')
    a('v_and_b32 v3, 31, v1')
    a('v_lshrrev_b32 v4, 5, v1')
    a('v_lshlrev_b32 v5, 4, v2')
    a('v_lshl_add_u32 v5, v4, 3, v5')
    a('v_lshlrev_b32 v5, 8, v5')
    a('v_lshl_add_u32 v5, v3, 1, v5')
    a('s_lshl_b32 s7, s5, 6')
    a('s_add_u32 s6, s6, s7')
    a('s_add_u32 s8, s6, 16384')
    for u in range(2):
        for i in range(8):
            a(f'buffer_load_ushort v{16+8*u+i}, v5, s[40:43], s{6+2*u} offen offset:{i*256}')
    a('v_lshlrev_b32 v6, 4, v0')
    a('s_lshl_b32 s9, s3, 13')
    for u in range(2):
        a(f's_waitcnt vmcnt({8-8*u + u})')
        for p in range(4):
            a(f'v_lshl_or_b32 v{8+4*u+p}, v{16+8*u+2*p+1}, 16, v{16+8*u+2*p}')
        a(f'buffer_store_dwordx4 v[{8+4*u}:{11+4*u}], v6, s[44:47], s9 offen offset:{0}' if u == 0 else f'buffer_store_dwordx4 v[12:15], v6, s[44:47], s10 offen')
        if u == 0:
            a('s_add_u32 s10, s9, 4096')
    a.label('K1_END')
    a('s_endpgm')
    a.raw(kd(name, 148))

def build(k2=True):
    a = Asm()
    hdr = HEADER
    hdr += f'; @launch kernel=egnn_prep_kernel grid=({K1_GRID},1,1) block=(256,1,1) lds={K1_LDS}\n'
    if k2:
        import gen_k2
        hdr += f'; @launch kernel=egnn_edge_kernel grid=({NB},1,1) block=(256,1,1) lds={gen_k2.K2_LDS}\n'
    a.raw(hdr + '.amdgcn_target "amdgcn-amd-amdhsa--gfx950"\n.text')
    gen_k1(a)
    if k2:
        gen_k2.gen_k2(a)
    return a.text()

if __name__ == '__main__':
    k2 = '--nok2' not in sys.argv
    out = sys.argv[1] if len(sys.argv) > 1 and not sys.argv[1].startswith('--') else 'standalone__cheap_equivariant_egnn__graph.s'
    open(out, 'w').write(build(k2))
    print('wrote', out)
```

```python
class Asm:
    def __init__(self):
        self.lines = []
        self.uid = 0
    def __call__(self, s):
        for ln in s.strip('\n').split('\n'):
            self.lines.append('    ' + ln.strip() if not ln.strip().endswith(':') else ln.strip())
    def c(self, s):
        self.lines.append('    ; ' + s)
    def label(self, name):
        self.lines.append(name + ':')
    def newlabel(self, base='L'):
        self.uid += 1
        return f'{base}_{self.uid}'
    def raw(self, s):
        self.lines.append(s)
    def text(self):
        return '\n'.join(self.lines) + '\n'
    def srd(self, d, lo, size, off=0):
        if off:
            self(f's_add_u32 s{d}, s{lo}, {off}')
            self(f's_addc_u32 s{d+1}, s{lo+1}, 0')
        else:
            self(f's_mov_b32 s{d}, s{lo}')
            self(f's_mov_b32 s{d+1}, s{lo+1}')
        self(f's_mov_b32 s{d+2}, {size}')
        self(f's_mov_b32 s{d+3}, 0x20000')

import os
STAMP = os.environ.get('STAMP', '0') == '1'
WS_DBG = 0x1000000
def stamp(a, vreg, idx, real=False):
    if not STAMP: return
    a('s_memrealtime s[38:39]' if real else 's_memtime s[38:39]')
    a('s_waitcnt lgkmcnt(0)')
    a(f'v_writelane_b32 v{vreg}, s38, {idx}')
def stamp_flush(a, vreg, kernel_idx, tmpv, srd):
    if not STAMP: return
    a.srd(srd, 36, 1 << 20, WS_DBG + kernel_idx * (1 << 20))
    a('s_mov_b64 exec, -1')
    a(f'v_lshlrev_b32 v{tmpv}, 2, v0')
    a('s_lshl_b32 s38, s2, 10')
    a(f'buffer_store_dword v{vreg}, v{tmpv}, s[{srd}:{srd+3}], s38 offen')

def vr(b, n):
    return f'v[{b}:{b+n-1}]'
def sr(b, n):
    return f's[{b}:{b+n-1}]'
```

```python
from asmlib import Asm, vr, sr, stamp, stamp_flush, STAMP
import gen3 as G
import os

X2 = 0; X2T = 1280
X1 = 40960
RAW = 57344
POSD = 61440
POSN = 62464
CNT = 63104
WX = 63168
HS = 63488; RS = 272
AR = 74368
RING = 87040
K2_LDS = RING + 65536
TM = X2
TP = X2 + 40*RS; TS = 328
CAP = 128

V_CB = 2; V_X1B = 3; V_X2B = 4; V_RAWB = 5; V_GOFF = 6; R0 = 7; R1 = 8; PEND = 9; V_EB = 1
Y1 = 20; X1R = 28; X2R = 32; MP = 40; EE = 48; DA = 52
D0 = 56; D1 = 72; ACC = 88
SV = 126
NV = 128
PS = (20, 24); EA = (28, 29); RK = (30, 31); PD = (32, 36)

BAL = os.environ.get('BAL', '0') == '1'

def gen_k2(a):
    name = 'egnn_edge_kernel'
    G.kernel_head(a, name)
    a(f's_cmp_ge_u32 s2, {G.NB}')
    a('s_cbranch_scc1 K2_END')
    stamp(a, SV, 20, True); stamp(a, SV, 21)
    G.load_kernargs(a)
    a('v_lshrrev_b32 v11, 6, v0')
    a('v_and_b32 v10, 63, v0')
    a('v_readfirstlane_b32 s4, v11')
    a('v_mov_b32 v12, 0'); a('v_mov_b32 v13, 0'); a('v_mov_b32 v14, 0'); a('v_mov_b32 v15, 0')
    def zero_lds(first):
        a('v_lshlrev_b32 v11, 4, v0')
        a(f'v_add_u32 v11, {X2}, v11')
        for i in range(3):
            a(f'ds_write_b128 v11, v[12:15] offset:{i*16384}')
        lab = a.newlabel('K2_Z')
        a('s_cmp_ge_u32 s4, 12')
        a(f's_cbranch_scc1 {lab}')
        a(f'ds_write_b128 v11, v[12:15] offset:{3*16384}')
        a.label(lab)
        lab = a.newlabel('K2_Z')
        a('s_cmp_lg_u32 s4, 15')
        a(f's_cbranch_scc1 {lab}')
        a('v_lshlrev_b32 v11, 4, v10')
        a(f'v_add_u32 v16, {CNT}, v11')
        a(f's_mov_b64 exec, {0xf if first else 0x7}')
        a('ds_write_b128 v16, v[12:15]')
        if first:
            a('s_mov_b64 exec, 0x1ffff')
            a(f'v_add_u32 v16, {AR + 44*RS}, v11')
            a('ds_write_b128 v16, v[12:15]')
        a('s_mov_b64 exec, -1')
        a.label(lab)
    zero_lds(True)
    a('s_and_b32 s5, s4, 3')
    a('s_lshr_b32 s6, s5, 1')
    a('s_and_b32 s5, s5, 1')
    a('s_lshr_b32 s7, s4, 2')
    a('s_lshl_b32 s7, s7, 1')
    a('s_add_u32 s7, s7, s5')
    a('s_waitcnt lgkmcnt(0)')
    stamp(a, SV, 0, True); stamp(a, SV, 1)
    a.srd(40, 36, G.CELL_BYTES, G.WS_CELL)
    a('v_lshrrev_b32 v11, 4, v0')
    a('v_and_b32 v16, 15, v0')
    a('v_lshlrev_b32 v17, 7, v11')
    a('v_lshl_add_u32 v17, v16, 2, v17')
    a('s_lshl_b32 s8, s2, 13')
    a(f'buffer_load_dword v{R0}, v17, s[40:43], s8 offen')
    a(f'buffer_load_dword v{R1}, v17, s[40:43], s8 offen offset:64')
    a.srd(52, 16, G.N*256)
    a(f'v_mul_u32_u24 v{V_EB}, {G.CH}, v11')
    a('v_and_b32 v17, 15, v10')
    a('v_lshlrev_b32 v17, 4, v17')
    a(f's_mul_i32 s9, s2, {G.NPB*256}')
    a('s_mov_b64 exec, 0xffff')
    for i in range(3):
        a(f's_add_u32 s10, s4, {16*i}')
        if i == 2: a('s_min_u32 s10, s10, 39')
        a(f's_mul_i32 s11, s10, {RS}')
        a(f's_add_u32 m0, s11, {HS}')
        a('s_lshl_b32 s10, s10, 8')
        a('s_add_u32 s10, s10, s9')
        a('buffer_load_dwordx4 v17, s[52:55], s10 offen lds')
    a('s_mov_b64 exec, -1')
    a.srd(60, 36, G.N*16, G.WS_POSF)
    a.srd(56, 36, 3*32768, G.WS_W)
    a.srd(48, 36, G.N*256, G.WS_B)
    a.srd(64, 20, G.E*2)
    a.srd(68, 32, G.N*256 + G.N*6)
    a('s_cmp_lt_u32 s4, 4')
    a('s_cbranch_scc1 K2_J_W1')
    a('s_cmp_lt_u32 s4, 6')
    a('s_cbranch_scc1 K2_J_WDE')
    a('s_cmp_eq_u32 s4, 7')
    a('s_cbranch_scc1 K2_J_POSD')
    a('s_cmp_eq_u32 s4, 8')
    a('s_cbranch_scc1 K2_J_POSN')
    a('s_cmp_eq_u32 s4, 9')
    a('s_cbranch_scc1 K2_J_WX')
    a('s_branch K2_J_DONE')
    a.label('K2_J_W1')
    a('v_lshlrev_b32 v17, 4, v10')
    a('s_lshl_b32 s10, s4, 13')
    a('s_add_u32 s11, s10, 4096')
    for s in range(8):
        a(f'buffer_load_dwordx4 {vr(ACC+4*s,4)}, v17, s[56:59], s{10 + s//4} offen offset:{(s%4)*1024}')
    a('s_waitcnt vmcnt(8)')
    a('s_branch K2_J_END')
    a.label('K2_J_WDE')
    a.srd(72, 26, 258*256)
    a('v_subrev_u32 v17, 256, v0')
    a('v_lshlrev_b32 v17, 1, v17')
    a('s_mov_b32 s10, 65536')
    a('buffer_load_short_d16_hi v18, v17, s[72:75], s10 offen')
    a('buffer_load_short_d16_hi v19, v17, s[72:75], s10 offen offset:256')
    a(f's_mov_b32 s11, {G.NLOG2E}')
    a(f'v_add_u32 v17, {AR + 40*RS}, v17')
    a('s_waitcnt vmcnt(0)')
    a('v_mul_f32 v18, s11, v18')
    a('v_mul_f32 v19, s11, v19')
    a('v_cvt_pk_bf16_f32 v20, v18, v19')
    a('v_lshlrev_b32 v21, 16, v20')
    a('v_and_b32 v22, 0xffff0000, v20')
    a('v_sub_f32 v21, v18, v21')
    a('v_sub_f32 v22, v19, v22')
    a('v_cvt_pk_bf16_f32 v21, v21, v22')
    a('ds_write_b16 v17, v20')
    a(f'ds_write_b16_d16_hi v17, v20 offset:{RS}')
    a(f'ds_write_b16 v17, v21 offset:{2*RS}')
    a(f'ds_write_b16_d16_hi v17, v21 offset:{3*RS}')
    a('s_branch K2_J_DONE')
    a.label('K2_J_POSD')
    a('v_lshrrev_b32 v17, 3, v10')
    a('v_mul_u32_u24 v17, 5, v17')
    a('v_and_b32 v18, 7, v10')
    a('v_min_u32 v18, 4, v18')
    a('v_add_lshl_u32 v17, v17, v18, 4')
    a(f's_mul_i32 s10, s2, {G.NPB*16}')
    a(f's_mov_b32 m0, {POSD}')
    a('s_nop 0')
    a('buffer_load_dwordx4 v17, s[60:63], s10 offen lds')
    a('s_branch K2_J_DONE')
    a.label('K2_J_POSN')
    a('v_lshlrev_b32 v17, 4, v10')
    a(f's_mul_i32 s10, s2, {G.NPB*16}')
    a(f's_mov_b32 m0, {POSN}')
    a('s_mov_b32 exec_lo, -1')
    a('s_mov_b32 exec_hi, 0xff')
    a('buffer_load_dwordx4 v17, s[60:63], s10 offen lds')
    a('s_mov_b64 exec, -1')
    a('s_branch K2_J_DONE')
    a.label('K2_J_WX')
    a.srd(72, 28, 256)
    a('v_lshlrev_b32 v17, 4, v10')
    a(f's_mov_b32 m0, {WX}')
    a('s_mov_b64 exec, 0xffff')
    a('buffer_load_dwordx4 v17, s[72:75], 0 offen lds')
    a('s_mov_b64 exec, -1')
    a.label('K2_J_DONE')
    a('s_waitcnt vmcnt(0)')
    a.label('K2_J_END')
    stamp(a, SV, 2)
    a('v_and_b32 v16, 15, v0')
    a(f'v_cmp_ne_u32 vcc, -1, v{R0}')
    a('v_cmp_ne_u32 s[80:81], 15, v16')
    a(f'v_cmp_ne_u32 s[82:83], -1, v{R1}')
    a(f'v_cndmask_b32 v{PEND}, 0, 1, vcc')
    a('s_and_b64 s[82:83], s[82:83], s[80:81]')
    a('v_cmp_lt_u32 vcc, 31, v%d' % R1)
    a('v_cndmask_b32 v17, 0, 2, s[82:83]')
    a('s_andn2_b64 vcc, vcc, s[80:81]')
    a(f'v_or_b32 v{PEND}, v{PEND}, v17')
    a(f'v_cndmask_b32 v{R1}, -1, v{R1}, s[80:81]')
    a('s_mov_b32 s76, 1')
    a('s_mov_b32 s77, 0xffff')
    a('s_waitcnt lgkmcnt(0)')
    a('s_barrier')
    stamp(a, SV, 3)
    lab = a.newlabel('K2_NOOV')
    a('s_and_saveexec_b64 s[80:81], vcc')
    a(f's_cbranch_execz {lab}')
    a('v_lshrrev_b32 v17, 4, v0')
    a('v_and_b32 v18, 31, v17')
    a('v_lshlrev_b32 v18, 1, v12' if False else 'v_mov_b32 v19, 1')
    a('v_lshlrev_b32 v18, v18, v19')
    a('v_lshrrev_b32 v17, 5, v17')
    a('v_lshlrev_b32 v17, 2, v17')
    a(f'v_add_u32 v17, {CNT+48}, v17')
    a('ds_or_b32 v17, v18')
    a.label(lab)
    a('s_mov_b64 exec, s[80:81]')

    a.label('K2_ROUND')
    a('v_and_b32 v10, 63, v0')
    RR = (R0, R1)
    for j in range(2):
        a(f'v_lshrrev_b32 v11, 14, v{RR[j]}')
        a('v_and_b32 v11, -16, v11')
        a(f'buffer_load_dwordx4 {vr(PS[j],4)}, v11, s[60:63], 0 offen')
        a(f'v_and_b32 v16, 0xfff, v{RR[j]}')
        a(f'v_add_lshl_u32 v16, v16, v{V_EB}, 1')
        a(f'buffer_load_short_d16_hi v{EA[j]}, v16, s[64:67], 0 offen')
    a('v_mov_b32 v19, 1')
    for j in range(2):
        a(f'v_and_b32 v11, {1<<j}, v{PEND}')
        a(f'v_cmp_ne_u32 s[{80+2*j}:{81+2*j}], 0, v11')
        a(f'v_bfe_u32 v{16+j}, v{RR[j]}, 15, 3')
        a(f'v_lshlrev_b32 v11, 2, v{16+j}')
        lab = a.newlabel('K2_SA')
        a(f's_mov_b64 exec, s[{80+2*j}:{81+2*j}]')
        a(f's_cbranch_execz {lab}')
        a(f'ds_add_rtn_u32 v{RK[j]}, v11, v19 offset:{CNT}')
        a(f'v_bfe_u32 v11, v{RR[j]}, 12, 6')
        a('v_lshlrev_b32 v11, 4, v11')
        a(f'ds_read_b128 {vr(PD[j],4)}, v11 offset:{POSD}')
        a.label(lab)
        a('s_mov_b64 exec, -1')
    a('v_and_b32 v11, 31, v10')
    a('v_lshrrev_b32 v18, 5, v10')
    a('s_lshl_b32 s8, s4, 12')
    a(f's_add_u32 s8, s8, {RING}')
    a('v_lshlrev_b32 v12, 9, v18')
    a('v_lshl_add_u32 v12, v11, 1, v12')
    a(f'v_add_u32 v{V_CB}, s8, v12')
    a('s_lshl_b32 s8, s7, 11')
    a(f's_add_u32 s8, s8, {X1}')
    a('v_lshlrev_b32 v12, 4, v11')
    a(f'v_add_u32 v{V_X1B}, s8, v12')
    a(f's_mul_i32 s8, s7, {4*X2T}')
    a(f's_add_u32 s8, s8, {X2}')
    a('v_min_u32 v12, 19, v11')
    a('v_lshlrev_b32 v12, 4, v12')
    a('v_mul_u32_u24 v13, 320, v18')
    a(f'v_add3_u32 v{V_X2B}, s8, v12, v13')
    a('s_lshl_b32 s8, s7, 9')
    a(f's_add_u32 s8, s8, {RAW}')
    a('v_lshrrev_b32 v12, 3, v10')
    a('v_lshlrev_b32 v12, 2, v12')
    a(f'v_add_u32 v{V_RAWB}, s8, v12')
    a('s_lshl_b32 s8, s6, 7')
    a('v_and_b32 v12, 7, v10')
    a('v_lshlrev_b32 v12, 4, v12')
    a(f'v_add_u32 v{V_GOFF}, s8, v12')
    a('s_waitcnt lgkmcnt(0)')
    for j in range(2):
        lab = a.newlabel('K2_SP')
        a(f's_mov_b64 exec, s[{80+2*j}:{81+2*j}]')
        a(f's_cbranch_execz {lab}')
        a(f'v_cmp_gt_u32 vcc, {CAP}, v{RK[j]}')
        a(f's_and_b64 s[{80+2*j}:{81+2*j}], s[{80+2*j}:{81+2*j}], vcc')
        a(f's_mov_b64 exec, s[{80+2*j}:{81+2*j}]')
        a(f'v_lshl_add_u32 v{RK[j]}, v{16+j}, 7, v{RK[j]}')
        a(f'v_lshrrev_b32 v11, 10, v{RR[j]}')
        a('v_and_b32 v11, 0xffffff00, v11')
        a(f'v_lshlrev_b32 v12, 2, v{RK[j]}')
        a(f'ds_write_b32 v12, v11 offset:{RAW}')
        a(f'v_xor_b32 v{PEND}, {1<<j}, v{PEND}')
        a.label(lab)
        a('s_mov_b64 exec, -1')
    a('s_waitcnt lgkmcnt(0)')
    a('s_barrier')
    stamp(a, SV, 4)
    a('s_lshl_b32 s8, s7, 2')
    a('v_mov_b32 v11, s8')
    a(f'ds_read_b32 v11, v11 offset:{CNT}')
    for i in range(4):
        a(f'ds_read_b32 v{DA+i}, v{V_RAWB} offset:{32*i}')
    a('s_lshl_b32 s9, s4, 12')
    a(f's_add_u32 s9, s9, {RING}')
    a('s_waitcnt lgkmcnt(0)')
    a('v_readfirstlane_b32 s8, v11')
    for i in range(4):
        a(f'v_add_u32 v{DA+i}, v{DA+i}, v{V_GOFF}')
    a(f's_min_u32 s8, s8, {CAP}')
    a('s_waitcnt vmcnt(4)')
    for i in range(4):
        a(f's_add_u32 m0, s9, {i*1024}')
        a('s_nop 0')
        a(f'buffer_load_dwordx4 v{DA+i}, s[48:51], 0 offen lds')
    stamp(a, SV, 5)
    a('s_cmp_eq_u32 s76, 0')
    a('s_cbranch_scc1 K2_SKIPA')
    a('s_cmp_ge_u32 s4, 4')
    a('s_cbranch_scc1 K2_SKIPA')
    a('v_and_b32 v11, 31, v10')
    a('v_lshrrev_b32 v18, 5, v10')
    a(f'v_mul_u32_u24 v12, {RS}, v11')
    a('v_lshl_add_u32 v12, v18, 4, v12')
    a(f'v_add_u32 v12, {HS}, v12')
    a('v_add_u32 v13, 32, v11')
    a('v_min_u32 v13, 39, v13')
    a(f'v_mul_u32_u24 v13, {RS}, v13')
    a('v_lshl_add_u32 v13, v18, 4, v13')
    a(f'v_add_u32 v13, {HS}, v13')
    HB = 40
    def hread(s):
        b = HB + 8*(s % 2)
        a(f'ds_read_b128 {vr(b,4)}, v12 offset:{32*s}')
        a(f'ds_read_b128 {vr(b+4,4)}, v13 offset:{32*s}')
    hread(0)
    for s in range(8):
        if s + 1 < 8: hread(s+1)
        a(f's_waitcnt lgkmcnt({2 if s < 7 else 0})')
        b = HB + 8*(s % 2)
        for nt in range(2):
            acc = vr(D0+16*nt, 16)
            a(f'v_mfma_f32_32x32x16_bf16 {acc}, {vr(ACC+4*s,4)}, {vr(b+4*nt,4)}, {"0" if s == 0 else acc}')
    a(f'v_mul_u32_u24 v12, {RS}, v11')
    a('v_lshl_add_u32 v12, v18, 5, v12')
    a('s_lshl_b32 s10, s4, 6')
    a(f's_add_u32 s10, s10, {AR}')
    a('v_add_u32 v12, s10, v12')
    a(f's_mov_b32 s10, {G.NLOG2E}')
    a('s_nop 7')
    for nt in range(2):
        for j in range(16):
            a(f'v_mul_f32 v{D0+16*nt+j}, s10, v{D0+16*nt+j}')
        for p in range(8):
            a(f'v_cvt_pk_bf16_f32 v{HB+p}, v{D0+16*nt+2*p}, v{D0+16*nt+2*p+1}')
        if nt == 1:
            a('s_mov_b32 exec_lo, 0xff')
            a('s_mov_b32 exec_hi, 0xff')
        a(f'ds_write_b128 v12, {vr(HB,4)} offset:{nt*32*RS}')
        a(f'ds_write_b128 v12, {vr(HB+4,4)} offset:{nt*32*RS+16}')
        a('s_mov_b64 exec, -1')
        a('s_nop 1')
    a.label('K2_SKIPA')
    stamp(a, SV, 6)
    a('s_waitcnt vmcnt(4) lgkmcnt(0)')
    stamp(a, SV, 7)
    for j in range(2):
        lab = a.newlabel('K2_XB')
        ps = PS[j]; pd = PD[j]; ea = EA[j]; rk = RK[j]; rr = RR[j]
        a(f's_mov_b64 exec, s[{80+2*j}:{81+2*j}]')
        a(f's_cbranch_execz {lab}')
        a(f'v_pk_add_f32 {vr(pd,2)}, {vr(pd,2)}, {vr(ps,2)} neg_lo:[0,1] neg_hi:[0,1]')
        a(f'v_sub_f32 v{pd+2}, v{pd+2}, v{ps+2}')
        a(f'v_cvt_pk_bf16_f32 v40, v{pd}, v{pd+1}')
        a(f'v_cvt_pk_bf16_f32 v41, v{pd+2}, v{pd+2}')
        a('v_lshlrev_b32 v42, 16, v40')
        a('v_and_b32 v43, 0xffff0000, v40')
        a('v_lshlrev_b32 v44, 16, v41')
        a('v_pk_mul_f32 v[42:43], v[42:43], v[42:43]')
        a('v_mul_f32 v44, v44, v44')
        a('v_cvt_pk_bf16_f32 v42, v42, v43')
        a('v_cvt_pk_bf16_f32 v44, v44, v44')
        a('v_lshlrev_b32 v43, 16, v42')
        a('v_and_b32 v42, 0xffff0000, v42')
        a('v_lshlrev_b32 v44, 16, v44')
        a('v_add_f32 v42, v43, v42')
        a('v_add_f32 v42, v42, v44')
        a('v_cvt_pk_bf16_f32 v42, v42, v42')
        a(f'v_and_or_b32 v42, v42, s77, v{ea}')
        a(f'v_bfe_u32 v43, v{rr}, 12, 3')
        a(f'v_lshlrev_b32 v44, 4, v{rk}')
        a(f'ds_write_b32 v44, v42 offset:{X1}')
        a('v_lshl_add_u32 v44, v43, 1, v44')
        a('v_mov_b32 v45, 0x3f80')
        a(f'ds_write_b16 v44, v45 offset:{X1+4}')
        a(f'v_lshrrev_b32 v44, 5, v{rk}')
        a(f'v_mul_u32_u24 v44, {X2T}, v44')
        a(f'v_bfe_u32 v46, v{rk}, 4, 1')
        a(f'v_bfe_u32 v47, v{rk}, 2, 1')
        a('v_lshl_add_u32 v46, v46, 1, v47')
        a('v_mad_u32_u24 v44, v46, 320, v44' if False else 'v_mul_u32_u24 v46, 320, v46')
        a(f'v_and_b32 v47, 8, v{rk}')
        a('v_add3_u32 v44, v44, v46, v47')
        a(f'v_and_b32 v47, 3, v{rk}')
        a('v_lshl_add_u32 v44, v47, 1, v44')
        a('v_lshl_add_u32 v44, v43, 6, v44')
        a(f'ds_write_b16 v44, v45 offset:{X2}')
        a(f'ds_write_b16 v44, v40 offset:{X2+16}')
        a(f'ds_write_b16_d16_hi v44, v40 offset:{X2+32}')
        a(f'ds_write_b16 v44, v41 offset:{X2+48}')
        a.label(lab)
        a('s_mov_b64 exec, -1')
    a(f'v_cmp_ne_u32 vcc, 0, v{PEND}')
    a('s_cmp_eq_u64 vcc, 0')
    lab = a.newlabel('K2_NP')
    a(f's_cbranch_scc1 {lab}')
    a(f'v_mov_b32 v11, {CNT+32}')
    a('v_mov_b32 v12, 1')
    a('ds_write_b32 v11, v12')
    a.label(lab)
    a('s_waitcnt lgkmcnt(0)')
    a('s_barrier')
    stamp(a, SV, 8)
    a(f'v_mov_b32 v11, {CNT+32}')
    a('ds_read_b32 v16, v11')
    a('ds_read_b64 v[18:19], v11 offset:16')
    a('v_and_b32 v12, 15, v10')
    a('v_lshrrev_b32 v13, 2, v12')
    a('v_and_b32 v12, 3, v12')
    a('v_lshlrev_b32 v12, 3, v12')
    a('v_bfe_u32 v14, v10, 4, 1')
    a('v_lshl_add_u32 v12, v14, 5, v12')
    a('s_lshl_b32 s10, s6, 7')
    a(f's_add_u32 s10, s10, {AR}')
    a('v_add_u32 v12, s10, v12')
    a('s_mul_i32 s11, s7, 5')
    a('v_cmp_lt_u32 vcc, 31, v10')
    a('v_cmp_gt_u32 s[80:81], 2, v13')
    a('v_cmp_gt_u32 s[82:83], 3, v13')
    a('v_add_u32 v14, 40, v13')
    a('s_sub_u32 s12, s11, 2')
    a('v_add_u32 v15, s12, v13')
    a('v_cndmask_b32 v14, v15, v14, s[80:81]')
    a('v_add_u32 v15, 42, v13')
    a('v_cndmask_b32 v15, 44, v15, s[80:81]')
    a('v_cndmask_b32 v14, v14, v15, vcc')
    a(f'v_mul_u32_u24 v14, {RS}, v14')
    a('v_add_u32 v14, v14, v12')
    a('s_add_u32 s12, s11, 2')
    a('v_add_u32 v15, s12, v13')
    a('v_cndmask_b32 v15, 44, v15, s[82:83]')
    a('v_cndmask_b32 v15, v15, 44, vcc')
    a(f'v_mul_u32_u24 v15, {RS}, v15')
    a('v_add_u32 v15, v15, v12')
    for ct in range(2):
        a(f'ds_read_b64_tr_b16 {vr(Y1+4*ct,2)}, v14 offset:{64*ct}')
        a(f'ds_read_b64_tr_b16 {vr(Y1+4*ct+2,2)}, v15 offset:{64*ct}')
    a('s_cmp_eq_u32 s76, 0')
    a('s_cbranch_scc1 K2_SKIPY')
    for i in range(32):
        a(f'v_mov_b32 v{ACC+i}, 0')
    a('s_waitcnt lgkmcnt(0)')
    a('v_readfirstlane_b32 s90, v18')
    a('v_readfirstlane_b32 s91, v19')
    a('s_mov_b32 s92, 0')
    a.label('K2_SKIPY')
    for i in range(8):
        a(f'v_mov_b32 v{MP+i}, 0')
    a('s_waitcnt lgkmcnt(0)')
    a('v_readfirstlane_b32 s93, v16')

    a('s_cmp_eq_u32 s8, 0')
    a('s_cbranch_scc1 K2_LOOP_END')
    a('s_lshl_b32 s9, s4, 12')
    a(f's_add_u32 s9, s9, {RING}')
    a.label('K2_LOOP')
    a('s_add_u32 s10, s8, 7')
    a('s_lshr_b32 s10, s10, 3')
    a('s_min_u32 s10, s10, 4')
    a('s_sub_i32 s11, s8, 32')
    a('s_max_i32 s11, s11, 0')
    a('s_add_u32 s12, s11, 7')
    a('s_lshr_b32 s12, s12, 3')
    a('s_min_u32 s12, s12, 4')
    for i in range(4):
        a(f'ds_read_b32 v{DA+i}, v{V_RAWB} offset:{128 + 32*i}')
    a(f'ds_read_b128 {vr(X1R,4)}, v{V_X1B}')
    a('s_waitcnt vmcnt(0)')
    lc = a.newlabel('K2_CR')
    for q in range(4):
        if q > 0:
            a(f's_cmp_le_u32 s10, {q}')
            a(f's_cbranch_scc1 {lc}')
        for ct in range(2):
            for i in range(4):
                a(f'ds_read_u16_d16_hi v{D0+16*ct+4*q+i}, v{V_CB} offset:{(8*q+i)*128 + 64*ct}')
    a.label(lc)
    a('s_waitcnt lgkmcnt(0)')
    for ct in range(2):
        d = vr(D0+16*ct, 16)
        a(f'v_mfma_f32_32x32x16_bf16 {d}, {vr(X1R,4)}, {vr(Y1+4*ct,4)}, {d}')
    a(f'ds_read_b128 {vr(X2R,4)}, v{V_X2B}')
    a(f'ds_read_b128 {vr(X2R+4,4)}, v{V_X2B} offset:640')
    ld = a.newlabel('K2_ND')
    for i in range(4):
        a(f's_cmp_le_u32 s12, {i}')
        a(f's_cbranch_scc1 {ld}')
        a(f'v_add_u32 v{DA+i}, v{DA+i}, v{V_GOFF}')
        a(f's_add_u32 m0, s9, {i*1024}')
        a('s_nop 0')
        a(f'buffer_load_dwordx4 v{DA+i}, s[48:51], 0 offen lds')
    a.label(ld)
    a(f'v_add_u32 v{V_RAWB}, 128, v{V_RAWB}')
    a(f'v_add_u32 v{V_X1B}, 512, v{V_X1B}')
    a(f'v_add_u32 v{V_X2B}, {X2T}, v{V_X2B}')
    a('s_nop 4')
    for ct in range(2):
        lv = a.newlabel('K2_V')
        for q in range(4):
            if q > 0:
                a(f's_cmp_le_u32 s10, {q}')
                a(f's_cbranch_scc1 {lv}')
            d = D0+16*ct+4*q; e = EE
            for i in range(4):
                a(f'v_exp_f32 v{e+i}, v{d+i}')
            a(f'v_pk_add_f32 {vr(e,2)}, {vr(e,2)}, 1.0 op_sel_hi:[1,0]')
            a(f'v_pk_add_f32 {vr(e+2,2)}, {vr(e+2,2)}, 1.0 op_sel_hi:[1,0]')
            for i in range(4):
                a(f'v_rcp_f32 v{e+i}, v{e+i}')
            a(f'v_pk_mul_f32 {vr(d,2)}, {vr(d,2)}, {vr(e,2)}')
            a(f'v_pk_mul_f32 {vr(d+2,2)}, {vr(d+2,2)}, {vr(e+2,2)}')
            a(f'v_cvt_pk_bf16_f32 v{MP+2*q}, v{d}, v{d+1}')
            a(f'v_cvt_pk_bf16_f32 v{MP+2*q+1}, v{d+2}, v{d+3}')
        a.label(lv)
        a('s_waitcnt lgkmcnt(0)')
        a('s_nop 0')
        acc = vr(ACC+16*ct, 16)
        a(f'v_mfma_f32_32x32x16_bf16 {acc}, {vr(X2R,4)}, {vr(MP,4)}, {acc}')
        lb = a.newlabel('K2_B')
        a('s_cmp_le_u32 s10, 2')
        a(f's_cbranch_scc1 {lb}')
        a(f'v_mfma_f32_32x32x16_bf16 {acc}, {vr(X2R+4,4)}, {vr(MP+4,4)}, {acc}')
        a.label(lb)
    a('s_mov_b32 s8, s11')
    a('s_cmp_gt_u32 s8, 0')
    a('s_cbranch_scc1 K2_LOOP')
    a.label('K2_LOOP_END')
    stamp(a, SV, 9)
    a('s_or_b32 s10, s90, s91')
    a('s_or_b32 s10, s10, s93')
    a('s_cmp_eq_u32 s10, 0')
    a('s_cbranch_scc1 K2_EPI')
    a('s_waitcnt vmcnt(0)')
    a('s_barrier')
    a('v_and_b32 v10, 63, v0')
    a('v_mov_b32 v12, 0'); a('v_mov_b32 v13, 0'); a('v_mov_b32 v14, 0'); a('v_mov_b32 v15, 0')
    zero_lds(False)
    a('s_mov_b32 s76, 0')
    a('s_cmp_lg_u32 s93, 0')
    a('s_cbranch_scc1 K2_NOREFILL')
    a('s_ff1_i32_b64 s94, s[90:91]')
    a.srd(44, 36, G.OVF_BYTES, G.WS_OVF)
    a.srd(72, 36, 256, G.WS_OVC)
    a('s_lshl_b32 s10, s94, 2')
    a('v_mov_b32 v16, s10')
    a('buffer_load_dword v17, v16, s[72:75], 0 offen')
    a(f's_mul_i32 s11, s94, {G.CH*8}')
    a('v_add_u32 v16, s92, v0')
    a('v_lshlrev_b32 v18, 3, v16')
    a('buffer_load_dwordx2 v[22:23], v18, s[44:47], s11 offen')
    a(f's_mul_i32 s11, s94, {G.CH}')
    a(f'v_mov_b32 v{V_EB}, s11')
    a('s_waitcnt vmcnt(0)')
    a('v_cmp_lt_u32 vcc, v16, v17')
    a('v_cmp_eq_u32 s[80:81], s2, v23')
    a('s_and_b64 vcc, vcc, s[80:81]')
    a('s_nop 1')
    a(f'v_cndmask_b32 v{R0}, -1, v22, vcc')
    a(f'v_cndmask_b32 v{PEND}, 0, 1, vcc')
    a(f'v_mov_b32 v{R1}, -1')
    a('v_readfirstlane_b32 s10, v17')
    a('s_add_u32 s92, s92, 1024')
    a('s_cmp_lt_u32 s92, s10')
    a('s_cbranch_scc1 K2_NOREFILL')
    a('s_bitset0_b64 s[90:91], s94')
    a('s_mov_b32 s92, 0')
    a.label('K2_NOREFILL')
    a('s_waitcnt lgkmcnt(0)')
    a('s_barrier')
    a('s_branch K2_ROUND')

    a.label('K2_EPI')
    a('v_and_b32 v10, 63, v0')
    a('s_cmp_ge_u32 s4, 8')
    a('s_cbranch_scc1 K2_E1')
    a('v_lshlrev_b32 v17, 4, v10')
    a('s_and_b32 s10, s4, 3')
    a('s_lshl_b32 s10, s10, 13')
    a('s_add_u32 s10, s10, 32768')
    a('s_add_u32 s11, s10, 4096')
    a('s_add_u32 s12, s10, 32768')
    a('s_add_u32 s13, s10, 36864')
    for s in range(8):
        a(f'buffer_load_dwordx4 {vr(56+4*s,4)}, v17, s[56:59], s{10 + s//4} offen offset:{(s%4)*1024}')
    for s in range(8):
        a(f'buffer_load_dwordx4 {vr(20+4*s,4)}, v17, s[56:59], s{12 + s//4} offen offset:{(s%4)*1024}')
    a.label('K2_E1')
    a('s_nop 7'); a('s_nop 3')
    for ct in range(2):
        for q in range(3):
            src = ACC + 16*ct + 4*q; dst = 88 + 6*ct + 2*q
            a(f'v_cvt_pk_bf16_f32 v{dst}, v{src}, v{src+1}')
            a(f'v_cvt_pk_bf16_f32 v{dst+1}, v{src+2}, v{src+3}')
    CP = 104
    a('v_and_b32 v11, 31, v10')
    a('v_lshrrev_b32 v18, 5, v10')
    a('s_cmp_ge_u32 s4, 8')
    a('s_cbranch_scc1 K2_E2')
    a('s_lshr_b32 s14, s4, 2')
    a('s_lshl_b32 s14, s14, 5')
    a('v_add_u32 v12, s14, v11')
    a('v_min_u32 v12, 39, v12')
    a(f'v_mul_u32_u24 v13, {RS}, v12')
    a('v_lshl_add_u32 v13, v18, 4, v13')
    a(f'v_add_u32 v14, {HS}, v13')
    for s in range(8):
        b = (52, 120)[s % 2]
        a(f'ds_read_b128 {vr(b,4)}, v14 offset:{32*s}')
        if s == 0: a('s_waitcnt vmcnt(8)')
        a('s_waitcnt lgkmcnt(0)')
        a(f'v_mfma_f32_32x32x16_bf16 {vr(CP,16)}, {vr(56+4*s,4)}, {vr(b,4)}, {"0" if s == 0 else vr(CP,16)}')
    a.label('K2_E2')
    stamp(a, SV, 10)
    a('s_barrier')
    a('s_lshl_b32 s10, s6, 6')
    a('v_add_u32 v12, s10, v11')
    a(f'v_mul_u32_u24 v13, {TS}, v12')
    a('s_mul_i32 s11, s7, 5')
    a('v_add_u32 v15, s11, v18')
    a('v_lshl_add_u32 v13, v15, 3, v13')
    a(f'v_add_u32 v13, {TP}, v13')
    a(f'v_mul_u32_u24 v15, {RS}, v15')
    a('v_lshl_add_u32 v15, v12, 1, v15')
    a(f'v_add_u32 v15, {TM}, v15')
    for ct in range(2):
        for q in range(3):
            r = 88 + 6*ct + 2*q
            if q == 2: a('s_mov_b32 exec_hi, 0')
            a(f'ds_write_b64 v13, {vr(r,2)} offset:{ct*32*TS + q*16}')
            a(f'ds_write_b16 v15, v{r} offset:{ct*64 + q*2*RS}')
            if q == 2: a('s_mov_b64 exec, -1')
    a('s_waitcnt lgkmcnt(0)')
    a('s_barrier')
    stamp(a, SV, 11)
    a('s_cmp_ge_u32 s4, 8')
    a('s_cbranch_scc1 K2_Z')
    a(f'v_add_u32 v14, {TM}, v13' if False else 's_nop 0')
    a('s_lshr_b32 s14, s4, 2')
    a('s_lshl_b32 s14, s14, 5')
    a('v_add_u32 v12, s14, v11')
    a('v_min_u32 v16, 39, v12')
    a(f'v_mul_u32_u24 v13, {RS}, v16')
    a('v_lshl_add_u32 v14, v18, 4, v13')
    a(f'v_add_u32 v14, {TM}, v14')
    DM = 56
    for s in range(8):
        a(f'ds_read_b128 {vr(72+4*(s%4),4)}, v14 offset:{32*s}')
        if s == 3 or s == 7:
            for t in range(4):
                ss = s - 3 + t
                a(f's_waitcnt lgkmcnt({3-t})')
                if ss == 0: a('s_waitcnt vmcnt(0)')
                a(f'v_mfma_f32_32x32x16_bf16 {vr(DM,16)}, {vr(20+4*ss,4)}, {vr(72+4*t,4)}, {"0" if ss == 0 else vr(DM,16)}')
    a('s_and_b32 s10, s4, 3')
    a('s_lshl_b32 s10, s10, 6')
    a('v_lshl_add_u32 v14, v18, 5, v13')
    a('v_add_u32 v14, s10, v14')
    a(f'ds_read_b128 v[72:75], v14 offset:{HS}')
    a(f'ds_read_b128 v[76:79], v14 offset:{HS+16}')
    a(f'v_lshlrev_b32 v15, 8, v12')
    a('v_lshl_add_u32 v15, v18, 5, v15')
    a('v_add_u32 v15, s10, v15')
    a(f's_mul_i32 s13, s2, {G.NPB*256}')
    a(f's_mov_b32 s12, {G.NLN2}')
    a(f's_mov_b32 s14, {G.NLOG2E}')
    a('v_cmp_gt_u32 vcc, 40, v12')
    a('s_nop 4')
    for j in range(16):
        a(f'v_fma_f32 v{CP+j}, s12, v{DM+j}, v{CP+j}')
    a('s_waitcnt lgkmcnt(0)')
    for p in range(8):
        j = 2*p
        a(f'v_mul_f32 v20, s14, v{CP+j}')
        a(f'v_mul_f32 v21, s14, v{CP+j+1}')
        a('v_exp_f32 v20, v20')
        a('v_exp_f32 v21, v21')
        a(f'v_lshlrev_b32 v22, 16, v{72+p}')
        a(f'v_and_b32 v23, 0xffff0000, v{72+p}')
        a('v_add_f32 v20, 1.0, v20')
        a('v_add_f32 v21, 1.0, v21')
        a('v_rcp_f32 v20, v20')
        a('v_rcp_f32 v21, v21')
        a('s_nop 0')
        a(f'v_fma_f32 v22, v{CP+j}, v20, v22')
        a(f'v_fma_f32 v23, v{CP+j+1}, v21, v23')
        a(f'v_cvt_pk_bf16_f32 v{80+p}, v22, v23')
    a('s_and_saveexec_b64 s[80:81], vcc')
    a('s_cbranch_execz K2_FIN')
    a('buffer_store_dwordx4 v[80:83], v15, s[68:71], s13 offen')
    a('buffer_store_dwordx4 v[84:87], v15, s[68:71], s13 offen offset:16')
    a('s_branch K2_FIN')
    a.label('K2_Z')
    a('s_cmp_ge_u32 s4, 13')
    a('s_cbranch_scc1 K2_FIN')
    a('s_sub_u32 s14, s4, 8')
    a('v_and_b32 v12, 15, v10')
    a('v_lshrrev_b32 v13, 2, v12')
    a('v_and_b32 v12, 3, v12')
    a('v_lshl_add_u32 v13, v18, 3, v13')
    a(f'v_mul_u32_u24 v13, {TS}, v13')
    a('v_bfe_u32 v14, v10, 4, 1')
    a('v_lshlrev_b32 v14, 5, v14')
    a('v_lshl_add_u32 v14, v12, 3, v14')
    a('s_lshl_b32 s10, s14, 6')
    a(f's_add_u32 s10, s10, {TP}')
    a('v_add3_u32 v13, v13, v14, s10')
    for s in range(8):
        a(f'ds_read_b64_tr_b16 {vr(20+4*s,2)}, v13 offset:{16*s*TS}')
        a(f'ds_read_b64_tr_b16 {vr(20+4*s+2,2)}, v13 offset:{(16*s+4)*TS}')
    a('v_lshlrev_b32 v14, 4, v18')
    a(f'v_add_u32 v14, {WX}, v14')
    for s in range(8):
        a(f'ds_read_b128 {vr(56+4*s,4)}, v14 offset:{32*s}')
    ZA = 104
    for s in range(8):
        a(f's_waitcnt lgkmcnt({7-s})')
        a(f'v_mfma_f32_32x32x16_bf16 {vr(ZA,16)}, {vr(56+4*s,4)}, {vr(20+4*s,4)}, {"0" if s == 0 else vr(ZA,16)}')
    a('s_lshl_b32 s10, s14, 5')
    a('v_add_u32 v12, s10, v11')
    a('v_lshlrev_b32 v13, 2, v12')
    a(f'ds_read_b32 v16, v13 offset:{POSN-4}')
    a('v_lshrrev_b32 v15, 2, v12')
    a('v_and_b32 v17, 3, v12')
    a('v_cmp_ne_u32 vcc, 0, v17')
    a('s_mov_b32 vcc_hi, 0')
    a('v_mul_u32_u24 v15, 3, v15')
    a('v_add_lshl_u32 v15, v15, v17, 1')
    a(f'v_add_u32 v15, {G.N*256 - 2}, v15')
    a(f's_mul_i32 s13, s2, {G.NPB*6}')
    a(f's_mov_b32 s12, {G.NLN2}')
    a('s_waitcnt lgkmcnt(0)')
    a('s_nop 1')
    a(f'v_fma_f32 v16, s12, v{ZA}, v16')
    a('v_cvt_pk_bf16_f32 v16, v16, v16')
    a('s_and_saveexec_b64 s[80:81], vcc')
    a('s_cbranch_execz K2_FIN')
    a('buffer_store_short v16, v15, s[68:71], s13 offen')
    a.label('K2_FIN')
    a('s_mov_b64 exec, -1')
    stamp(a, SV, 12)
    if STAMP: a('s_waitcnt vmcnt(0)')
    stamp(a, SV, 13); stamp(a, SV, 14, True)
    if STAMP:
        a('v_lshlrev_b32 v125, 2, v0')
        a.srd(40, 36, 2 << 20, 0x1100000)
        a('s_lshl_b32 s38, s2, 12')
        a(f'buffer_store_dword v{SV}, v125, s[40:43], s38 offen')
    a.label('K2_END')
    a('s_endpgm')
    a.raw(G.kd(name, NV))
```

```python
import sys, os
from asmlib import Asm, vr, sr, stamp, stamp_flush, STAMP

N = 10000; E = 160000; D = 128
NCH = 64; CH = E // NCH
NPB = 40; NB = N // NPB
CELLW = 32
WS_B = 0
WS_W = 0x280000
WS_POSF = 0x2A0000
WS_OVC = 0x2D0000
WS_CELL = 0x300000
CELL_BYTES = NB * NCH * CELLW * 4
WS_OVF = 0x500000
OVF_BYTES = E * 8
GN = 128
N_GEMM = (N + GN - 1) // GN
N_TR = 12
K1_GRID = NCH + N_GEMM + N_TR
K1_LDS = 98304 + 64
NLOG2E = 0xbfb8aa3b
NLN2 = 0xbf317218

HEADER = open('standalone__cheap_equivariant_egnn__graph.s.ref').read().split('; Override')[0]

def kd(name, vgpr, sgpr=102):
    acc = (vgpr + 3) // 4 * 4
    return f'''.section .rodata,"a"
.p2align 6
.amdhsa_kernel {name}
  .amdhsa_next_free_vgpr {vgpr}
  .amdhsa_next_free_sgpr {sgpr}
  .amdhsa_accum_offset {acc}
  .amdhsa_group_segment_fixed_size 0
  .amdhsa_kernarg_size 88
  .amdhsa_user_sgpr_count 2
  .amdhsa_user_sgpr_kernarg_segment_ptr 1
  .amdhsa_system_sgpr_workgroup_id_x 1
.end_amdhsa_kernel
.text
'''

def kernel_head(a, name):
    a.raw(f'.globl {name}')
    a.raw('.p2align 8')
    a.raw(f'.type {name},@function')
    a.label(name)

def load_kernargs(a):
    a('s_load_dwordx16 s[16:31], s[0:1], 0')
    a('s_load_dwordx4 s[32:35], s[0:1], 64')
    a('s_load_dwordx2 s[36:37], s[0:1], 80')

SC = os.environ.get('SC', '')

def gen_k1(a):
    name = 'egnn_prep_kernel'
    SV = 126
    kernel_head(a, name)
    a(f's_cmp_ge_u32 s2, {K1_GRID}')
    a('s_cbranch_scc1 K1_END')
    stamp(a, SV, 7, True); stamp(a, SV, 8)
    load_kernargs(a)
    a(f's_cmp_lt_u32 s2, {NCH}')
    a('s_cbranch_scc1 K1_BIN')
    a(f's_cmp_lt_u32 s2, {NCH + N_GEMM}')
    a('s_cbranch_scc1 K1_GEMM')
    a('s_branch K1_TR')
    def endstamps():
        stamp(a, SV, 4)
        if STAMP: a('s_waitcnt vmcnt(0)')
        stamp(a, SV, 5); stamp(a, SV, 6, True)
        if STAMP:
            a('v_lshlrev_b32 v125, 2, v0')
            a.srd(40, 36, 1 << 20, 0x1000000)
            a('s_mov_b64 exec, -1')
            a('s_lshl_b32 s38, s2, 11')
            a(f'buffer_store_dword v{SV}, v125, s[40:43], s38 offen')

    a.label('K1_BIN')
    a('v_mov_b32 v4, -1'); a('v_mov_b32 v5, -1'); a('v_mov_b32 v6, -1')
    a('v_and_b32 v7, 7, v0')
    a('v_cmp_eq_u32 vcc, 7, v7')
    a('v_lshlrev_b32 v3, 4, v0')
    a('v_lshlrev_b32 v1, 2, v0')
    a('v_cndmask_b32 v7, -1, 0, vcc')
    for k in range(4):
        a(f'ds_write_b128 v3, v[4:7] offset:{k*8192}')
    a('v_mov_b32 v8, 0')
    a('v_mov_b32 v9, 32768')
    a('ds_write_b32 v9, v8')
    a(f's_mul_i32 s60, s2, {CH*4}')
    a('s_add_u32 s61, s60, 4096')
    a('s_add_u32 s62, s60, 8192')
    a('s_waitcnt lgkmcnt(0)')
    stamp(a, SV, 0, True); stamp(a, SV, 1)
    a.srd(40, 24, E*4)
    a.srd(44, 22, E*4)
    a.srd(52, 36, CELL_BYTES, WS_CELL)
    a.srd(56, 36, OVF_BYTES, WS_OVF)
    a.srd(64, 36, NCH*4, WS_OVC)
    TAIL = CH - 2048
    for j in range(5):
        a(f'buffer_load_dword v{10+j}, v1, s[40:43], s{60 + j//2} offen offset:{(j%2)*2048}')
    for j in range(5):
        a(f'buffer_load_dword v{15+j}, v1, s[44:47], s{60 + j//2} offen offset:{(j%2)*2048}')
    a('s_barrier')
    a('s_mov_b32 s63, 52429')
    a(f'v_cmp_gt_u32 vcc, {TAIL}, v0')
    a('s_mov_b64 s[68:69], vcc')
    a('v_mov_b32 v6, 1')
    for j in range(5):
        a(f's_waitcnt vmcnt({9-j})')
        a(f'v_mul_u32_u24 v{25+j}, s63, v{10+j}')
        a(f'v_lshrrev_b32 v{25+j}, 21, v{25+j}')
        a(f'v_mul_u32_u24 v7, 40, v{25+j}')
        a(f'v_sub_u32 v{10+j}, v{10+j}, v7')
        a(f'v_lshlrev_b32 v{30+j}, 7, v{25+j}')
        if j == 4:
            a('s_mov_b64 exec, s[68:69]')
        a(f'ds_add_rtn_u32 v{35+j}, v{30+j}, v6 offset:124')
        if j == 4:
            a('s_mov_b64 exec, -1')
    for j in range(5):
        a(f'v_mul_u32_u24 v7, 13, v{10+j}')
        a('v_lshrrev_b32 v7, 6, v7')
        a('v_mul_u32_u24 v8, 5, v7')
        a(f'v_sub_u32 v8, v{10+j}, v8')
        a('v_lshl_or_b32 v8, v7, 3, v8')
        a(f'v_add_u32 v7, {512*j}, v0')
        a('v_lshl_or_b32 v8, v8, 12, v7')
        a(f's_waitcnt vmcnt({4-j})')
        a(f'v_lshl_or_b32 v{40+j}, v{15+j}, 18, v8')
    for j in range(5):
        a(f's_waitcnt lgkmcnt({4-j})')
        a(f'v_cmp_gt_u32 vcc, 31, v{35+j}')
        if j == 4:
            a('s_and_b64 vcc, vcc, s[68:69]')
        a(f'v_lshl_add_u32 v7, v{35+j}, 2, v{30+j}')
        a('s_mov_b64 exec, vcc')
        a(f'ds_write_b32 v7, v{40+j}')
        if j == 4:
            a('s_andn2_b64 exec, s[68:69], vcc')
        else:
            a('s_not_b64 exec, vcc')
        lab = a.newlabel('K1_NOV')
        a(f's_cbranch_execz {lab}')
        a('v_mov_b32 v9, 32768')
        a('ds_add_rtn_u32 v8, v9, v6')
        a(f's_mul_i32 s72, s2, {CH*8}')
        a(f'v_mov_b32 v46, v{40+j}')
        a(f'v_mov_b32 v47, v{25+j}')
        a('s_waitcnt lgkmcnt(0)')
        a('v_lshlrev_b32 v8, 3, v8')
        a('buffer_store_dwordx2 v[46:47], v8, s[56:59], s72 offen')
        a('s_nop 1')
        a.label(lab)
        a('s_mov_b64 exec, -1')
    a('s_waitcnt lgkmcnt(0)')
    stamp(a, SV, 2)
    a('s_barrier')
    for k in range(4):
        a(f'ds_read_b128 v[{48+4*k}:{51+4*k}], v3 offset:{k*8192}')
    a('v_mov_b32 v9, 32768')
    a('ds_read_b32 v8, v9')
    a('v_lshrrev_b32 v9, 3, v0')
    a('v_lshlrev_b32 v9, 13, v9')
    a('v_and_b32 v7, 127, v3')
    a('v_add_u32 v9, v9, v7')
    a('s_lshl_b32 s73, s2, 7')
    LASTV = (NB*128 - 3*8192)//16
    for k in range(4):
        a(f's_waitcnt lgkmcnt({4-k})')
        if k == 3:
            a(f'v_cmp_gt_u32 vcc, {LASTV}, v0')
            a('s_and_saveexec_b64 s[70:71], vcc')
            a('s_cbranch_execz K1_BIN_SK')
        a(f'buffer_store_dwordx4 v[{48+4*k}:{51+4*k}], v9, s[52:55], s73 offen{SC}')
        a(f's_add_u32 s73, s73, {64*8192}')
    a.label('K1_BIN_SK')
    a('s_mov_b64 exec, s[70:71]')
    a('s_waitcnt lgkmcnt(0)')
    a('v_cmp_eq_u32 vcc, 0, v0')
    a('s_and_saveexec_b64 s[70:71], vcc')
    a('s_cbranch_execz K1_BIN_SK2')
    a('s_lshl_b32 s73, s2, 2')
    a('v_mov_b32 v9, 0')
    a(f'buffer_store_dword v8, v9, s[64:67], s73 offen{SC}')
    a.label('K1_BIN_SK2')
    a('s_mov_b64 exec, s[70:71]')
    endstamps()
    a('s_endpgm')

    a.label('K1_GEMM')
    W2S = 0; HT = 32768; OT = 65536
    a(f's_sub_u32 s3, s2, {NCH}')
    a('v_and_b32 v1, 63, v0')
    a('v_lshrrev_b32 v2, 6, v0')
    a('v_lshrrev_b32 v3, 4, v1')
    a('v_readfirstlane_b32 s4, v2')
    a('v_and_b32 v4, 15, v1')
    a('v_lshlrev_b32 v5, 2, v3')
    a('v_xor_b32 v5, v5, v4')
    a('v_lshlrev_b32 v5, 4, v5')
    a('v_lshl_add_u32 v5, v3, 8, v5')
    a('v_xor_b32 v6, v3, v4')
    a('v_lshlrev_b32 v6, 4, v6')
    a('v_lshl_add_u32 v6, v3, 8, v6')
    a('s_waitcnt lgkmcnt(0)')
    stamp(a, SV, 0, True); stamp(a, SV, 1)
    a.srd(44, 16, N*256)
    a.srd(40, 26, 258*256)
    a.srd(48, 36, N*256, WS_B)
    a('s_lshl_b32 s5, s4, 12')
    a(f's_mul_i32 s8, s3, {GN*256}')
    a('s_add_u32 s9, s8, s5')
    for i in range(4):
        a(f's_add_u32 m0, s5, {HT + i*1024}')
        if i: a(f'v_xor_b32 v7, {64*i}, v6')
        else: a('s_nop 0')
        a(f'buffer_load_dwordx4 v{7 if i else 6}, s[44:47], s9 offen offset:0 lds')
        a('s_add_u32 s9, s9, 1024')
    a('s_add_u32 s6, s5, 32768')
    for i in range(4):
        a(f's_add_u32 m0, s5, {W2S + i*1024}')
        a('s_nop 0')
        a('buffer_load_dwordx4 v5, s[40:43], s6 offen lds')
        a('s_add_u32 s6, s6, 1024')
    a.srd(52, 18, N*6)
    a.srd(56, 36, N*16, WS_POSF)
    a('v_mul_u32_u24 v13, 6, v0')
    a(f's_mul_i32 s11, s3, {GN*6}')
    a('s_cmp_ge_u32 s4, 2')
    a('s_cbranch_scc1 K1_NOPOS')
    a('buffer_load_short_d16_hi v14, v13, s[52:55], s11 offen')
    a('buffer_load_short_d16_hi v15, v13, s[52:55], s11 offen offset:2')
    a('buffer_load_short_d16_hi v16, v13, s[52:55], s11 offen offset:4')
    a('v_mov_b32 v17, 0')
    a('v_lshlrev_b32 v13, 4, v0')
    a(f's_mul_i32 s11, s3, {GN*16}')
    a('s_waitcnt vmcnt(0)')
    a(f'buffer_store_dwordx4 v[14:17], v13, s[56:59], s11 offen{SC}')
    a.label('K1_NOPOS')
    a('s_and_b32 s12, s4, 3')
    a('s_lshr_b32 s13, s4, 2')
    a('v_and_b32 v4, 31, v1')
    a('v_lshrrev_b32 v5, 5, v1')
    a('v_and_b32 v7, 15, v1')
    a('v_lshrrev_b32 v8, 2, v7')
    a('v_and_b32 v9, 3, v7')
    a('v_lshl_add_u32 v10, v5, 3, v8')
    a('v_lshlrev_b32 v10, 8, v10')
    a('v_and_b32 v11, 1, v9')
    a('v_lshlrev_b32 v11, 5, v11')
    a('v_lshrrev_b32 v12, 1, v9')
    a('v_lshl_add_u32 v11, v12, 3, v11')
    a('v_bfe_u32 v12, v1, 4, 1')
    a('v_lshl_add_u32 v11, v12, 4, v11')
    a('v_xor_b32 v12, s12, v8')
    a('v_lshl_add_u32 v11, v12, 6, v11')
    a('v_add_u32 v10, v10, v11')
    a('v_and_b32 v11, 15, v4')
    a('v_xor_b32 v11, v11, v5')
    a('v_lshlrev_b32 v11, 4, v11')
    a('v_lshl_add_u32 v11, v4, 8, v11')
    a('s_lshl_b32 s14, s13, 14')
    a(f's_add_u32 s14, s14, {HT}')
    a('v_add_u32 v11, s14, v11')
    a('s_waitcnt vmcnt(0)')
    stamp(a, SV, 2)
    a('s_barrier')
    XB = 32
    HB = 64
    for s in range(8):
        a(f'ds_read_b64_tr_b16 {vr(XB+4*s,2)}, v10 offset:{s*4096}')
        a(f'ds_read_b64_tr_b16 {vr(XB+4*s+2,2)}, v10 offset:{s*4096+1024}')
    DB = 96
    DB = 88
    HB = 64
    def hread(s):
        b = HB + 8*(s % 3)
        if s: a(f'v_xor_b32 v12, {32*s}, v11')
        r = 12 if s else 11
        a(f'ds_read_b128 {vr(b,4)}, v{r}')
        a(f'ds_read_b128 {vr(b+4,4)}, v{r} offset:8192')
    hread(0); hread(1)
    for s in range(8):
        if s + 2 < 8: hread(s+2)
        rem = 2*min(2, 7-s)
        a(f's_waitcnt lgkmcnt({rem})')
        b = HB + 8*(s % 3)
        for nt in range(2):
            cin = '0' if s == 0 else vr(DB+16*nt, 16)
            a(f'v_mfma_f32_32x32x16_bf16 {vr(DB+16*nt,16)}, {vr(XB+4*s,4)}, {vr(b+4*nt,4)}, {cin}')
    stamp(a, SV, 3)
    a('v_and_b32 v12, 15, v4')
    a('v_lshlrev_b32 v13, 1, v5')
    a('s_lshl_b32 s15, s12, 2')
    a('v_add_u32 v13, s15, v13')
    a('v_xor_b32 v13, v13, v12')
    a('v_lshlrev_b32 v13, 4, v13')
    a('v_lshl_add_u32 v13, v4, 8, v13')
    a('s_lshl_b32 s14, s13, 14')
    a(f's_add_u32 s14, s14, {OT}')
    a('v_add_u32 v13, s14, v13')
    a('v_xor_b32 v14, 16, v13')
    a(f's_mov_b32 s15, {NLOG2E}')
    a('s_nop 4')
    for nt in range(2):
        if nt == 1: a('s_nop 3')
        for j in range(16):
            a(f'v_mul_f32 v{DB+16*nt+j}, s15, v{DB+16*nt+j}')
        for p in range(8):
            a(f'v_cvt_pk_bf16_f32 v{XB+8*nt+p}, v{DB+16*nt+2*p}, v{DB+16*nt+2*p+1}')
        a(f'ds_write_b128 v13, {vr(XB+8*nt,4)} offset:{nt*8192}')
        a(f'ds_write_b128 v14, {vr(XB+8*nt+4,4)} offset:{nt*8192}')
    a('s_waitcnt lgkmcnt(0)')
    a('s_barrier')
    a('v_lshlrev_b32 v12, 4, v1')
    a('s_lshl_b32 s14, s4, 12')
    a(f's_add_u32 s14, s14, {OT}')
    a('v_add_u32 v12, s14, v12')
    for i in range(4):
        a(f'ds_read_b128 {vr(XB+4*i,4)}, v12 offset:{i*1024}')
    a('s_add_u32 s9, s8, s5')
    for i in range(4):
        a(f's_waitcnt lgkmcnt({3-i})')
        if i: a(f'v_xor_b32 v7, {64*i}, v6')
        a(f'buffer_store_dwordx4 {vr(XB+4*i,4)}, v{7 if i else 6}, s[48:51], s9 offen{SC}')
        a('s_add_u32 s9, s9, 1024')
    endstamps()
    a('s_endpgm')

    a.label('K1_TR')
    a(f's_sub_u32 s3, s2, {NCH + N_GEMM}')
    a('s_lshr_b32 s4, s3, 2')
    a('s_and_b32 s5, s3, 3')
    a('v_and_b32 v1, 63, v0')
    a('v_lshrrev_b32 v2, 6, v0')
    a('v_and_b32 v3, 31, v1')
    a('v_lshrrev_b32 v4, 5, v1')
    a('v_bfe_u32 v7, v3, 2, 1')
    a('v_lshlrev_b32 v7, 4, v7')
    a('v_lshrrev_b32 v8, 3, v3')
    a('v_lshl_add_u32 v7, v8, 2, v7')
    a('v_and_b32 v8, 3, v3')
    a('v_add_u32 v3, v7, v8')
    a('v_lshlrev_b32 v5, 4, v2')
    a('v_lshl_add_u32 v5, v4, 3, v5')
    a('v_lshlrev_b32 v5, 8, v5')
    a('v_lshl_add_u32 v5, v3, 1, v5')
    a('s_waitcnt lgkmcnt(0)')
    stamp(a, SV, 0, True); stamp(a, SV, 1)
    a('s_cmp_eq_u32 s4, 0')
    a('s_cselect_b32 s40, s26, s30')
    a('s_cselect_b32 s41, s27, s31')
    a('s_mov_b32 s42, 65536')
    a('s_mov_b32 s43, 0x20000')
    a('s_cmp_eq_u32 s4, 2')
    a('s_cselect_b32 s6, 32768, 0')
    a.srd(44, 36, 3*32768, WS_W)
    a('s_lshl_b32 s7, s5, 6')
    a('s_add_u32 s6, s6, s7')
    for i in range(8):
        a(f'buffer_load_ushort v{16+i}, v5, s[40:43], s6 offen offset:{i*256}')
    a('v_lshlrev_b32 v6, 4, v0')
    a('s_lshl_b32 s9, s3, 13')
    a('s_waitcnt vmcnt(0)')
    for p in range(4):
        a(f'v_lshl_or_b32 v{8+p}, v{16+2*p+1}, 16, v{16+2*p}')
    a(f'buffer_store_dwordx4 v[8:11], v6, s[44:47], s9 offen{SC}')
    endstamps()
    a.label('K1_END')
    a('s_endpgm')
    a.raw(kd(name, 128))

def build(k2=True):
    a = Asm()
    hdr = HEADER
    hdr += f'; @launch kernel=egnn_prep_kernel grid=({K1_GRID},1,1) block=(512,1,1) lds={K1_LDS}\n'
    if k2:
        import gen3_k2
        hdr += f'; @launch kernel=egnn_edge_kernel grid=({NB},1,1) block=(1024,1,1) lds={gen3_k2.K2_LDS}\n'
    a.raw(hdr + '.amdgcn_target "amdgcn-amd-amdhsa--gfx950"\n.text')
    gen_k1(a)
    if k2:
        gen3_k2.gen_k2(a)
    return a.text()

if __name__ == '__main__':
    k2 = '--nok2' not in sys.argv
    out = sys.argv[1] if len(sys.argv) > 1 and not sys.argv[1].startswith('--') else 'full3.s'
    open(out, 'w').write(build(k2))
    print('wrote', out)
```

```python
from asmlib import Asm, vr, sr, stamp, stamp_flush, STAMP
import gen3 as G
import os

X2 = 0; X2T = 1280
X1 = 40960
RAW = 57344
POSD = 61440
POSN = 62464
CNT = 63104
WX = 63168
HS = 63488; RS = 272
AR = 74368
RING = 87040
K2_LDS = RING + 65536
TM = X2
TP = X2 + 40*RS; TS = 328
CAP = 128

V_CB = 2; V_X1B = 3; V_X2B = 4; V_RAWB = 5; V_GOFF = 6; R0 = 7; R1 = 8; PEND = 9; V_EB = 1
Y1 = 20; X1R = 28; X2R = 32; MP = 40; EE = 48; DA = 52
D0 = 56; D1 = 72; ACC = 88
SV = 126
NV = 128
PS = (20, 24); EA = (28, 29); RK = (30, 31); PD = (32, 36)

BAL = os.environ.get('BAL', '0') == '1'
EXP = os.environ.get('EXP', '')

def gen_k2(a):
    name = 'egnn_edge_kernel'
    G.kernel_head(a, name)
    a(f's_cmp_ge_u32 s2, {G.NB}')
    a('s_cbranch_scc1 K2_END')
    stamp(a, SV, 20, True); stamp(a, SV, 21)
    G.load_kernargs(a)
    a('v_lshrrev_b32 v11, 6, v0')
    a('v_and_b32 v10, 63, v0')
    a('v_readfirstlane_b32 s4, v11')
    a('v_mov_b32 v12, 0'); a('v_mov_b32 v13, 0'); a('v_mov_b32 v14, 0'); a('v_mov_b32 v15, 0')
    def zero_lds(first):
        a('v_lshlrev_b32 v11, 4, v0')
        a(f'v_add_u32 v11, {X2}, v11')
        for i in range(3):
            a(f'ds_write_b128 v11, v[12:15] offset:{i*16384}')
        lab = a.newlabel('K2_Z')
        a('s_cmp_ge_u32 s4, 12')
        a(f's_cbranch_scc1 {lab}')
        a(f'ds_write_b128 v11, v[12:15] offset:{3*16384}')
        a.label(lab)
        lab = a.newlabel('K2_Z')
        a('s_cmp_lg_u32 s4, 15')
        a(f's_cbranch_scc1 {lab}')
        a('v_lshlrev_b32 v11, 4, v10')
        a(f'v_add_u32 v16, {CNT}, v11')
        a(f's_mov_b64 exec, {0xf if first else 0x7}')
        a('ds_write_b128 v16, v[12:15]')
        if first:
            a('s_mov_b64 exec, 0x1ffff')
            a(f'v_add_u32 v16, {AR + 44*RS}, v11')
            a('ds_write_b128 v16, v[12:15]')
        a('s_mov_b64 exec, -1')
        a.label(lab)
    zero_lds(True)
    a('s_and_b32 s5, s4, 3')
    a('s_lshr_b32 s6, s5, 1')
    a('s_and_b32 s5, s5, 1')
    a('s_lshr_b32 s7, s4, 2')
    a('s_lshl_b32 s7, s7, 1')
    a('s_add_u32 s7, s7, s5')
    a('s_waitcnt lgkmcnt(0)')
    stamp(a, SV, 0, True); stamp(a, SV, 1)
    a.srd(40, 36, G.CELL_BYTES, G.WS_CELL)
    a('v_lshrrev_b32 v11, 4, v0')
    a('v_and_b32 v16, 15, v0')
    a('v_lshlrev_b32 v17, 7, v11')
    a('v_lshl_add_u32 v17, v16, 2, v17')
    a('s_lshl_b32 s8, s2, 13')
    a(f'buffer_load_dword v{R0}, v17, s[40:43], s8 offen')
    a(f'buffer_load_dword v{R1}, v17, s[40:43], s8 offen offset:64')
    a.srd(52, 16, G.N*256)
    a(f'v_mul_u32_u24 v{V_EB}, {G.CH}, v11')
    a('v_and_b32 v17, 15, v10')
    a('v_lshlrev_b32 v17, 4, v17')
    a(f's_mul_i32 s9, s2, {G.NPB*256}')
    a('s_mov_b64 exec, 0xffff')
    for i in range(3):
        a(f's_add_u32 s10, s4, {16*i}')
        if i == 2: a('s_min_u32 s10, s10, 39')
        a(f's_mul_i32 s11, s10, {RS}')
        a(f's_add_u32 m0, s11, {HS}')
        a('s_lshl_b32 s10, s10, 8')
        a('s_add_u32 s10, s10, s9')
        a('buffer_load_dwordx4 v17, s[52:55], s10 offen lds')
    a('s_mov_b64 exec, -1')
    a.srd(60, 36, G.N*16, G.WS_POSF)
    a.srd(56, 36, 3*32768, G.WS_W)
    a.srd(48, 36, G.N*256, G.WS_B)
    a.srd(64, 20, G.E*2)
    a.srd(68, 32, G.N*256 + G.N*6)
    a('s_cmp_lt_u32 s4, 4')
    a('s_cbranch_scc1 K2_J_W1')
    a('s_cmp_lt_u32 s4, 6')
    a('s_cbranch_scc1 K2_J_WDE')
    a('s_cmp_eq_u32 s4, 7')
    a('s_cbranch_scc1 K2_J_POSD')
    a('s_cmp_eq_u32 s4, 8')
    a('s_cbranch_scc1 K2_J_POSN')
    a('s_cmp_eq_u32 s4, 9')
    a('s_cbranch_scc1 K2_J_WX')
    a('s_branch K2_J_DONE')
    a.label('K2_J_W1')
    a('v_lshlrev_b32 v17, 4, v10')
    a('s_lshl_b32 s10, s4, 13')
    a('s_add_u32 s11, s10, 4096')
    for s in range(8):
        a(f'buffer_load_dwordx4 {vr(ACC+4*s,4)}, v17, s[56:59], s{10 + s//4} offen offset:{(s%4)*1024}')
    a('s_waitcnt vmcnt(8)')
    a('s_branch K2_J_END')
    a.label('K2_J_WDE')
    a.srd(72, 26, 258*256)
    a('v_subrev_u32 v17, 256, v0')
    a('v_lshlrev_b32 v17, 1, v17')
    a('s_mov_b32 s10, 65536')
    a('buffer_load_short_d16_hi v18, v17, s[72:75], s10 offen')
    a('buffer_load_short_d16_hi v19, v17, s[72:75], s10 offen offset:256')
    a(f's_mov_b32 s11, {G.NLOG2E}')
    a(f'v_add_u32 v17, {AR + 40*RS}, v17')
    a('s_waitcnt vmcnt(0)')
    a('v_mul_f32 v18, s11, v18')
    a('v_mul_f32 v19, s11, v19')
    a('v_cvt_pk_bf16_f32 v20, v18, v19')
    a('v_lshlrev_b32 v21, 16, v20')
    a('v_and_b32 v22, 0xffff0000, v20')
    a('v_sub_f32 v21, v18, v21')
    a('v_sub_f32 v22, v19, v22')
    a('v_cvt_pk_bf16_f32 v21, v21, v22')
    a('ds_write_b16 v17, v20')
    a(f'ds_write_b16_d16_hi v17, v20 offset:{RS}')
    a(f'ds_write_b16 v17, v21 offset:{2*RS}')
    a(f'ds_write_b16_d16_hi v17, v21 offset:{3*RS}')
    a('s_branch K2_J_DONE')
    a.label('K2_J_POSD')
    a('v_lshrrev_b32 v17, 3, v10')
    a('v_mul_u32_u24 v17, 5, v17')
    a('v_and_b32 v18, 7, v10')
    a('v_min_u32 v18, 4, v18')
    a('v_add_lshl_u32 v17, v17, v18, 4')
    a(f's_mul_i32 s10, s2, {G.NPB*16}')
    a(f's_mov_b32 m0, {POSD}')
    a('s_nop 0')
    a('buffer_load_dwordx4 v17, s[60:63], s10 offen lds')
    a('s_branch K2_J_DONE')
    a.label('K2_J_POSN')
    a('v_lshlrev_b32 v17, 4, v10')
    a(f's_mul_i32 s10, s2, {G.NPB*16}')
    a(f's_mov_b32 m0, {POSN}')
    a('s_mov_b32 exec_lo, -1')
    a('s_mov_b32 exec_hi, 0xff')
    a('buffer_load_dwordx4 v17, s[60:63], s10 offen lds')
    a('s_mov_b64 exec, -1')
    a('s_branch K2_J_DONE')
    a.label('K2_J_WX')
    a.srd(72, 28, 256)
    a('v_lshlrev_b32 v17, 4, v10')
    a(f's_mov_b32 m0, {WX}')
    a('s_mov_b64 exec, 0xffff')
    a('buffer_load_dwordx4 v17, s[72:75], 0 offen lds')
    a('s_mov_b64 exec, -1')
    a.label('K2_J_DONE')
    a('s_waitcnt vmcnt(0)')
    a.label('K2_J_END')
    stamp(a, SV, 2)
    a('v_and_b32 v16, 15, v0')
    a(f'v_cmp_ne_u32 vcc, -1, v{R0}')
    a('v_cmp_ne_u32 s[80:81], 15, v16')
    a(f'v_cmp_ne_u32 s[82:83], -1, v{R1}')
    a(f'v_cndmask_b32 v{PEND}, 0, 1, vcc')
    a('s_and_b64 s[82:83], s[82:83], s[80:81]')
    a('v_cmp_lt_u32 vcc, 31, v%d' % R1)
    a('v_cndmask_b32 v17, 0, 2, s[82:83]')
    a('s_andn2_b64 vcc, vcc, s[80:81]')
    a(f'v_or_b32 v{PEND}, v{PEND}, v17')
    a(f'v_cndmask_b32 v{R1}, -1, v{R1}, s[80:81]')
    a('s_mov_b32 s76, 1')
    a('s_mov_b32 s77, 0xffff')
    a('s_waitcnt lgkmcnt(0)')
    a('s_barrier')
    stamp(a, SV, 3)
    lab = a.newlabel('K2_NOOV')
    a('s_and_saveexec_b64 s[80:81], vcc')
    a(f's_cbranch_execz {lab}')
    a('v_lshrrev_b32 v17, 4, v0')
    a('v_and_b32 v18, 31, v17')
    a('v_lshlrev_b32 v18, 1, v12' if False else 'v_mov_b32 v19, 1')
    a('v_lshlrev_b32 v18, v18, v19')
    a('v_lshrrev_b32 v17, 5, v17')
    a('v_lshlrev_b32 v17, 2, v17')
    a(f'v_add_u32 v17, {CNT+48}, v17')
    a('ds_or_b32 v17, v18')
    a.label(lab)
    a('s_mov_b64 exec, s[80:81]')

    a.label('K2_ROUND')
    a('v_and_b32 v10, 63, v0')
    RR = (R0, R1)
    for j in range(2):
        a(f'v_lshrrev_b32 v11, 14, v{RR[j]}')
        a('v_and_b32 v11, -16, v11')
        a(f'buffer_load_dwordx4 {vr(PS[j],4)}, v11, s[60:63], 0 offen')
        a(f'v_and_b32 v16, 0xfff, v{RR[j]}')
        a(f'v_add_lshl_u32 v16, v16, v{V_EB}, 1')
        a(f'buffer_load_short_d16_hi v{EA[j]}, v16, s[64:67], 0 offen')
    a('v_mov_b32 v19, 1')
    for j in range(2):
        a(f'v_and_b32 v11, {1<<j}, v{PEND}')
        a(f'v_cmp_ne_u32 s[{80+2*j}:{81+2*j}], 0, v11')
        a(f'v_bfe_u32 v{16+j}, v{RR[j]}, 15, 3')
        a(f'v_lshlrev_b32 v11, 2, v{16+j}')
        lab = a.newlabel('K2_SA')
        a(f's_mov_b64 exec, s[{80+2*j}:{81+2*j}]')
        a(f's_cbranch_execz {lab}')
        a(f'ds_add_rtn_u32 v{RK[j]}, v11, v19 offset:{CNT}')
        a(f'v_bfe_u32 v11, v{RR[j]}, 12, 6')
        a('v_lshlrev_b32 v11, 4, v11')
        a(f'ds_read_b128 {vr(PD[j],4)}, v11 offset:{POSD}')
        a.label(lab)
        a('s_mov_b64 exec, -1')
    a('v_and_b32 v11, 31, v10')
    a('v_lshrrev_b32 v18, 5, v10')
    a('s_lshl_b32 s8, s4, 12')
    a(f's_add_u32 s8, s8, {RING}')
    a('v_lshlrev_b32 v12, 9, v18')
    a('v_lshl_add_u32 v12, v11, 1, v12')
    a(f'v_add_u32 v{V_CB}, s8, v12')
    a('s_lshl_b32 s8, s7, 11')
    a(f's_add_u32 s8, s8, {X1}')
    a('v_lshlrev_b32 v12, 4, v11')
    a(f'v_add_u32 v{V_X1B}, s8, v12')
    a(f's_mul_i32 s8, s7, {4*X2T}')
    a(f's_add_u32 s8, s8, {X2}')
    a('v_min_u32 v12, 19, v11')
    a('v_lshlrev_b32 v12, 4, v12')
    a('v_mul_u32_u24 v13, 320, v18')
    a(f'v_add3_u32 v{V_X2B}, s8, v12, v13')
    a('s_lshl_b32 s8, s7, 9')
    a(f's_add_u32 s8, s8, {RAW}')
    a('v_lshrrev_b32 v12, 3, v10')
    a('v_lshlrev_b32 v12, 2, v12')
    a(f'v_add_u32 v{V_RAWB}, s8, v12')
    a('s_lshl_b32 s8, s6, 7')
    a('v_and_b32 v12, 7, v10')
    a('v_lshlrev_b32 v12, 4, v12')
    a(f'v_add_u32 v{V_GOFF}, s8, v12')
    a('s_waitcnt lgkmcnt(0)')
    for j in range(2):
        lab = a.newlabel('K2_SP')
        a(f's_mov_b64 exec, s[{80+2*j}:{81+2*j}]')
        a(f's_cbranch_execz {lab}')
        a(f'v_cmp_gt_u32 vcc, {CAP}, v{RK[j]}')
        a(f's_and_b64 s[{80+2*j}:{81+2*j}], s[{80+2*j}:{81+2*j}], vcc')
        a(f's_mov_b64 exec, s[{80+2*j}:{81+2*j}]')
        a(f'v_lshl_add_u32 v{RK[j]}, v{16+j}, 7, v{RK[j]}')
        a(f'v_lshrrev_b32 v11, 10, v{RR[j]}')
        a('v_and_b32 v11, 0xffffff00, v11')
        a(f'v_lshlrev_b32 v12, 2, v{RK[j]}')
        a(f'ds_write_b32 v12, v11 offset:{RAW}')
        a(f'v_xor_b32 v{PEND}, {1<<j}, v{PEND}')
        a.label(lab)
        a('s_mov_b64 exec, -1')
    a('s_waitcnt lgkmcnt(0)')
    a('s_barrier')
    stamp(a, SV, 4)
    a('s_lshl_b32 s8, s7, 2')
    a('v_mov_b32 v11, s8')
    a(f'ds_read_b32 v11, v11 offset:{CNT}')
    for i in range(4):
        a(f'ds_read_b32 v{DA+i}, v{V_RAWB} offset:{32*i}')
    a('s_lshl_b32 s9, s4, 12')
    a(f's_add_u32 s9, s9, {RING}')
    a('s_waitcnt lgkmcnt(0)')
    a('v_readfirstlane_b32 s8, v11')
    for i in range(4):
        a(f'v_add_u32 v{DA+i}, v{DA+i}, v{V_GOFF}')
    a(f's_min_u32 s8, s8, {CAP}')
    a('s_waitcnt vmcnt(4)')
    for i in range(4):
        a(f's_add_u32 m0, s9, {i*1024}')
        a('s_nop 0')
        a(f'buffer_load_dwordx4 v{DA+i}, s[48:51], 0 offen lds')
    stamp(a, SV, 5)
    a('s_cmp_eq_u32 s76, 0')
    a('s_cbranch_scc1 K2_SKIPA')
    a('s_cmp_ge_u32 s4, 4')
    a('s_cbranch_scc1 K2_SKIPA')
    a('v_and_b32 v11, 31, v10')
    a('v_lshrrev_b32 v18, 5, v10')
    a(f'v_mul_u32_u24 v12, {RS}, v11')
    a('v_lshl_add_u32 v12, v18, 4, v12')
    a(f'v_add_u32 v12, {HS}, v12')
    a('v_add_u32 v13, 32, v11')
    a('v_min_u32 v13, 39, v13')
    a(f'v_mul_u32_u24 v13, {RS}, v13')
    a('v_lshl_add_u32 v13, v18, 4, v13')
    a(f'v_add_u32 v13, {HS}, v13')
    HB = 40
    def hread(s):
        b = HB + 8*(s % 2)
        a(f'ds_read_b128 {vr(b,4)}, v12 offset:{32*s}')
        a(f'ds_read_b128 {vr(b+4,4)}, v13 offset:{32*s}')
    hread(0)
    for s in range(8):
        if s + 1 < 8: hread(s+1)
        a(f's_waitcnt lgkmcnt({2 if s < 7 else 0})')
        b = HB + 8*(s % 2)
        for nt in range(2):
            acc = vr(D0+16*nt, 16)
            a(f'v_mfma_f32_32x32x16_bf16 {acc}, {vr(ACC+4*s,4)}, {vr(b+4*nt,4)}, {"0" if s == 0 else acc}')
    a(f'v_mul_u32_u24 v12, {RS}, v11')
    a('v_lshl_add_u32 v12, v18, 5, v12')
    a('s_lshl_b32 s10, s4, 6')
    a(f's_add_u32 s10, s10, {AR}')
    a('v_add_u32 v12, s10, v12')
    a(f's_mov_b32 s10, {G.NLOG2E}')
    a('s_nop 7')
    for nt in range(2):
        for j in range(16):
            a(f'v_mul_f32 v{D0+16*nt+j}, s10, v{D0+16*nt+j}')
        for p in range(8):
            a(f'v_cvt_pk_bf16_f32 v{HB+p}, v{D0+16*nt+2*p}, v{D0+16*nt+2*p+1}')
        if nt == 1:
            a('s_mov_b32 exec_lo, 0xff')
            a('s_mov_b32 exec_hi, 0xff')
        a(f'ds_write_b128 v12, {vr(HB,4)} offset:{nt*32*RS}')
        a(f'ds_write_b128 v12, {vr(HB+4,4)} offset:{nt*32*RS+16}')
        a('s_mov_b64 exec, -1')
        a('s_nop 1')
    a.label('K2_SKIPA')
    stamp(a, SV, 6)
    a('s_waitcnt vmcnt(4) lgkmcnt(0)')
    stamp(a, SV, 7)
    for j in range(2):
        lab = a.newlabel('K2_XB')
        ps = PS[j]; pd = PD[j]; ea = EA[j]; rk = RK[j]; rr = RR[j]
        a(f's_mov_b64 exec, s[{80+2*j}:{81+2*j}]')
        a(f's_cbranch_execz {lab}')
        a(f'v_pk_add_f32 {vr(pd,2)}, {vr(pd,2)}, {vr(ps,2)} neg_lo:[0,1] neg_hi:[0,1]')
        a(f'v_sub_f32 v{pd+2}, v{pd+2}, v{ps+2}')
        a(f'v_cvt_pk_bf16_f32 v40, v{pd}, v{pd+1}')
        a(f'v_cvt_pk_bf16_f32 v41, v{pd+2}, v{pd+2}')
        a('v_lshlrev_b32 v42, 16, v40')
        a('v_and_b32 v43, 0xffff0000, v40')
        a('v_lshlrev_b32 v44, 16, v41')
        a('v_pk_mul_f32 v[42:43], v[42:43], v[42:43]')
        a('v_mul_f32 v44, v44, v44')
        a('v_cvt_pk_bf16_f32 v42, v42, v43')
        a('v_cvt_pk_bf16_f32 v44, v44, v44')
        a('v_lshlrev_b32 v43, 16, v42')
        a('v_and_b32 v42, 0xffff0000, v42')
        a('v_lshlrev_b32 v44, 16, v44')
        a('v_add_f32 v42, v43, v42')
        a('v_add_f32 v42, v42, v44')
        a('v_cvt_pk_bf16_f32 v42, v42, v42')
        a(f'v_and_or_b32 v42, v42, s77, v{ea}')
        a(f'v_bfe_u32 v43, v{rr}, 12, 3')
        a(f'v_lshlrev_b32 v44, 4, v{rk}')
        a(f'ds_write_b32 v44, v42 offset:{X1}')
        a('v_lshl_add_u32 v44, v43, 1, v44')
        a('v_mov_b32 v45, 0x3f80')
        a(f'ds_write_b16 v44, v45 offset:{X1+4}')
        a(f'v_lshrrev_b32 v44, 5, v{rk}')
        a(f'v_mul_u32_u24 v44, {X2T}, v44')
        a(f'v_bfe_u32 v46, v{rk}, 4, 1')
        a(f'v_bfe_u32 v47, v{rk}, 2, 1')
        a('v_lshl_add_u32 v46, v46, 1, v47')
        a('v_mad_u32_u24 v44, v46, 320, v44' if False else 'v_mul_u32_u24 v46, 320, v46')
        a(f'v_and_b32 v47, 8, v{rk}')
        a('v_add3_u32 v44, v44, v46, v47')
        a(f'v_and_b32 v47, 3, v{rk}')
        a('v_lshl_add_u32 v44, v47, 1, v44')
        a('v_lshl_add_u32 v44, v43, 6, v44')
        a(f'ds_write_b16 v44, v45 offset:{X2}')
        a(f'ds_write_b16 v44, v40 offset:{X2+16}')
        a(f'ds_write_b16_d16_hi v44, v40 offset:{X2+32}')
        a(f'ds_write_b16 v44, v41 offset:{X2+48}')
        a.label(lab)
        a('s_mov_b64 exec, -1')
    a(f'v_cmp_ne_u32 vcc, 0, v{PEND}')
    a('s_cmp_eq_u64 vcc, 0')
    lab = a.newlabel('K2_NP')
    a(f's_cbranch_scc1 {lab}')
    a(f'v_mov_b32 v11, {CNT+32}')
    a('v_mov_b32 v12, 1')
    a('ds_write_b32 v11, v12')
    a.label(lab)
    a('s_waitcnt lgkmcnt(0)')
    a('s_barrier')
    stamp(a, SV, 8)
    a(f'v_mov_b32 v11, {CNT+32}')
    a('ds_read_b32 v16, v11')
    a('ds_read_b64 v[18:19], v11 offset:16')
    a('v_and_b32 v12, 15, v10')
    a('v_lshrrev_b32 v13, 2, v12')
    a('v_and_b32 v12, 3, v12')
    a('v_lshlrev_b32 v12, 3, v12')
    a('v_bfe_u32 v14, v10, 4, 1')
    a('v_lshl_add_u32 v12, v14, 5, v12')
    a('s_lshl_b32 s10, s6, 7')
    a(f's_add_u32 s10, s10, {AR}')
    a('v_add_u32 v12, s10, v12')
    a('s_mul_i32 s11, s7, 5')
    a('v_cmp_lt_u32 vcc, 31, v10')
    a('v_cmp_gt_u32 s[80:81], 2, v13')
    a('v_cmp_gt_u32 s[82:83], 3, v13')
    a('v_add_u32 v14, 40, v13')
    a('s_sub_u32 s12, s11, 2')
    a('v_add_u32 v15, s12, v13')
    a('v_cndmask_b32 v14, v15, v14, s[80:81]')
    a('v_add_u32 v15, 42, v13')
    a('v_cndmask_b32 v15, 44, v15, s[80:81]')
    a('v_cndmask_b32 v14, v14, v15, vcc')
    a(f'v_mul_u32_u24 v14, {RS}, v14')
    a('v_add_u32 v14, v14, v12')
    a('s_add_u32 s12, s11, 2')
    a('v_add_u32 v15, s12, v13')
    a('v_cndmask_b32 v15, 44, v15, s[82:83]')
    a('v_cndmask_b32 v15, v15, 44, vcc')
    a(f'v_mul_u32_u24 v15, {RS}, v15')
    a('v_add_u32 v15, v15, v12')
    for ct in range(2):
        a(f'ds_read_b64_tr_b16 {vr(Y1+4*ct,2)}, v14 offset:{64*ct}')
        a(f'ds_read_b64_tr_b16 {vr(Y1+4*ct+2,2)}, v15 offset:{64*ct}')
    a('s_cmp_eq_u32 s76, 0')
    a('s_cbranch_scc1 K2_SKIPY')
    for i in range(32):
        a(f'v_mov_b32 v{ACC+i}, 0')
    a('s_waitcnt lgkmcnt(0)')
    a('v_readfirstlane_b32 s90, v18')
    a('v_readfirstlane_b32 s91, v19')
    a('s_mov_b32 s92, 0')
    a.label('K2_SKIPY')
    for i in range(8):
        a(f'v_mov_b32 v{MP+i}, 0')
    a('s_waitcnt lgkmcnt(0)')
    a('v_readfirstlane_b32 s93, v16')

    a('s_cmp_eq_u32 s8, 0')
    a('s_cbranch_scc1 K2_LOOP_END')
    a('s_lshl_b32 s9, s4, 12')
    a(f's_add_u32 s9, s9, {RING}')
    a.label('K2_LOOP')
    a('s_add_u32 s10, s8, 7')
    a('s_lshr_b32 s10, s10, 3')
    a('s_min_u32 s10, s10, 4')
    a('s_sub_i32 s11, s8, 32')
    a('s_max_i32 s11, s11, 0')
    a('s_add_u32 s12, s11, 7')
    a('s_lshr_b32 s12, s12, 3')
    a('s_min_u32 s12, s12, 4')
    for i in range(4):
        a(f'ds_read_b32 v{DA+i}, v{V_RAWB} offset:{128 + 32*i}')
    a(f'ds_read_b128 {vr(X1R,4)}, v{V_X1B}')
    a('s_waitcnt vmcnt(0)')
    lc = a.newlabel('K2_CR')
    for q in range(4):
        if q > 0:
            a(f's_cmp_le_u32 s10, {q}')
            a(f's_cbranch_scc1 {lc}')
        for ct in range(2):
            for i in range(4):
                if 'nocr' not in EXP: a(f'ds_read_u16_d16_hi v{D0+16*ct+4*q+i}, v{V_CB} offset:{(8*q+i)*128 + 64*ct}')
    a.label(lc)
    a('s_waitcnt lgkmcnt(0)')
    for ct in range(2):
        d = vr(D0+16*ct, 16)
        a(f'v_mfma_f32_32x32x16_bf16 {d}, {vr(X1R,4)}, {vr(Y1+4*ct,4)}, {d}')
    a(f'ds_read_b128 {vr(X2R,4)}, v{V_X2B}')
    a(f'ds_read_b128 {vr(X2R+4,4)}, v{V_X2B} offset:640')
    ld = a.newlabel('K2_ND')
    for i in range(4):
        a(f's_cmp_le_u32 s12, {i}')
        a(f's_cbranch_scc1 {ld}')
        a(f'v_add_u32 v{DA+i}, v{DA+i}, v{V_GOFF}')
        a(f's_add_u32 m0, s9, {i*1024}')
        a('s_nop 0')
        if 'nodma' not in EXP: a(f'buffer_load_dwordx4 v{DA+i}, s[48:51], 0 offen lds')
    a.label(ld)
    a(f'v_add_u32 v{V_RAWB}, 128, v{V_RAWB}')
    a(f'v_add_u32 v{V_X1B}, 512, v{V_X1B}')
    a(f'v_add_u32 v{V_X2B}, {X2T}, v{V_X2B}')
    a('s_nop 4')
    for ct in range(2):
        lv = a.newlabel('K2_V')
        for q in range(4):
            if q > 0:
                a(f's_cmp_le_u32 s10, {q}')
                a(f's_cbranch_scc1 {lv}')
            d = D0+16*ct+4*q; e = EE
            for i in range(4):
                a(f'v_exp_f32 v{e+i}, v{d+i}')
            if 'nopk' in EXP:
                for i in range(4): a(f'v_add_f32 v{e+i}, 1.0, v{e+i}')
            else:
                a(f'v_pk_add_f32 {vr(e,2)}, {vr(e,2)}, 1.0 op_sel_hi:[1,0]')
                a(f'v_pk_add_f32 {vr(e+2,2)}, {vr(e+2,2)}, 1.0 op_sel_hi:[1,0]')
            for i in range(4):
                a(f'v_rcp_f32 v{e+i}, v{e+i}')
            if 'nopk' in EXP:
                for i in range(4): a(f'v_mul_f32 v{d+i}, v{d+i}, v{e+i}')
            else:
                a(f'v_pk_mul_f32 {vr(d,2)}, {vr(d,2)}, {vr(e,2)}')
                a(f'v_pk_mul_f32 {vr(d+2,2)}, {vr(d+2,2)}, {vr(e+2,2)}')
            a(f'v_cvt_pk_bf16_f32 v{MP+2*q}, v{d}, v{d+1}')
            a(f'v_cvt_pk_bf16_f32 v{MP+2*q+1}, v{d+2}, v{d+3}')
        a.label(lv)
        a('s_waitcnt lgkmcnt(0)')
        a('s_nop 0')
        acc = vr(ACC+16*ct, 16)
        a(f'v_mfma_f32_32x32x16_bf16 {acc}, {vr(X2R,4)}, {vr(MP,4)}, {acc}')
        lb = a.newlabel('K2_B')
        a('s_cmp_le_u32 s10, 2')
        a(f's_cbranch_scc1 {lb}')
        a(f'v_mfma_f32_32x32x16_bf16 {acc}, {vr(X2R+4,4)}, {vr(MP+4,4)}, {acc}')
        a.label(lb)
    a('s_mov_b32 s8, s11')
    a('s_cmp_gt_u32 s8, 0')
    a('s_cbranch_scc1 K2_LOOP')
    a.label('K2_LOOP_END')
    stamp(a, SV, 9)
    a('s_or_b32 s10, s90, s91')
    a('s_or_b32 s10, s10, s93')
    a('s_cmp_eq_u32 s10, 0')
    a('s_cbranch_scc1 K2_EPI')
    a('s_waitcnt vmcnt(0)')
    a('s_barrier')
    a('v_and_b32 v10, 63, v0')
    a('v_mov_b32 v12, 0'); a('v_mov_b32 v13, 0'); a('v_mov_b32 v14, 0'); a('v_mov_b32 v15, 0')
    zero_lds(False)
    a('s_mov_b32 s76, 0')
    a('s_cmp_lg_u32 s93, 0')
    a('s_cbranch_scc1 K2_NOREFILL')
    a('s_ff1_i32_b64 s94, s[90:91]')
    a.srd(44, 36, G.OVF_BYTES, G.WS_OVF)
    a.srd(72, 36, 256, G.WS_OVC)
    a('s_lshl_b32 s10, s94, 2')
    a('v_mov_b32 v16, s10')
    a('buffer_load_dword v17, v16, s[72:75], 0 offen')
    a(f's_mul_i32 s11, s94, {G.CH*8}')
    a('v_add_u32 v16, s92, v0')
    a('v_lshlrev_b32 v18, 3, v16')
    a('buffer_load_dwordx2 v[22:23], v18, s[44:47], s11 offen')
    a(f's_mul_i32 s11, s94, {G.CH}')
    a(f'v_mov_b32 v{V_EB}, s11')
    a('s_waitcnt vmcnt(0)')
    a('v_cmp_lt_u32 vcc, v16, v17')
    a('v_cmp_eq_u32 s[80:81], s2, v23')
    a('s_and_b64 vcc, vcc, s[80:81]')
    a('s_nop 1')
    a(f'v_cndmask_b32 v{R0}, -1, v22, vcc')
    a(f'v_cndmask_b32 v{PEND}, 0, 1, vcc')
    a(f'v_mov_b32 v{R1}, -1')
    a('v_readfirstlane_b32 s10, v17')
    a('s_add_u32 s92, s92, 1024')
    a('s_cmp_lt_u32 s92, s10')
    a('s_cbranch_scc1 K2_NOREFILL')
    a('s_bitset0_b64 s[90:91], s94')
    a('s_mov_b32 s92, 0')
    a.label('K2_NOREFILL')
    a('s_waitcnt lgkmcnt(0)')
    a('s_barrier')
    a('s_branch K2_ROUND')

    a.label('K2_EPI')
    a('v_and_b32 v10, 63, v0')
    a('s_cmp_ge_u32 s4, 8')
    a('s_cbranch_scc1 K2_E1')
    a('v_lshlrev_b32 v17, 4, v10')
    a('s_and_b32 s10, s4, 3')
    a('s_lshl_b32 s10, s10, 13')
    a('s_add_u32 s10, s10, 32768')
    a('s_add_u32 s11, s10, 4096')
    a('s_add_u32 s12, s10, 32768')
    a('s_add_u32 s13, s10, 36864')
    for s in range(8):
        a(f'buffer_load_dwordx4 {vr(56+4*s,4)}, v17, s[56:59], s{10 + s//4} offen offset:{(s%4)*1024}')
    for s in range(8):
        a(f'buffer_load_dwordx4 {vr(20+4*s,4)}, v17, s[56:59], s{12 + s//4} offen offset:{(s%4)*1024}')
    a.label('K2_E1')
    a('s_nop 7'); a('s_nop 3')
    for ct in range(2):
        for q in range(3):
            src = ACC + 16*ct + 4*q; dst = 88 + 6*ct + 2*q
            a(f'v_cvt_pk_bf16_f32 v{dst}, v{src}, v{src+1}')
            a(f'v_cvt_pk_bf16_f32 v{dst+1}, v{src+2}, v{src+3}')
    CP = 104
    a('v_and_b32 v11, 31, v10')
    a('v_lshrrev_b32 v18, 5, v10')
    a('s_cmp_ge_u32 s4, 8')
    a('s_cbranch_scc1 K2_E2')
    a('s_lshr_b32 s14, s4, 2')
    a('s_lshl_b32 s14, s14, 5')
    a('v_add_u32 v12, s14, v11')
    a('v_min_u32 v12, 39, v12')
    a(f'v_mul_u32_u24 v13, {RS}, v12')
    a('v_lshl_add_u32 v13, v18, 4, v13')
    a(f'v_add_u32 v14, {HS}, v13')
    for s in range(8):
        b = (52, 120)[s % 2]
        a(f'ds_read_b128 {vr(b,4)}, v14 offset:{32*s}')
        if s == 0: a('s_waitcnt vmcnt(8)')
        a('s_waitcnt lgkmcnt(0)')
        a(f'v_mfma_f32_32x32x16_bf16 {vr(CP,16)}, {vr(56+4*s,4)}, {vr(b,4)}, {"0" if s == 0 else vr(CP,16)}')
    a.label('K2_E2')
    stamp(a, SV, 10)
    a('s_barrier')
    a('s_lshl_b32 s10, s6, 6')
    a('v_add_u32 v12, s10, v11')
    a(f'v_mul_u32_u24 v13, {TS}, v12')
    a('s_mul_i32 s11, s7, 5')
    a('v_add_u32 v15, s11, v18')
    a('v_lshl_add_u32 v13, v15, 3, v13')
    a(f'v_add_u32 v13, {TP}, v13')
    a(f'v_mul_u32_u24 v15, {RS}, v15')
    a('v_lshl_add_u32 v15, v12, 1, v15')
    a(f'v_add_u32 v15, {TM}, v15')
    for ct in range(2):
        for q in range(3):
            r = 88 + 6*ct + 2*q
            if q == 2: a('s_mov_b32 exec_hi, 0')
            a(f'ds_write_b64 v13, {vr(r,2)} offset:{ct*32*TS + q*16}')
            a(f'ds_write_b16 v15, v{r} offset:{ct*64 + q*2*RS}')
            if q == 2: a('s_mov_b64 exec, -1')
    a('s_waitcnt lgkmcnt(0)')
    a('s_barrier')
    stamp(a, SV, 11)
    a('s_cmp_ge_u32 s4, 8')
    a('s_cbranch_scc1 K2_Z')
    a(f'v_add_u32 v14, {TM}, v13' if False else 's_nop 0')
    a('s_lshr_b32 s14, s4, 2')
    a('s_lshl_b32 s14, s14, 5')
    a('v_add_u32 v12, s14, v11')
    a('v_min_u32 v16, 39, v12')
    a(f'v_mul_u32_u24 v13, {RS}, v16')
    a('v_lshl_add_u32 v14, v18, 4, v13')
    a(f'v_add_u32 v14, {TM}, v14')
    DM = 56
    for s in range(8):
        a(f'ds_read_b128 {vr(72+4*(s%4),4)}, v14 offset:{32*s}')
        if s == 3 or s == 7:
            for t in range(4):
                ss = s - 3 + t
                a(f's_waitcnt lgkmcnt({3-t})')
                if ss == 0: a('s_waitcnt vmcnt(0)')
                a(f'v_mfma_f32_32x32x16_bf16 {vr(DM,16)}, {vr(20+4*ss,4)}, {vr(72+4*t,4)}, {"0" if ss == 0 else vr(DM,16)}')
    a('s_and_b32 s10, s4, 3')
    a('s_lshl_b32 s10, s10, 6')
    a('v_lshl_add_u32 v14, v18, 5, v13')
    a('v_add_u32 v14, s10, v14')
    a(f'ds_read_b128 v[72:75], v14 offset:{HS}')
    a(f'ds_read_b128 v[76:79], v14 offset:{HS+16}')
    a(f'v_lshlrev_b32 v15, 8, v12')
    a('v_lshl_add_u32 v15, v18, 5, v15')
    a('v_add_u32 v15, s10, v15')
    a(f's_mul_i32 s13, s2, {G.NPB*256}')
    a(f's_mov_b32 s12, {G.NLN2}')
    a(f's_mov_b32 s14, {G.NLOG2E}')
    a('v_cmp_gt_u32 vcc, 40, v12')
    a('s_nop 4')
    for j in range(16):
        a(f'v_fma_f32 v{CP+j}, s12, v{DM+j}, v{CP+j}')
    a('s_waitcnt lgkmcnt(0)')
    for p in range(8):
        j = 2*p
        a(f'v_mul_f32 v20, s14, v{CP+j}')
        a(f'v_mul_f32 v21, s14, v{CP+j+1}')
        a('v_exp_f32 v20, v20')
        a('v_exp_f32 v21, v21')
        a(f'v_lshlrev_b32 v22, 16, v{72+p}')
        a(f'v_and_b32 v23, 0xffff0000, v{72+p}')
        a('v_add_f32 v20, 1.0, v20')
        a('v_add_f32 v21, 1.0, v21')
        a('v_rcp_f32 v20, v20')
        a('v_rcp_f32 v21, v21')
        a('s_nop 0')
        a(f'v_fma_f32 v22, v{CP+j}, v20, v22')
        a(f'v_fma_f32 v23, v{CP+j+1}, v21, v23')
        a(f'v_cvt_pk_bf16_f32 v{80+p}, v22, v23')
    a('s_and_saveexec_b64 s[80:81], vcc')
    a('s_cbranch_execz K2_FIN')
    a('buffer_store_dwordx4 v[80:83], v15, s[68:71], s13 offen')
    a('buffer_store_dwordx4 v[84:87], v15, s[68:71], s13 offen offset:16')
    a('s_branch K2_FIN')
    a.label('K2_Z')
    a('s_cmp_ge_u32 s4, 13')
    a('s_cbranch_scc1 K2_FIN')
    a('s_sub_u32 s14, s4, 8')
    a('v_and_b32 v12, 15, v10')
    a('v_lshrrev_b32 v13, 2, v12')
    a('v_and_b32 v12, 3, v12')
    a('v_lshl_add_u32 v13, v18, 3, v13')
    a(f'v_mul_u32_u24 v13, {TS}, v13')
    a('v_bfe_u32 v14, v10, 4, 1')
    a('v_lshlrev_b32 v14, 5, v14')
    a('v_lshl_add_u32 v14, v12, 3, v14')
    a('s_lshl_b32 s10, s14, 6')
    a(f's_add_u32 s10, s10, {TP}')
    a('v_add3_u32 v13, v13, v14, s10')
    for s in range(8):
        a(f'ds_read_b64_tr_b16 {vr(20+4*s,2)}, v13 offset:{16*s*TS}')
        a(f'ds_read_b64_tr_b16 {vr(20+4*s+2,2)}, v13 offset:{(16*s+4)*TS}')
    a('v_lshlrev_b32 v14, 4, v18')
    a(f'v_add_u32 v14, {WX}, v14')
    for s in range(8):
        a(f'ds_read_b128 {vr(56+4*s,4)}, v14 offset:{32*s}')
    ZA = 104
    for s in range(8):
        a(f's_waitcnt lgkmcnt({7-s})')
        a(f'v_mfma_f32_32x32x16_bf16 {vr(ZA,16)}, {vr(56+4*s,4)}, {vr(20+4*s,4)}, {"0" if s == 0 else vr(ZA,16)}')
    a('s_lshl_b32 s10, s14, 5')
    a('v_add_u32 v12, s10, v11')
    a('v_lshlrev_b32 v13, 2, v12')
    a(f'ds_read_b32 v16, v13 offset:{POSN-4}')
    a('v_lshrrev_b32 v15, 2, v12')
    a('v_and_b32 v17, 3, v12')
    a('v_cmp_ne_u32 vcc, 0, v17')
    a('s_mov_b32 vcc_hi, 0')
    a('v_mul_u32_u24 v15, 3, v15')
    a('v_add_lshl_u32 v15, v15, v17, 1')
    a(f'v_add_u32 v15, {G.N*256 - 2}, v15')
    a(f's_mul_i32 s13, s2, {G.NPB*6}')
    a(f's_mov_b32 s12, {G.NLN2}')
    a('s_waitcnt lgkmcnt(0)')
    a('s_nop 1')
    a(f'v_fma_f32 v16, s12, v{ZA}, v16')
    a('v_cvt_pk_bf16_f32 v16, v16, v16')
    a('s_and_saveexec_b64 s[80:81], vcc')
    a('s_cbranch_execz K2_FIN')
    a('buffer_store_short v16, v15, s[68:71], s13 offen')
    a.label('K2_FIN')
    a('s_mov_b64 exec, -1')
    stamp(a, SV, 12)
    if STAMP: a('s_waitcnt vmcnt(0)')
    stamp(a, SV, 13); stamp(a, SV, 14, True)
    if STAMP:
        a('v_lshlrev_b32 v125, 2, v0')
        a.srd(40, 36, 2 << 20, 0x1100000)
        a('s_lshl_b32 s38, s2, 12')
        a(f'buffer_store_dword v{SV}, v125, s[40:43], s38 offen')
    a.label('K2_END')
    a('s_endpgm')
    a.raw(G.kd(name, NV))
```

```python
import re
class Asm:
    def __init__(self):
        self.lines = []
        self.uid = 0
    def __call__(self, s):
        for ln in s.strip('\n').split('\n'):
            m = re.search(r'offset:(\d+)', ln)
            if m:
                lim = 4095 if ln.strip().startswith('buffer_') else 65535
                assert int(m.group(1)) <= lim, ln
            self.lines.append('    ' + ln.strip() if not ln.strip().endswith(':') else ln.strip())
    def c(self, s):
        self.lines.append('    ; ' + s)
    def label(self, name):
        self.lines.append(name + ':')
    def newlabel(self, base='L'):
        self.uid += 1
        return f'{base}_{self.uid}'
    def raw(self, s):
        self.lines.append(s)
    def text(self):
        return '\n'.join(self.lines) + '\n'
    def srd(self, d, lo, size, off=0):
        if off:
            self(f's_add_u32 s{d}, s{lo}, {off}')
            self(f's_addc_u32 s{d+1}, s{lo+1}, 0')
        else:
            self(f's_mov_b32 s{d}, s{lo}')
            self(f's_mov_b32 s{d+1}, s{lo+1}')
        self(f's_mov_b32 s{d+2}, {size}')
        self(f's_mov_b32 s{d+3}, 0x20000')

import os
STAMP = os.environ.get('STAMP', '0') == '1'
WS_DBG = 0x1000000
def stamp(a, vreg, idx, real=False):
    if not STAMP: return
    a('s_memrealtime s[38:39]' if real else 's_memtime s[38:39]')
    a('s_waitcnt lgkmcnt(0)')
    a(f'v_writelane_b32 v{vreg}, s38, {idx}')
def stamp_flush(a, vreg, kernel_idx, tmpv, srd):
    if not STAMP: return
    a.srd(srd, 36, 1 << 20, WS_DBG + kernel_idx * (1 << 20))
    a('s_mov_b64 exec, -1')
    a(f'v_lshlrev_b32 v{tmpv}, 2, v0')
    a('s_lshl_b32 s38, s2, 10')
    a(f'buffer_store_dword v{vreg}, v{tmpv}, s[{srd}:{srd+3}], s38 offen')

def vr(b, n):
    return f'v[{b}:{b+n-1}]'
def sr(b, n):
    return f's[{b}:{b+n-1}]'
```

```python
from asmlib import Asm, vr, sr, stamp, stamp_flush, STAMP
import gen4 as G
import os

X2 = 0; X2T = 1280
X1 = 40960
RAW = 57344
CNT = 61440
FLAG = CNT + 64
Z = 61568
WX = 62208
AR = 62464
TM = AR
HS = 73728
RING = 83968
POST = RING + 16384
K2_LDS = POST + 59*1024
CAP = 128

V_CB = 2; V_X1B = 3; V_X2B = 4; V_RAWB = 5; V_GOFF = 6; PEND = 7; RR = 8
Y1 = 20; X1R = 28; X2R = 32; MP = 40; EE = 48; DA = 52
D0 = 56; D1 = 72; ACC = 88
OVCV = 120; VXR = 121; VX1W = 122; VX2W = 123; POSV = 124
SV = 126
NV = 128
EXP = os.environ.get('EXP', '')
PRIO = os.environ.get('PRIO', '1') == '1'

def gen_k2(a):
    name = 'egnn_edge_kernel'
    G.kernel_head(a, name)
    a(f's_cmp_ge_u32 s2, {G.NB}')
    a('s_cbranch_scc1 K2_END')
    stamp(a, SV, 20, True); stamp(a, SV, 21)
    G.load_kernargs(a)
    a('v_lshrrev_b32 v11, 6, v0')
    a('v_and_b32 v12, 63, v0')
    a('v_readfirstlane_b32 s4, v11')
    LANE = 12
    def zero_lds():
        a('v_mov_b32 v16, 0'); a('v_mov_b32 v17, 0'); a('v_mov_b32 v18, 0'); a('v_mov_b32 v19, 0')
        a('v_lshlrev_b32 v13, 4, v0')
        for i in range(3):
            a(f'ds_write_b128 v13, v[16:19] offset:{i*16384}')
        lab = a.newlabel('K2_Z')
        a('s_cmp_ge_u32 s4, 12')
        a(f's_cbranch_scc1 {lab}')
        a(f'ds_write_b128 v13, v[16:19] offset:{3*16384}')
        a.label(lab)
        lab = a.newlabel('K2_Z')
        a('s_cmp_lg_u32 s4, 15')
        a(f's_cbranch_scc1 {lab}')
        a(f'v_lshlrev_b32 v13, 4, v{LANE}')
        a('s_mov_b32 exec_hi, 0xffff')
        a(f'ds_write_b128 v13, v[16:19] offset:{CNT}')
        a('s_mov_b64 exec, -1')
        a.label(lab)
    zero_lds()
    a('s_and_b32 s5, s4, 3')
    a('s_lshr_b32 s6, s5, 1')
    a('s_and_b32 s5, s5, 1')
    a('s_lshr_b32 s7, s4, 2')
    a('s_lshl_b32 s7, s7, 1')
    a('s_add_u32 s7, s7, s5')
    a('s_lshl_b32 s9, s4, 12')
    a(f's_add_u32 s9, s9, {RING}')
    a('v_lshlrev_b32 v14, 4, v0')
    a(f'v_lshlrev_b32 v15, 4, v{LANE}')
    a(f'v_lshlrev_b32 v13, 2, v{LANE}')
    a('s_lshl_b32 s8, s2, 14')
    a('s_waitcnt lgkmcnt(0)')
    stamp(a, SV, 0, True); stamp(a, SV, 1)
    a.srd(40, 36, G.CELL_BYTES, G.WS_CELL)
    a(f'buffer_load_dwordx4 {vr(RR,4)}, v14, s[40:43], s8 offen')
    a.srd(44, 36, 256, G.WS_OVC)
    a(f'buffer_load_dword v{OVCV}, v13, s[44:47], 0 offen')
    a.srd(60, 18, G.N*6)
    def pos_dma():
        for i in range(4):
            a('s_lshl_b32 s10, s4, 2')
            if i: a(f's_add_u32 s10, s10, {i}')
            a('s_min_u32 s10, s10, 58')
            a('s_lshl_b32 s10, s10, 10')
            a(f's_add_u32 m0, s10, {POST}')
            a('s_nop 0')
            a('buffer_load_dwordx4 v15, s[60:63], s10 offen lds')
    pos_dma()
    a.srd(64, 36, G.A_BYTES, G.WS_A)
    a.srd(52, 16, G.N*256)
    a.srd(72, 28, 256)
    a('s_cmp_ge_u32 s4, 10')
    a('s_cbranch_scc1 K2_J1')
    a(f's_mul_i32 s10, s2, {G.NPB*256}')
    a('s_lshl_b32 s11, s4, 10')
    a('s_add_u32 s10, s10, s11')
    a(f's_add_u32 m0, s11, {AR}')
    a(f'v_lshrrev_b32 v16, 4, v{LANE}')
    a('buffer_load_dwordx4 v15, s[64:67], s10 offen lds')
    a('s_and_b32 s12, s4, 3')
    a('s_lshl_b32 s12, s12, 2')
    a('v_or_b32 v17, s12, v16')
    a(f'v_and_b32 v18, 15, v{LANE}')
    a('v_xor_b32 v17, v17, v18')
    a('v_lshlrev_b32 v17, 4, v17')
    a('v_lshl_add_u32 v17, v16, 8, v17')
    a(f's_add_u32 m0, s11, {HS}')
    a('s_nop 0')
    a('buffer_load_dwordx4 v17, s[52:55], s10 offen lds')
    a('s_branch K2_J3')
    a.label('K2_J1')
    a('s_cmp_eq_u32 s4, 10')
    a('s_cbranch_scc1 K2_J2')
    a('s_cmp_eq_u32 s4, 11')
    a('s_cbranch_scc0 K2_J3')
    a(f's_mov_b32 m0, {WX}')
    a('s_mov_b64 exec, 0xffff')
    a('buffer_load_dwordx4 v15, s[72:75], 0 offen lds')
    a('s_mov_b64 exec, -1')
    a('s_branch K2_J3')
    a.label('K2_J2')
    a(f's_mov_b32 s10, {G.N*256}')
    a(f's_mov_b32 m0, {AR + 40*256}')
    a('s_nop 0')
    a('buffer_load_dwordx4 v15, s[64:67], s10 offen lds')
    a.label('K2_J3')
    a('s_barrier')
    stamp(a, SV, 2)
    a.srd(56, 36, 65536, G.WS_W)
    a.srd(48, 36, G.N*256, G.WS_B)
    a.srd(68, 32, G.N*256 + G.N*6)
    a('s_mov_b32 s77, 0xffffff00')
    a('s_mov_b32 s76, 1')
    a(f'v_and_b32 v13, 31, v{LANE}')
    a(f'v_lshrrev_b32 v14, 5, v{LANE}')
    a('v_bfe_u32 v15, v13, 2, 1')
    a('v_lshlrev_b32 v15, 4, v15')
    a('v_lshrrev_b32 v16, 3, v13')
    a('v_lshl_add_u32 v15, v16, 2, v15')
    a('v_and_b32 v16, 3, v13')
    a('v_add_u32 v15, v15, v16')
    a('v_lshlrev_b32 v15, 1, v15')
    a('v_lshl_add_u32 v15, v14, 9, v15')
    a(f'v_add_u32 v{V_CB}, s9, v15')
    a('s_lshl_b32 s10, s7, 11')
    a(f's_add_u32 s10, s10, {X1}')
    a('v_lshlrev_b32 v15, 4, v13')
    a(f'v_add_u32 v{V_X1B}, s10, v15')
    a(f's_mul_i32 s10, s7, {4*X2T}')
    a('v_min_u32 v15, 19, v13')
    a('v_lshlrev_b32 v15, 4, v15')
    a('v_mul_u32_u24 v16, 320, v14')
    a(f'v_add3_u32 v{V_X2B}, s10, v15, v16')
    a('s_lshl_b32 s10, s7, 9')
    a(f's_add_u32 s10, s10, {RAW}')
    a(f'v_lshrrev_b32 v15, 3, v{LANE}')
    a('v_lshlrev_b32 v15, 2, v15')
    a(f'v_add_u32 v{V_RAWB}, s10, v15')
    a('s_lshl_b32 s11, s6, 7')
    a(f'v_and_b32 v15, 7, v{LANE}')
    a('v_lshlrev_b32 v15, 4, v15')
    a(f'v_add_u32 v{V_GOFF}, s11, v15')
    a('s_lshl_b32 s11, s7, 7')
    a('s_lshl_b32 s12, s6, 6')
    a('s_add_u32 s11, s11, s12')
    a(f'v_add_u32 v15, s11, v{LANE}')
    a(f'v_lshlrev_b32 v{VXR}, 2, v15')
    a(f'v_lshlrev_b32 v{VX1W}, 4, v15')
    a('v_lshrrev_b32 v16, 5, v15')
    a(f'v_mul_u32_u24 v16, {X2T}, v16')
    a('v_bfe_u32 v17, v15, 4, 1')
    a('v_bfe_u32 v18, v15, 2, 1')
    a('v_lshl_add_u32 v17, v17, 1, v18')
    a('v_mul_u32_u24 v17, 320, v17')
    a('v_and_b32 v18, 8, v15')
    a('v_add3_u32 v16, v16, v17, v18')
    a('v_and_b32 v18, 3, v15')
    a(f'v_lshl_add_u32 v{VX2W}, v18, 1, v16')
    a(f's_mul_i32 s78, s2, {G.NPB*6}')
    a('s_mul_i32 s10, s7, 30')
    a('s_add_u32 s78, s78, s10')
    a(f's_add_u32 s78, s78, {POST}')
    a(f's_mov_b32 s79, {POST}')
    for i in range(32):
        a(f'v_mov_b32 v{ACC+i}, 0')
    a('s_mov_b32 s92, 0')
    a('s_cmp_lt_u32 s4, 10')
    a('s_cbranch_scc1 K2_W7')
    a('s_cmp_lt_u32 s4, 12')
    a('s_cbranch_scc1 K2_W6')
    a('s_waitcnt vmcnt(5)')
    a('s_branch K2_WD')
    a.label('K2_W7')
    a('s_waitcnt vmcnt(7)')
    a('s_branch K2_WD')
    a.label('K2_W6')
    a('s_waitcnt vmcnt(6)')
    a.label('K2_WD')
    stamp(a, SV, 3)
    a(f'v_cmp_ne_u32 vcc, -1, v{RR}')
    a(f'v_cmp_ne_u32 s[82:83], -1, v{RR+2}')
    a('v_mov_b32 v19, 1')
    a(f'v_cndmask_b32 v{PEND}, 0, 1, vcc')
    a(f'v_cndmask_b32 v16, 0, 2, s[82:83]')
    a(f'v_or_b32 v{PEND}, v{PEND}, v16')

    a.label('K2_ROUND')
    a('v_mov_b32 v19, 1')
    for j in range(2):
        a(f'v_and_b32 v13, {1<<j}, v{PEND}')
        a(f'v_cmp_ne_u32 s[{80+2*j}:{81+2*j}], 0, v13')
        a(f'v_and_b32 v{14+j}, 0x38, v{RR+2*j}')
        a(f's_mov_b64 exec, s[{80+2*j}:{81+2*j}]')
        a(f'ds_add_rtn_u32 v{16+j}, v{14+j}, v19 offset:{CNT}')
        a('s_mov_b64 exec, -1')
    for j in range(2):
        a(f's_waitcnt lgkmcnt({1-j})')
        a(f's_mov_b64 exec, s[{80+2*j}:{81+2*j}]')
        a(f'v_cmp_gt_u32 vcc, {CAP}, v{16+j}')
        a(f'v_lshl_add_u32 v{16+j}, v{14+j}, 4, v{16+j}')
        a('s_and_b64 exec, exec, vcc')
        a(f'v_lshlrev_b32 v13, 2, v{16+j}')
        a(f'v_lshlrev_b32 v18, 4, v{16+j}')
        a(f'ds_write_b32 v13, v{RR+2*j} offset:{RAW}')
        a(f'ds_write_b16_d16_hi v18, v{RR+2*j+1} offset:{X1+2}')
        a(f'v_xor_b32 v{PEND}, {1<<j}, v{PEND}')
        a('s_mov_b64 exec, -1')
    a(f'v_cmp_ne_u32 vcc, 0, v{PEND}')
    a(f'v_mov_b32 v13, {FLAG}')
    a('s_mov_b64 exec, vcc')
    a('ds_write_b32 v13, v19')
    a('s_mov_b64 exec, -1')
    a('s_waitcnt vmcnt(0) lgkmcnt(0)')
    a('s_barrier')
    stamp(a, SV, 4)
    XW = 56
    a(f'ds_read_b32 v{XW}, v{VXR} offset:{RAW}')
    a('s_lshl_b32 s10, s7, 3')
    a('v_mov_b32 v13, s10')
    a(f'ds_read_b32 v14, v13 offset:{CNT}')
    a(f'v_mov_b32 v13, {FLAG}')
    a('ds_read_b32 v15, v13')
    for i in range(4):
        a(f'ds_read_b32 v{DA+i}, v{V_RAWB} offset:{32*i}')
    a('s_cmp_eq_u32 s76, 0')
    a('s_cbranch_scc1 K2_SKIPY')
    a(f'v_cmp_ne_u32 vcc, 0, v{OVCV}')
    a('s_mov_b64 s[90:91], vcc')
    a(f'v_and_b32 v16, 15, v{LANE}')
    a('v_lshrrev_b32 v17, 2, v16')
    a('v_and_b32 v16, 3, v16')
    a('v_and_b32 v18, 1, v16')
    a('v_lshlrev_b32 v18, 5, v18')
    a('v_lshrrev_b32 v16, 1, v16')
    a('v_lshl_add_u32 v18, v16, 3, v18')
    a(f'v_bfe_u32 v16, v{LANE}, 4, 1')
    a('v_lshl_add_u32 v18, v16, 4, v18')
    a('s_lshl_b32 s10, s6, 7')
    a('v_add_u32 v18, s10, v18')
    a('s_mul_i32 s11, s7, 5')
    a(f'v_cmp_lt_u32 vcc, 31, v{LANE}')
    a('v_cmp_gt_u32 s[80:81], 2, v17')
    a('v_cmp_gt_u32 s[82:83], 3, v17')
    ZROW = (Z - AR)
    a('v_add_u32 v16, 40, v17')
    a('s_sub_u32 s12, s11, 2')
    a('v_add_u32 v19, s12, v17')
    a('v_cndmask_b32 v16, v19, v16, s[80:81]')
    a('v_lshlrev_b32 v16, 8, v16')
    a('v_add_u32 v19, 42, v17')
    a('v_lshlrev_b32 v19, 8, v19')
    a(f'v_mov_b32 v60, {ZROW}')
    a('v_cndmask_b32 v19, v60, v19, s[80:81]')
    a('v_cndmask_b32 v16, v16, v19, vcc')
    a(f'v_add3_u32 v16, v16, v18, {AR}' if False else f'v_add_u32 v16, v16, v18')
    a('s_add_u32 s12, s11, 2')
    a('v_add_u32 v19, s12, v17')
    a('v_lshlrev_b32 v19, 8, v19')
    a('v_cndmask_b32 v19, v60, v19, s[82:83]')
    a('v_cndmask_b32 v19, v19, v60, vcc')
    a('v_add_u32 v19, v19, v18')
    a(f'v_add_u32 v16, {AR}, v16')
    a(f'v_add_u32 v19, {AR}, v19')
    for ct in range(2):
        a(f'ds_read_b64_tr_b16 {vr(Y1+4*ct,2)}, v16 offset:{64*ct}')
        a(f'ds_read_b64_tr_b16 {vr(Y1+4*ct+2,2)}, v19 offset:{64*ct}')
    a('s_waitcnt lgkmcnt(4)')
    a('s_branch K2_Y2')
    a.label('K2_SKIPY')
    a('s_waitcnt lgkmcnt(0)')
    a.label('K2_Y2')
    a('v_readfirstlane_b32 s8, v14')
    a('v_readfirstlane_b32 s93, v15')
    for i in range(4):
        a(f'v_and_or_b32 v{DA+i}, v{DA+i}, s77, v{V_GOFF}')
    a(f's_min_u32 s8, s8, {CAP}')
    a('s_add_u32 s12, s8, 7')
    a('s_lshr_b32 s12, s12, 3')
    a('s_min_u32 s12, s12, 4')
    def dma_rows(lab):
        for i in range(4):
            a(f's_cmp_le_u32 s12, {i}')
            a(f's_cbranch_scc1 {lab}')
            a(f's_add_u32 m0, s9, {i*1024}')
            a('s_nop 0')
            if 'nodma' not in EXP: a(f'buffer_load_dwordx4 v{DA+i}, s[48:51], 0 offen lds')
        a.label(lab)
    a('s_cmp_ge_u32 s4, 4')
    a('s_cbranch_scc1 K2_ND0')
    dma_rows('K2_ND0')
    stamp(a, SV, 5)
    w0 = XW
    PSR = 58; PDR = 62
    a(f'v_lshrrev_b32 v57, 8, v{w0}')
    a(f'v_mad_u32_u24 v57, v57, 6, s79')
    a(f'v_and_b32 v61, 7, v{w0}')
    a(f'v_mad_u32_u24 v65, v61, 6, s78')
    for k in range(3):
        a(f'ds_read_u16_d16_hi v{PSR+k}, v57 offset:{2*k}')
    for k in range(3):
        a(f'ds_read_u16_d16_hi v{PDR+k}, v65 offset:{2*k}')
    a('s_lshl_b32 s10, s6, 6')
    a(f'v_add_u32 v66, s10, v{LANE}')
    a('v_cmp_gt_u32 vcc, s8, v66')
    a(f'v_lshl_add_u32 v67, v61, 1, v{VX1W}')
    a(f'v_lshl_add_u32 v68, v61, 6, v{VX2W}')
    a('v_mov_b32 v69, 0x3f80')
    a('s_waitcnt lgkmcnt(0)')
    a(f'v_pk_add_f32 {vr(PDR,2)}, {vr(PDR,2)}, {vr(PSR,2)} neg_lo:[0,1] neg_hi:[0,1]')
    a(f'v_sub_f32 v{PDR+2}, v{PDR+2}, v{PSR+2}')
    a(f'v_cvt_pk_bf16_f32 v70, v{PDR}, v{PDR+1}')
    a(f'v_cvt_pk_bf16_f32 v71, v{PDR+2}, v{PDR+2}')
    a('v_lshlrev_b32 v58, 16, v70')
    a('v_and_b32 v59, 0xffff0000, v70')
    a('v_lshlrev_b32 v60, 16, v71')
    a('v_mul_f32 v58, v58, v58')
    a('v_fma_f32 v58, v59, v59, v58')
    a('v_fma_f32 v58, v60, v60, v58')
    a('v_cvt_pk_bf16_f32 v58, v58, v58')
    a('s_mov_b64 exec, vcc')
    a(f'ds_write_b16 v{VX1W}, v58 offset:{X1}')
    a(f'ds_write_b16 v67, v69 offset:{X1+4}')
    a(f'ds_write_b16 v68, v69 offset:{X2}')
    a(f'ds_write_b16 v68, v70 offset:{X2+16}')
    a(f'ds_write_b16_d16_hi v68, v70 offset:{X2+32}')
    a(f'ds_write_b16 v68, v71 offset:{X2+48}')
    a('s_mov_b64 exec, -1')
    for i in range(8):
        a(f'v_mov_b32 v{MP+i}, 0')
    stamp(a, SV, 6)
    a('s_waitcnt lgkmcnt(0)')
    a('s_barrier')
    stamp(a, SV, 7)
    a('s_cmp_lt_u32 s4, 4')
    a('s_cbranch_scc1 K2_ND1')
    dma_rows('K2_ND1')

    def quad(d, mp):
        e = EE
        for i in range(4): a(f'v_exp_f32 v{e+i}, v{d+i}')
        a(f'v_pk_add_f32 {vr(e,2)}, {vr(e,2)}, 1.0 op_sel_hi:[1,0]')
        a(f'v_pk_add_f32 {vr(e+2,2)}, {vr(e+2,2)}, 1.0 op_sel_hi:[1,0]')
        for i in range(4): a(f'v_rcp_f32 v{e+i}, v{e+i}')
        a(f'v_pk_mul_f32 {vr(d,2)}, {vr(d,2)}, {vr(e,2)}')
        a(f'v_pk_mul_f32 {vr(d+2,2)}, {vr(d+2,2)}, {vr(e+2,2)}')
        a(f'v_cvt_pk_bf16_f32 v{mp}, v{d}, v{d+1}')
        a(f'v_cvt_pk_bf16_f32 v{mp+1}, v{d+2}, v{d+3}')
    def creads(d, ct):
        for q in range(4):
            for i in range(4):
                a(f'ds_read_u16_d16_hi v{d+4*q+i}, v{V_CB} offset:{(8*q+i)*128 + 64*ct}')
    def front(d, ct):
        a(f'v_mfma_f32_32x32x16_bf16 {vr(d,16)}, {vr(X1R,4)}, {vr(Y1+4*ct,4)}, {vr(d,16)}')
    def back(ct, m, pad=True):
        acc = vr(ACC+16*ct, 16)
        if pad: a('s_nop 1')
        a(f'v_mfma_f32_32x32x16_bf16 {acc}, {vr(MP+4*m,4)}, {vr(X2R+4*m,4)}, {acc}')
    def wdma():
        a(f'v_lshlrev_b32 v15, 4, v{LANE}')
        a('s_and_b32 s10, s4, 7')
        a('s_lshl_b32 s10, s10, 12')
        for i in range(4):
            a(f's_add_u32 m0, s9, {i*1024}')
            if i: a('s_add_u32 s10, s10, 1024')
            else: a('s_nop 0')
            a(f'buffer_load_dwordx4 v15, s[56:59], s10 offen lds')
    def setprio(levels):
        if not PRIO: return
        end = a.newlabel('K2_PE')
        for (rem_le, pr) in levels[:-1]:
            nxt = a.newlabel('K2_PN')
            a(f's_cmp_gt_u32 s8, {rem_le}')
            a(f's_cbranch_scc1 {nxt}')
            a(f's_setprio {pr}')
            a(f's_branch {end}')
            a.label(nxt)
        a(f's_setprio {levels[-1][1]}')
        a.label(end)

    a('s_cmp_eq_u32 s8, 0')
    a('s_cbranch_scc1 K2_EMPTY')
    a(f'ds_read_b128 {vr(X1R,4)}, v{V_X1B}')
    a('s_waitcnt vmcnt(0)')
    stamp(a, SV, 8)
    creads(D0, 0)
    a('s_waitcnt lgkmcnt(0)')
    front(D0, 0)
    a('s_nop 7')
    a('s_cmp_gt_u32 s8, 32')
    a('s_nop 1')
    a('s_cbranch_scc0 K2_LAST')
    a.label('K2_FULL')
    if PRIO: a('s_setprio 3')
    creads(D1, 1)
    a(f'ds_read_b128 {vr(X2R,4)}, v{V_X2B}')
    a(f'ds_read_b128 {vr(X2R+4,4)}, v{V_X2B} offset:640')
    for i in range(4):
        a(f'ds_read_b32 v{DA+i}, v{V_RAWB} offset:{128 + 32*i}')
    a('s_sub_u32 s11, s8, 32')
    a('s_add_u32 s12, s11, 7')
    a('s_lshr_b32 s12, s12, 3')
    a('s_min_u32 s12, s12, 4')
    quad(D0, MP); quad(D0+4, MP+2)
    a('s_waitcnt lgkmcnt(0)')
    back(0, 0)
    for i in range(4):
        a(f'v_and_or_b32 v{DA+i}, v{DA+i}, s77, v{V_GOFF}')
    quad(D0+8, MP+4)
    front(D1, 1)
    dma_rows(a.newlabel('K2_ND'))
    quad(D0+12, MP+6)
    back(0, 1)
    setprio([(64, 2), (None, 3)])
    quad(D1, MP); quad(D1+4, MP+2)
    back(1, 0)
    a('s_waitcnt vmcnt(0)')
    creads(D0, 0)
    a(f'ds_read_b128 {vr(X1R,4)}, v{V_X1B} offset:512')
    a(f'v_add_u32 v{V_RAWB}, 128, v{V_RAWB}')
    a(f'v_add_u32 v{V_X1B}, 512, v{V_X1B}')
    a(f'v_add_u32 v{V_X2B}, {X2T}, v{V_X2B}')
    quad(D1+8, MP+4)
    a('s_waitcnt lgkmcnt(0)')
    front(D0, 0)
    quad(D1+12, MP+6)
    back(1, 1)
    a('s_mov_b32 s8, s11')
    a('s_cmp_gt_u32 s8, 32')
    a('s_cbranch_scc1 K2_FULL')
    a.label('K2_LAST')
    if PRIO: a('s_setprio 1')
    a('s_add_u32 s10, s8, 7')
    a('s_lshr_b32 s14, s10, 3')
    creads(D1, 1)
    a(f'ds_read_b128 {vr(X2R,4)}, v{V_X2B}')
    a(f'ds_read_b128 {vr(X2R+4,4)}, v{V_X2B} offset:640')
    def skip_lt(n):
        lab = a.newlabel('K2_S')
        a(f's_cmp_lt_u32 s14, {n}')
        a(f's_cbranch_scc1 {lab}')
        return lab
    quad(D0, MP)
    l = skip_lt(2); quad(D0+4, MP+2); a.label(l)
    a('s_waitcnt lgkmcnt(0)')
    back(0, 0)
    l = skip_lt(3); quad(D0+8, MP+4); a.label(l)
    front(D1, 1)
    wdma()
    l3 = skip_lt(3)
    l = skip_lt(4); quad(D0+12, MP+6); a.label(l)
    back(0, 1)
    a.label(l3)
    if PRIO: a('s_setprio 0')
    quad(D1, MP)
    l = skip_lt(2); quad(D1+4, MP+2); a.label(l)
    back(1, 0)
    l3 = skip_lt(3)
    quad(D1+8, MP+4)
    l = skip_lt(4); quad(D1+12, MP+6); a.label(l)
    back(1, 1)
    a.label(l3)
    a('s_branch K2_LOOP_END')
    a.label('K2_EMPTY')
    wdma()
    a.label('K2_LOOP_END')
    stamp(a, SV, 9)
    a('s_or_b32 s10, s90, s91')
    a('s_or_b32 s10, s10, s93')
    a('s_cmp_eq_u32 s10, 0')
    a('s_cbranch_scc1 K2_EPI')
    a('s_waitcnt vmcnt(0)')
    a('s_barrier')
    zero_lds()
    a(f'v_lshlrev_b32 v15, 4, v{LANE}')
    pos_dma()
    a(f'v_and_b32 v13, 31, v{LANE}')
    a(f'v_lshrrev_b32 v14, 5, v{LANE}')
    a('s_lshl_b32 s10, s7, 11')
    a(f's_add_u32 s10, s10, {X1}')
    a('v_lshlrev_b32 v15, 4, v13')
    a(f'v_add_u32 v{V_X1B}, s10, v15')
    a(f's_mul_i32 s10, s7, {4*X2T}')
    a('v_min_u32 v15, 19, v13')
    a('v_lshlrev_b32 v15, 4, v15')
    a('v_mul_u32_u24 v16, 320, v14')
    a(f'v_add3_u32 v{V_X2B}, s10, v15, v16')
    a('s_lshl_b32 s10, s7, 9')
    a(f's_add_u32 s10, s10, {RAW}')
    a(f'v_lshrrev_b32 v15, 3, v{LANE}')
    a('v_lshlrev_b32 v15, 2, v15')
    a(f'v_add_u32 v{V_RAWB}, s10, v15')
    a('s_mov_b32 s76, 0')
    a('s_cmp_lg_u32 s93, 0')
    a('s_cbranch_scc1 K2_NOREFILL')
    a('s_ff1_i32_b64 s94, s[90:91]')
    a.srd(44, 36, G.OVF_BYTES, G.WS_OVF)
    a.srd(72, 36, 256, G.WS_OVC)
    a('s_lshl_b32 s10, s94, 2')
    a('v_mov_b32 v16, s10')
    a('buffer_load_dword v17, v16, s[72:75], 0 offen')
    a(f's_mul_i32 s11, s94, {G.CH*16}')
    a('v_add_u32 v16, s92, v0')
    a('v_lshlrev_b32 v18, 4, v16')
    a('buffer_load_dwordx4 v[60:63], v18, s[44:47], s11 offen')
    a('s_waitcnt vmcnt(0)')
    a('v_cmp_lt_u32 vcc, v16, v17')
    a('v_cmp_eq_u32 s[80:81], s2, v62')
    a('s_and_b64 vcc, vcc, s[80:81]')
    a('s_nop 1')
    a(f'v_cndmask_b32 v{RR}, -1, v60, vcc')
    a(f'v_mov_b32 v{RR+1}, v61')
    a(f'v_cndmask_b32 v{PEND}, 0, 1, vcc')
    a(f'v_mov_b32 v{RR+2}, -1')
    a('v_readfirstlane_b32 s10, v17')
    a('s_add_u32 s92, s92, 1024')
    a('s_cmp_lt_u32 s92, s10')
    a('s_cbranch_scc1 K2_NOREFILL')
    a('s_bitset0_b64 s[90:91], s94')
    a('s_mov_b32 s92, 0')
    a.label('K2_NOREFILL')
    a('s_waitcnt lgkmcnt(0)')
    a('s_barrier')
    a('s_branch K2_ROUND')

    a.label('K2_EPI')
    A2 = D0; A1 = D1
    P = ACC; ZD = ACC + 16
    WXA = 32
    U = 48
    UM = 104
    BBR = (20, 24, 28, 2)
    XA = (17, 120, 121, 122)
    IDX = 123
    a(f'v_lshlrev_b32 v15, 4, v{LANE}')
    a('s_and_b32 s13, s4, 7')
    a('s_lshl_b32 s10, s13, 12')
    a('s_add_u32 s10, s10, 32768')
    for s in range(4):
        a(f'buffer_load_dwordx4 {vr(A2+4*s,4)}, v15, s[56:59], s10 offen offset:{s*1024}')
    a(f'v_subrev_u32 v{IDX}, 512, v0')
    a(f's_mul_i32 s5, s2, {G.NPB*6}')
    a(f'v_lshlrev_b32 v18, 1, v{IDX}')
    a('s_lshr_b32 s10, s4, 1')
    a('s_cmp_lg_u32 s10, 4')
    a('s_cbranch_scc1 K2_E0')
    a(f'buffer_load_short_d16_hi v{POSV}, v18, s[60:63], s5 offen')
    a.label('K2_E0')
    a(f'v_and_b32 v13, 31, v{LANE}')
    a(f'v_lshrrev_b32 v14, 5, v{LANE}')
    a('s_lshl_b32 s10, s6, 7')
    a('v_lshlrev_b32 v16, 5, v14')
    a('v_add_u32 v16, s10, v16')
    for k in range(4):
        a(f'ds_read_b128 {vr(WXA+4*k,4)}, v16 offset:{WX + (k>>1)*64 + (k&1)*16}')
    a('v_lshrrev_b32 v16, 2, v13')
    a('s_mul_i32 s11, s7, 5')
    a('v_add_u32 v16, s11, v16')
    a('v_and_b32 v17, 15, v16')
    a('s_lshl_b32 s10, s6, 3')
    a('v_lshl_add_u32 v18, v14, 1, s10')
    a('v_xor_b32 v17, v17, v18')
    a('v_lshlrev_b32 v17, 4, v17')
    a('v_lshl_add_u32 v17, v16, 8, v17')
    a('v_and_b32 v18, 3, v13')
    a('v_cmp_eq_u32 vcc, 0, v18')
    a('v_cmp_gt_u32 s[80:81], 20, v13')
    a('v_lshlrev_b32 v18, 2, v18')
    a('v_lshl_add_u32 v16, v16, 4, v18')
    a('s_and_b64 s[82:83], vcc, s[80:81]')
    a('s_andn2_b64 s[84:85], s[80:81], vcc')
    a('s_mov_b32 s85, 0')
    for ct in range(2):
        for p in range(8):
            a(f'v_cvt_pk_bf16_f32 v{P+8*ct+p}, v{ACC+16*ct+2*p}, v{ACC+16*ct+2*p+1}')
    a('s_mov_b64 exec, s[82:83]')
    for k in range(4):
        ct, h2 = k >> 1, k & 1
        x = (4*ct + h2) * 16
        if x: a(f'v_xor_b32 v18, {x}, v17')
        a(f'ds_write_b128 v{18 if x else 17}, {vr(P+8*ct+4*h2,4)} offset:{TM}')
    a('s_mov_b64 exec, -1')
    a('s_waitcnt lgkmcnt(4)')
    a('s_nop 2')
    for k in range(4):
        a(f'v_mfma_f32_32x32x16_bf16 {vr(ZD,16)}, {vr(WXA+4*k,4)}, {vr(P+4*k,4)}, {"0" if k == 0 else vr(ZD,16)}')
    a(f'v_lshlrev_b32 v17, 4, v{LANE}')
    a('v_add_u32 v17, s9, v17')
    a('s_lshr_b32 s10, s4, 1')
    a('s_cmp_lg_u32 s10, 4')
    a('s_cbranch_scc1 K2_EWa')
    a('s_waitcnt vmcnt(5)')
    a('s_branch K2_EWb')
    a.label('K2_EWa')
    a('s_waitcnt vmcnt(4)')
    a.label('K2_EWb')
    for s in range(4):
        a(f'ds_read_b128 {vr(A1+4*s,4)}, v17 offset:{s*1024}')
    a('s_lshr_b32 s14, s4, 3')
    a('s_lshl_b32 s15, s14, 13')
    a(f'v_and_b32 v18, 15, v{LANE}')
    a(f'v_lshrrev_b32 v19, 4, v{LANE}')
    a('v_xor_b32 v17, v19, v18')
    a('v_lshlrev_b32 v17, 4, v17')
    a('v_lshl_add_u32 v17, v18, 8, v17')
    a(f's_add_u32 s10, s15, {TM}')
    a('v_add_u32 v17, s10, v17')
    for s in range(1, 4):
        a(f'v_xor_b32 v{XA[s]}, {64*s}, v17')
    def gemm_part(reg_base, Afr, Ub):
        for job in range(2):
            if job == 1:
                a('s_cmp_lg_u32 s14, 0')
                lab = a.newlabel('K2_G')
                a(f's_cbranch_scc1 {lab}')
            for s in range(4):
                a(f'ds_read_b128 {vr(BBR[s],4)}, v{XA[s]} offset:{reg_base - TM + job*4096}')
            for s in range(4):
                a(f's_waitcnt lgkmcnt({3-s})')
                u = vr(Ub+4*job, 4)
                a(f'v_mfma_f32_16x16x32_bf16 {u}, {vr(Afr+4*s,4)}, {vr(BBR[s],4)}, {"0" if s == 0 else u}')
            if job == 1:
                a.label(lab)
    gemm_part(HS, A1, U)
    a('s_nop 3')
    a('s_mov_b64 exec, s[84:85]')
    a(f'ds_add_f32 v16, v{ZD} offset:{Z}')
    a('s_mov_b64 exec, -1')
    a('v_lshrrev_b32 v13, 1, v19')
    a('s_lshl_b32 s10, s13, 1')
    a('v_add_u32 v13, s10, v13')
    a('v_xor_b32 v13, v13, v18')
    a('v_lshlrev_b32 v13, 4, v13')
    a('v_lshl_add_u32 v13, v18, 8, v13')
    a('v_and_b32 v14, 1, v19')
    a('v_lshl_add_u32 v13, v14, 3, v13')
    a(f's_add_u32 s10, s15, {TM}')
    a('v_add_u32 v13, s10, v13')
    a(f'ds_read_b64 v[32:33], v13 offset:{HS-TM}')
    a(f'ds_read_b64 v[34:35], v13 offset:{HS-TM+4096}')
    a('v_lshlrev_b32 v15, 8, v18')
    a('v_lshl_add_u32 v15, v19, 3, v15')
    a('s_lshl_b32 s10, s13, 5')
    a('s_add_u32 s10, s10, s15')
    a(f's_mul_i32 s11, s2, {G.NPB*256}')
    a('s_add_u32 s11, s11, s10')
    a(f's_mov_b32 s86, {G.NLN2}'); a(f's_mov_b32 s87, {G.NLN2}')
    a(f's_mov_b32 s88, {G.NLOG2E}'); a(f's_mov_b32 s89, {G.NLOG2E}')
    a('s_waitcnt lgkmcnt(0)')
    stamp(a, SV, 10)
    a('s_barrier')
    stamp(a, SV, 11)
    a('s_waitcnt vmcnt(0)')
    gemm_part(TM, A2, UM)
    def silu_job(job):
        u = U + 4*job; um = UM + 4*job; hb = 32 + 2*job
        a(f'v_pk_fma_f32 {vr(u,2)}, {vr(u,2)}, s[88:89], {vr(um,2)}')
        a(f'v_pk_fma_f32 {vr(u+2,2)}, {vr(u+2,2)}, s[88:89], {vr(um+2,2)}')
        for i in range(4): a(f'v_exp_f32 v{24+i}, v{u+i}')
        a(f'v_lshlrev_b32 v28, 16, v{hb}')
        a('v_pk_add_f32 v[24:25], v[24:25], 1.0 op_sel_hi:[1,0]')
        a('v_pk_add_f32 v[26:27], v[26:27], 1.0 op_sel_hi:[1,0]')
        for i in range(4): a(f'v_rcp_f32 v{24+i}, v{24+i}')
        a(f'v_and_b32 v29, 0xffff0000, v{hb}')
        a(f'v_lshlrev_b32 v30, 16, v{hb+1}')
        a(f'v_and_b32 v31, 0xffff0000, v{hb+1}')
        a(f'v_pk_mul_f32 {vr(u,2)}, {vr(u,2)}, v[24:25]')
        a(f'v_pk_mul_f32 {vr(u+2,2)}, {vr(u+2,2)}, v[26:27]')
        a(f'v_pk_fma_f32 v[28:29], {vr(u,2)}, s[86:87], v[28:29]')
        a(f'v_pk_fma_f32 v[30:31], {vr(u+2,2)}, s[86:87], v[30:31]')
        a(f'v_cvt_pk_bf16_f32 v{40+2*job}, v28, v29')
        a(f'v_cvt_pk_bf16_f32 v{41+2*job}, v30, v31')
    a('s_cmp_lg_u32 s14, 0')
    a('s_cbranch_scc1 K2_H1')
    a('s_nop 3')
    silu_job(0)
    a('buffer_store_dwordx2 v[40:41], v15, s[68:71], s11 offen')
    silu_job(1)
    a('s_add_u32 s11, s11, 4096')
    a('buffer_store_dwordx2 v[42:43], v15, s[68:71], s11 offen')
    a('s_branch K2_FIN')
    a.label('K2_H1')
    a('s_nop 7')
    silu_job(0)
    a('v_cmp_gt_u32 vcc, 8, v18')
    a('s_mov_b64 exec, vcc')
    a('buffer_store_dwordx2 v[40:41], v15, s[68:71], s11 offen')
    a('s_mov_b64 exec, -1')
    a('s_lshr_b32 s10, s4, 1')
    a('s_cmp_lg_u32 s10, 4')
    a('s_cbranch_scc1 K2_FIN')
    a(f'v_mul_u32_u24 v13, 171, v{IDX}')
    a('v_lshrrev_b32 v13, 9, v13')
    a('v_mul_u32_u24 v14, 3, v13')
    a(f'v_sub_u32 v14, v{IDX}, v14')
    a('v_lshlrev_b32 v14, 2, v14')
    a('v_lshl_add_u32 v13, v13, 4, v14')
    a(f'ds_read_b32 v16, v13 offset:{Z+4}')
    a(f'v_lshlrev_b32 v15, 1, v{IDX}')
    a(f'v_cmp_gt_u32 vcc, 120, v{IDX}')
    a(f's_add_u32 s5, s5, {G.N*256}')
    a('s_waitcnt lgkmcnt(0)')
    a(f'v_fma_f32 v16, s86, v16, v{POSV}')
    a('v_cvt_pk_bf16_f32 v16, v16, v16')
    a('s_mov_b64 exec, vcc')
    a('buffer_store_short v16, v15, s[68:71], s5 offen')
    a.label('K2_FIN')
    a('s_mov_b64 exec, -1')
    stamp(a, SV, 12)
    if STAMP: a('s_waitcnt vmcnt(0)')
    stamp(a, SV, 13); stamp(a, SV, 14, True)
    if STAMP:
        a('v_lshlrev_b32 v125, 2, v0')
        a.srd(40, 36, 2 << 20, 0x1100000)
        a('s_lshl_b32 s38, s2, 12')
        a(f'buffer_store_dword v{SV}, v125, s[40:43], s38 offen')
    a.label('K2_END')
    a('s_endpgm')
    a.raw(G.kd(name, NV))
```

```python
import sys, os
from asmlib import Asm, vr, sr, stamp, stamp_flush, STAMP

N = 10000; E = 160000; D = 128
NCH = 64; CH = E // NCH
NPB = 40; NB = N // NPB
WS_B = 0
WS_A = 0x280000
A_BYTES = (N + 4) * 256
WS_W = 0x500000
WS_OVC = 0x520000
WS_CELL = 0x600000
CELL_BYTES = NB * NCH * 256
WS_OVF = 0xA00000
OVF_BYTES = E * 16
GN = 128
N_GT = (N + GN - 1) // GN
N_GEMM = 2 * N_GT
N_TR = 8
K1_GRID = NCH + N_GEMM + N_TR + 1
K1_LDS = 98304 + 64
NLOG2E = 0xbfb8aa3b
NLN2 = 0xbf317218

HEADER = open('standalone__cheap_equivariant_egnn__graph.s.ref').read().split('; Override')[0]

def kd(name, vgpr, sgpr=102):
    acc = (vgpr + 3) // 4 * 4
    return f'''.section .rodata,"a"
.p2align 6
.amdhsa_kernel {name}
  .amdhsa_next_free_vgpr {vgpr}
  .amdhsa_next_free_sgpr {sgpr}
  .amdhsa_accum_offset {acc}
  .amdhsa_group_segment_fixed_size 0
  .amdhsa_kernarg_size 88
  .amdhsa_user_sgpr_count 2
  .amdhsa_user_sgpr_kernarg_segment_ptr 1
  .amdhsa_system_sgpr_workgroup_id_x 1
.end_amdhsa_kernel
.text
'''

def kernel_head(a, name):
    a.raw(f'.globl {name}')
    a.raw('.p2align 8')
    a.raw(f'.type {name},@function')
    a.label(name)

def load_kernargs(a):
    a('s_load_dwordx16 s[16:31], s[0:1], 0')
    a('s_load_dwordx4 s[32:35], s[0:1], 64')
    a('s_load_dwordx2 s[36:37], s[0:1], 80')

SC = os.environ.get('SC', ' sc0 sc1')

def gen_k1(a):
    name = 'egnn_prep_kernel'
    SV = 126
    kernel_head(a, name)
    a(f's_cmp_ge_u32 s2, {K1_GRID}')
    a('s_cbranch_scc1 K1_END')
    stamp(a, SV, 7, True); stamp(a, SV, 8)
    load_kernargs(a)
    a(f's_cmp_lt_u32 s2, {NCH}')
    a('s_cbranch_scc1 K1_BIN')
    a(f's_cmp_lt_u32 s2, {NCH + N_GEMM}')
    a('s_cbranch_scc1 K1_GEMM')
    a(f's_cmp_lt_u32 s2, {NCH + N_GEMM + N_TR}')
    a('s_cbranch_scc1 K1_TR')
    a('s_branch K1_WDE')
    def endstamps():
        stamp(a, SV, 4)
        if STAMP: a('s_waitcnt vmcnt(0)')
        stamp(a, SV, 5); stamp(a, SV, 6, True)
        if STAMP:
            a('v_lshlrev_b32 v125, 2, v0')
            a.srd(40, 36, 1 << 20, 0x1000000)
            a('s_mov_b64 exec, -1')
            a('s_lshl_b32 s38, s2, 11')
            a(f'buffer_store_dword v{SV}, v125, s[40:43], s38 offen')

    CNT = 64000; OVFC = 65024
    a.label('K1_BIN')
    a('v_mov_b32 v4, -1'); a('v_mov_b32 v5, -1'); a('v_mov_b32 v6, -1'); a('v_mov_b32 v7, -1')
    a('v_lshlrev_b32 v3, 4, v0')
    a('v_lshlrev_b32 v1, 2, v0')
    a('v_lshlrev_b32 v2, 1, v0')
    a('v_mov_b32 v8, 0')
    a(f'v_cmp_gt_u32 vcc, 257, v0')
    a('s_and_saveexec_b64 s[70:71], vcc')
    a(f'ds_write_b32 v1, v8 offset:{CNT}')
    a('s_mov_b64 exec, s[70:71]')
    for k in range(7):
        a(f'ds_write_b128 v3, v[4:7] offset:{k*8192}')
    LASTV = (NB*256 - 7*8192)//16
    a(f'v_cmp_gt_u32 vcc, {LASTV}, v0')
    a('s_and_saveexec_b64 s[70:71], vcc')
    a(f'ds_write_b128 v3, v[4:7] offset:{7*8192}')
    a('s_mov_b64 exec, s[70:71]')
    a(f's_mul_i32 s60, s2, {CH*4}')
    a('s_add_u32 s61, s60, 4096')
    a('s_add_u32 s62, s60, 8192')
    a(f's_mul_i32 s63, s2, {CH*2}')
    a('s_add_u32 s64, s63, 4096')
    a('s_waitcnt lgkmcnt(0)')
    stamp(a, SV, 0, True); stamp(a, SV, 1)
    a.srd(40, 24, E*4)
    a.srd(44, 22, E*4)
    a.srd(48, 20, E*2)
    for j in range(5):
        a(f'buffer_load_dword v{10+j}, v1, s[40:43], s{60 + j//2} offen offset:{(j%2)*2048}')
    for j in range(5):
        a(f'buffer_load_dword v{15+j}, v1, s[44:47], s{60 + j//2} offen offset:{(j%2)*2048}')
    for j in range(5):
        a(f'buffer_load_short_d16_hi v{41+2*j}, v2, s[48:51], s{63 + j//4} offen offset:{(j%4)*1024}')
    a.srd(52, 36, CELL_BYTES, WS_CELL)
    a.srd(56, 36, OVF_BYTES, WS_OVF)
    a.srd(72, 36, NCH*4, WS_OVC)
    a('s_barrier')
    TAIL = CH - 2048
    a('s_mov_b32 s65, 52429')
    a(f'v_cmp_gt_u32 vcc, {TAIL}, v0')
    a('s_mov_b64 s[68:69], vcc')
    a('v_mov_b32 v6, 1')
    for j in range(5):
        a(f's_waitcnt vmcnt({14-j})')
        a(f'v_mul_u32_u24 v{25+j}, s65, v{10+j}')
        a(f'v_lshrrev_b32 v{25+j}, 21, v{25+j}')
        a(f'v_mul_u32_u24 v7, 40, v{25+j}')
        a(f'v_sub_u32 v{10+j}, v{10+j}, v7')
        a(f'v_lshlrev_b32 v{30+j}, 2, v{25+j}')
        if j == 4:
            a('s_mov_b64 exec, s[68:69]')
        a(f'ds_add_rtn_u32 v{35+j}, v{30+j}, v6 offset:{CNT}')
        if j == 4:
            a('s_mov_b64 exec, -1')
    for j in range(5):
        a(f'v_mul_u32_u24 v7, 13, v{10+j}')
        a('v_lshrrev_b32 v7, 6, v7')
        a('v_mul_u32_u24 v8, 5, v7')
        a(f'v_sub_u32 v8, v{10+j}, v8')
        a('v_lshl_or_b32 v8, v7, 3, v8')
        a(f's_waitcnt vmcnt({9-j})')
        a(f'v_lshl_or_b32 v{40+2*j}, v{15+j}, 8, v8')
    a('s_waitcnt vmcnt(0)')
    for j in range(5):
        a(f's_waitcnt lgkmcnt({4-j})')
        a(f'v_cmp_gt_u32 vcc, 32, v{35+j}')
        if j == 4:
            a('s_and_b64 vcc, vcc, s[68:69]')
        a(f'v_add_u32 v7, v{35+j}, v{25+j}')
        a('v_and_b32 v7, 31, v7')
        a(f'v_lshlrev_b32 v8, 8, v{25+j}')
        a('v_lshl_add_u32 v7, v7, 3, v8')
        a('s_mov_b64 exec, vcc')
        a(f'ds_write_b64 v7, {vr(40+2*j,2)}')
        if j == 4:
            a('s_andn2_b64 exec, s[68:69], vcc')
        else:
            a('s_not_b64 exec, vcc')
        lab = a.newlabel('K1_NOV')
        a(f's_cbranch_execz {lab}')
        a(f'v_mov_b32 v9, {OVFC}')
        a('ds_add_rtn_u32 v8, v9, v6')
        a(f's_mul_i32 s76, s2, {CH*16}')
        a(f'v_mov_b32 v50, v{40+2*j}')
        a(f'v_mov_b32 v51, v{41+2*j}')
        a(f'v_mov_b32 v52, v{25+j}')
        a('v_mov_b32 v53, 0')
        a('s_waitcnt lgkmcnt(0)')
        a('v_lshlrev_b32 v8, 4, v8')
        a('buffer_store_dwordx4 v[50:53], v8, s[56:59], s76 offen')
        a('s_nop 1')
        a.label(lab)
        a('s_mov_b64 exec, -1')
    a('s_waitcnt lgkmcnt(0)')
    stamp(a, SV, 2)
    a('s_barrier')
    for k in range(8):
        a(f'ds_read_b128 v[{56+4*k}:{59+4*k}], v3 offset:{k*8192}')
    a(f'v_mov_b32 v9, {OVFC}')
    a('ds_read_b32 v8, v9')
    a('v_lshrrev_b32 v9, 4, v0')
    a('v_lshlrev_b32 v9, 14, v9')
    a('v_and_b32 v7, 255, v3')
    a('v_add_u32 v9, v9, v7')
    a('s_lshl_b32 s77, s2, 8')
    for k in range(8):
        a(f's_waitcnt lgkmcnt({8-k})')
        if k == 7:
            a(f'v_cmp_gt_u32 vcc, {LASTV}, v0')
            a('s_and_saveexec_b64 s[70:71], vcc')
            a('s_cbranch_execz K1_BIN_SK')
        a(f'buffer_store_dwordx4 v[{56+4*k}:{59+4*k}], v9, s[52:55], s77 offen{SC}')
        a(f's_add_u32 s77, s77, {32*16384}')
    a.label('K1_BIN_SK')
    a('s_mov_b64 exec, s[70:71]')
    a('s_waitcnt lgkmcnt(0)')
    a('v_cmp_eq_u32 vcc, 0, v0')
    a('s_and_saveexec_b64 s[70:71], vcc')
    a('s_cbranch_execz K1_BIN_SK2')
    a('s_lshl_b32 s77, s2, 2')
    a('v_mov_b32 v9, 0')
    a(f'buffer_store_dword v8, v9, s[72:75], s77 offen{SC}')
    a.label('K1_BIN_SK2')
    a('s_mov_b64 exec, s[70:71]')
    endstamps()
    a('s_endpgm')

    a.label('K1_GEMM')
    W2S = 0; HT = 32768; OT = 65536
    a(f's_sub_u32 s3, s2, {NCH}')
    a('s_and_b32 s10, s3, 1')
    a('s_lshr_b32 s3, s3, 1')
    a('v_and_b32 v1, 63, v0')
    a('v_lshrrev_b32 v2, 6, v0')
    a('v_lshrrev_b32 v3, 4, v1')
    a('v_readfirstlane_b32 s4, v2')
    a('v_and_b32 v4, 15, v1')
    a('v_lshlrev_b32 v5, 2, v3')
    a('v_xor_b32 v5, v5, v4')
    a('v_lshlrev_b32 v5, 4, v5')
    a('v_lshl_add_u32 v5, v3, 8, v5')
    a('v_xor_b32 v6, v3, v4')
    a('v_lshlrev_b32 v6, 4, v6')
    a('v_lshl_add_u32 v6, v3, 8, v6')
    a('s_lshl_b32 s5, s4, 12')
    a(f's_mul_i32 s8, s3, {GN*256}')
    a('s_add_u32 s9, s8, s5')
    a('s_xor_b32 s11, s10, 1')
    a('s_lshl_b32 s11, s11, 15')
    a('s_add_u32 s6, s5, s11')
    a(f's_mul_i32 s12, s10, {WS_A}')
    a('s_waitcnt lgkmcnt(0)')
    stamp(a, SV, 0, True); stamp(a, SV, 1)
    a.srd(44, 16, N*256)
    a.srd(40, 26, 258*256)
    for i in range(4):
        a(f's_add_u32 m0, s5, {HT + i*1024}')
        if i: a(f'v_xor_b32 v7, {64*i}, v6')
        else: a('s_nop 0')
        a(f'buffer_load_dwordx4 v{7 if i else 6}, s[44:47], s9 offen offset:0 lds')
        a('s_add_u32 s9, s9, 1024')
    for i in range(4):
        a(f's_add_u32 m0, s5, {W2S + i*1024}')
        a('s_nop 0')
        a('buffer_load_dwordx4 v5, s[40:43], s6 offen lds')
        a('s_add_u32 s6, s6, 1024')
    a('s_add_u32 s48, s36, s12')
    a('s_addc_u32 s49, s37, 0')
    a(f's_mov_b32 s50, {N*256}')
    a('s_mov_b32 s51, 0x20000')
    a('s_and_b32 s12, s4, 3')
    a('s_lshr_b32 s13, s4, 2')
    a('v_and_b32 v4, 31, v1')
    a('v_lshrrev_b32 v5, 5, v1')
    a('v_and_b32 v7, 15, v1')
    a('v_lshrrev_b32 v8, 2, v7')
    a('v_and_b32 v9, 3, v7')
    a('v_lshl_add_u32 v10, v5, 3, v8')
    a('v_lshlrev_b32 v10, 8, v10')
    a('v_and_b32 v11, 1, v9')
    a('v_lshlrev_b32 v11, 5, v11')
    a('v_lshrrev_b32 v12, 1, v9')
    a('v_lshl_add_u32 v11, v12, 3, v11')
    a('v_bfe_u32 v12, v1, 4, 1')
    a('v_lshl_add_u32 v11, v12, 4, v11')
    a('v_xor_b32 v12, s12, v8')
    a('v_lshl_add_u32 v11, v12, 6, v11')
    a('v_add_u32 v10, v10, v11')
    a('v_and_b32 v11, 15, v4')
    a('v_xor_b32 v11, v11, v5')
    a('v_lshlrev_b32 v11, 4, v11')
    a('v_lshl_add_u32 v11, v4, 8, v11')
    a('s_lshl_b32 s14, s13, 14')
    a(f's_add_u32 s14, s14, {HT}')
    a('v_add_u32 v11, s14, v11')
    a('s_waitcnt vmcnt(0)')
    stamp(a, SV, 2)
    a('s_barrier')
    XB = 32
    for s in range(8):
        a(f'ds_read_b64_tr_b16 {vr(XB+4*s,2)}, v10 offset:{s*4096}')
        a(f'ds_read_b64_tr_b16 {vr(XB+4*s+2,2)}, v10 offset:{s*4096+1024}')
    DB = 88
    HB = 64
    def hread(s):
        b = HB + 8*(s % 3)
        if s: a(f'v_xor_b32 v12, {32*s}, v11')
        r = 12 if s else 11
        a(f'ds_read_b128 {vr(b,4)}, v{r}')
        a(f'ds_read_b128 {vr(b+4,4)}, v{r} offset:8192')
    hread(0); hread(1)
    for s in range(8):
        if s + 2 < 8: hread(s+2)
        rem = 2*min(2, 7-s)
        a(f's_waitcnt lgkmcnt({rem})')
        b = HB + 8*(s % 3)
        for nt in range(2):
            cin = '0' if s == 0 else vr(DB+16*nt, 16)
            a(f'v_mfma_f32_32x32x16_bf16 {vr(DB+16*nt,16)}, {vr(XB+4*s,4)}, {vr(b+4*nt,4)}, {cin}')
    stamp(a, SV, 3)
    a('v_and_b32 v12, 15, v4')
    a('v_lshlrev_b32 v13, 1, v5')
    a('s_lshl_b32 s15, s12, 2')
    a('v_add_u32 v13, s15, v13')
    a('v_xor_b32 v13, v13, v12')
    a('v_lshlrev_b32 v13, 4, v13')
    a('v_lshl_add_u32 v13, v4, 8, v13')
    a('s_lshl_b32 s14, s13, 14')
    a(f's_add_u32 s14, s14, {OT}')
    a('v_add_u32 v13, s14, v13')
    a('v_xor_b32 v14, 16, v13')
    a(f's_mov_b32 s15, {NLOG2E}')
    a('s_nop 4')
    for nt in range(2):
        if nt == 1: a('s_nop 3')
        for j in range(16):
            a(f'v_mul_f32 v{DB+16*nt+j}, s15, v{DB+16*nt+j}')
        for p in range(8):
            a(f'v_cvt_pk_bf16_f32 v{XB+8*nt+p}, v{DB+16*nt+2*p}, v{DB+16*nt+2*p+1}')
        a(f'ds_write_b128 v13, {vr(XB+8*nt,4)} offset:{nt*8192}')
        a(f'ds_write_b128 v14, {vr(XB+8*nt+4,4)} offset:{nt*8192}')
    a('s_waitcnt lgkmcnt(0)')
    a('s_barrier')
    a('v_lshlrev_b32 v12, 4, v1')
    a('s_lshl_b32 s14, s4, 12')
    a(f's_add_u32 s14, s14, {OT}')
    a('v_add_u32 v12, s14, v12')
    for i in range(4):
        a(f'ds_read_b128 {vr(XB+4*i,4)}, v12 offset:{i*1024}')
    a('s_add_u32 s9, s8, s5')
    for i in range(4):
        a(f's_waitcnt lgkmcnt({3-i})')
        if i: a(f'v_xor_b32 v7, {64*i}, v6')
        a(f'buffer_store_dwordx4 {vr(XB+4*i,4)}, v{7 if i else 6}, s[48:51], s9 offen{SC}')
        a('s_add_u32 s9, s9, 1024')
    endstamps()
    a('s_endpgm')

    a.label('K1_TR')
    a(f's_sub_u32 s3, s2, {NCH + N_GEMM}')
    a('v_and_b32 v1, 63, v0')
    a('v_lshrrev_b32 v2, 8, v0')
    a('s_lshl_b32 s4, s3, 1')
    a('v_add_u32 v2, s4, v2')
    a('v_lshrrev_b32 v3, 3, v2')
    a('v_and_b32 v4, 7, v2')
    a('v_bfe_u32 v5, v0, 6, 2')
    a('v_lshlrev_b32 v6, 7, v3')
    a('v_lshl_add_u32 v6, v5, 5, v6')
    a('v_lshrrev_b32 v7, 4, v1')
    a('v_lshl_add_u32 v6, v7, 3, v6')
    a('v_lshlrev_b32 v6, 8, v6')
    a('v_and_b32 v7, 15, v1')
    a('v_lshl_add_u32 v7, v4, 4, v7')
    a('v_lshl_add_u32 v6, v7, 1, v6')
    a('s_waitcnt lgkmcnt(0)')
    stamp(a, SV, 0, True); stamp(a, SV, 1)
    a.srd(40, 30, 256*256)
    a.srd(44, 36, 65536, WS_W)
    for i in range(8):
        a(f'buffer_load_ushort v{16+i}, v6, s[40:43], 0 offen offset:{i*256}')
    a('v_lshlrev_b32 v5, 4, v0')
    a('s_lshl_b32 s9, s3, 13')
    a('s_waitcnt vmcnt(0)')
    for p in range(4):
        a(f'v_lshl_or_b32 v{8+p}, v{16+2*p+1}, 16, v{16+2*p}')
    a(f'buffer_store_dwordx4 v[8:11], v5, s[44:47], s9 offen{SC}')
    endstamps()
    a('s_endpgm')

    a.label('K1_WDE')
    a('v_cmp_gt_u32 vcc, 256, v0')
    a('s_and_saveexec_b64 s[70:71], vcc')
    a('s_cbranch_execz K1_END')
    a('v_lshlrev_b32 v1, 1, v0')
    a('s_waitcnt lgkmcnt(0)')
    a.srd(40, 26, 258*256)
    a.srd(44, 36, A_BYTES, WS_A)
    a('s_mov_b32 s10, 65536')
    a('buffer_load_short_d16_hi v2, v1, s[40:43], s10 offen')
    a(f's_mov_b32 s11, {NLOG2E}')
    a(f's_mov_b32 s12, {N*256}')
    a('s_waitcnt vmcnt(0)')
    a('v_mul_f32 v2, s11, v2')
    a('v_cvt_pk_bf16_f32 v3, v2, v2')
    a('v_lshlrev_b32 v4, 16, v3')
    a('v_sub_f32 v4, v2, v4')
    a('v_cvt_pk_bf16_f32 v4, v4, v4')
    a(f'buffer_store_short v3, v1, s[44:47], s12 offen{SC}')
    a(f'buffer_store_short v4, v1, s[44:47], s12 offen offset:512{SC}')
    a.label('K1_END')
    a('s_endpgm')
    a.raw(kd(name, 128))

def build(k2=True):
    a = Asm()
    hdr = HEADER
    hdr += f'; @launch kernel=egnn_prep_kernel grid=({K1_GRID},1,1) block=(512,1,1) lds={K1_LDS}\n'
    if k2:
        import gen4_k2
        hdr += f'; @launch kernel=egnn_edge_kernel grid=({NB},1,1) block=(1024,1,1) lds={gen4_k2.K2_LDS}\n'
    a.raw(hdr + '.amdgcn_target "amdgcn-amd-amdhsa--gfx950"\n.text')
    gen_k1(a)
    if k2:
        gen4_k2.gen_k2(a)
    return a.text()

if __name__ == '__main__':
    k2 = '--nok2' not in sys.argv
    out = sys.argv[1] if len(sys.argv) > 1 and not sys.argv[1].startswith('--') else 'full4.s'
    open(out, 'w').write(build(k2))
    print('wrote', out)
```

```python
from asmlib import Asm, vr, sr, stamp, stamp_flush, STAMP
import gen5 as G
import os

X2 = 0; X2T = 1280
X1 = 40960
RAW = 57344
CNT = 61440
FLAG = CNT + 64
Z = 61568
WX = 62208
AR = 62464
ARS = 272
WDEL = AR + 40*ARS
TM = AR
HS = WDEL + 1024
RING = HS + 10240
K2_LDS = RING + 65536
CAP = 128

LANE = 1
V_CB = 2; V_X1B = 3; V_X2B = 4; V_RAWB = 5; V_GOFF = 6; PEND = 7; RR = 8
Y1 = 20; X1R = 28; X2R = 32; MP = 40; EE = 48; DA = 52
D0 = 56; D1 = 72; ACC = 88
OVCV = 120; SA = 121; SB = 122; VY0 = 123; VY1 = 124; POSV = 125
SV = 126
NV = 128
EXP = os.environ.get('EXP', '')
PRIO = os.environ.get('PRIO', '1') == '1'

def gen_k2(a):
    name = 'egnn_edge_kernel'
    G.kernel_head(a, name)
    a(f's_cmp_ge_u32 s2, {G.NB}')
    a('s_cbranch_scc1 K2_END')
    stamp(a, SV, 20, True); stamp(a, SV, 21)
    G.load_kernargs(a)
    a('v_lshrrev_b32 v11, 6, v0')
    a(f'v_and_b32 v{LANE}, 63, v0')
    a('v_readfirstlane_b32 s4, v11')
    def zero_lds():
        a('v_mov_b32 v16, 0'); a('v_mov_b32 v17, 0'); a('v_mov_b32 v18, 0'); a('v_mov_b32 v19, 0')
        a('v_lshlrev_b32 v13, 4, v0')
        for i in range(3):
            a(f'ds_write_b128 v13, v[16:19] offset:{i*16384}')
        lab = a.newlabel('K2_Z')
        a('s_cmp_ge_u32 s4, 12')
        a(f's_cbranch_scc1 {lab}')
        a(f'ds_write_b128 v13, v[16:19] offset:{3*16384}')
        a.label(lab)
        lab = a.newlabel('K2_Z')
        a('s_cmp_lg_u32 s4, 15')
        a(f's_cbranch_scc1 {lab}')
        a(f'v_lshlrev_b32 v13, 4, v{LANE}')
        a('s_mov_b32 exec_hi, 0xffff')
        a(f'ds_write_b128 v13, v[16:19] offset:{CNT}')
        a('s_mov_b64 exec, -1')
        a.label(lab)
    zero_lds()
    a('s_and_b32 s5, s4, 3')
    a('s_lshr_b32 s6, s5, 1')
    a('s_and_b32 s5, s5, 1')
    a('s_lshr_b32 s7, s4, 2')
    a('s_lshl_b32 s7, s7, 1')
    a('s_add_u32 s7, s7, s5')
    a('s_lshl_b32 s9, s4, 12')
    a(f's_add_u32 s9, s9, {RING}')
    a('v_lshlrev_b32 v19, 3, v0')
    a(f'v_lshlrev_b32 v15, 4, v{LANE}')
    a(f'v_lshlrev_b32 v13, 2, v{LANE}')
    a('s_lshl_b32 s8, s2, 13')
    a(f's_mul_i32 s78, s2, {G.NPB*8}')
    a('s_waitcnt lgkmcnt(0)')
    stamp(a, SV, 0, True); stamp(a, SV, 1)
    a.srd(40, 36, G.C_BYTES, G.WS_C1)
    a(f'buffer_load_dwordx2 {vr(RR,2)}, v19, s[40:43], s8 offen')
    a.srd(44, 36, 256, G.WS_OVC)
    a(f'buffer_load_dword v{OVCV}, v13, s[44:47], 0 offen')
    a('s_barrier')
    stamp(a, SV, 2)
    a.srd(56, 36, 3*32768, G.WS_W)
    a.srd(52, 16, G.N*256)
    a('s_cmp_lt_u32 s4, 8')
    a('s_cbranch_scc1 K2_J0')
    a('s_and_b32 s10, s4, 7')
    a('s_lshl_b32 s10, s10, 12')
    for i in range(4):
        a(f'buffer_load_dwordx4 {vr(D1+4*i,4)}, v15, s[56:59], s10 offen offset:{i*1024}')
    a('s_branch K2_J3')
    a.label('K2_J0')
    a('s_cmp_ge_u32 s4, 5')
    a('s_cbranch_scc1 K2_J1')
    a(f's_mul_i32 s10, s2, {G.NPB*256}')
    a('s_lshl_b32 s11, s4, 11')
    a('s_add_u32 s10, s10, s11')
    a(f'v_lshrrev_b32 v16, 4, v{LANE}')
    a('s_and_b32 s12, s4, 1')
    a('s_lshl_b32 s12, s12, 3')
    a('v_or_b32 v17, s12, v16')
    a(f'v_and_b32 v18, 15, v{LANE}')
    a('v_xor_b32 v17, v17, v18')
    a('v_lshlrev_b32 v17, 4, v17')
    a('v_lshl_add_u32 v17, v16, 8, v17')
    a(f's_add_u32 m0, s11, {HS}')
    a('v_xor_b32 v18, 64, v17')
    a('buffer_load_dwordx4 v17, s[52:55], s10 offen lds')
    a(f's_add_u32 m0, s11, {HS+1024}')
    a('s_add_u32 s10, s10, 1024')
    a('buffer_load_dwordx4 v18, s[52:55], s10 offen lds')
    a('s_branch K2_J3')
    a.label('K2_J1')
    a('s_cmp_eq_u32 s4, 7')
    a('s_cbranch_scc1 K2_J3')
    a('s_cmp_eq_u32 s4, 5')
    a('s_cbranch_scc1 K2_J2')
    a.srd(72, 28, 256)
    a(f's_mov_b32 m0, {WX}')
    a('s_mov_b64 exec, 0xffff')
    a('buffer_load_dwordx4 v15, s[72:75], 0 offen lds')
    a('s_mov_b64 exec, -1')
    a('s_branch K2_J3')
    a.label('K2_J2')
    a.srd(72, 36, 1024, G.WS_WDE)
    a(f's_mov_b32 m0, {WDEL}')
    a('s_nop 0')
    a('buffer_load_dwordx4 v15, s[72:75], 0 offen lds')
    a.label('K2_J3')
    a.srd(48, 36, G.N*256, G.WS_B)
    a.srd(64, 36, G.N*8, G.WS_P8)
    a.srd(60, 18, G.N*6)
    a.srd(68, 32, G.N*256 + G.N*6)
    a('s_mov_b32 s77, 0x003fff00')
    a('s_mov_b32 s76, 1')
    a(f'v_and_b32 v13, 31, v{LANE}')
    a(f'v_lshrrev_b32 v14, 5, v{LANE}')
    a('v_bfe_u32 v15, v13, 2, 1')
    a('v_lshlrev_b32 v15, 4, v15')
    a('v_lshrrev_b32 v16, 3, v13')
    a('v_lshl_add_u32 v15, v16, 2, v15')
    a('v_and_b32 v16, 3, v13')
    a('v_add_u32 v15, v15, v16')
    a('v_lshlrev_b32 v15, 1, v15')
    a('v_lshl_add_u32 v15, v14, 9, v15')
    a(f'v_add_u32 v{V_CB}, s9, v15')
    def tile0_addresses():
        a('s_lshl_b32 s10, s7, 11')
        a(f's_add_u32 s10, s10, {X1}')
        a('v_lshlrev_b32 v15, 4, v13')
        a(f'v_add_u32 v{V_X1B}, s10, v15')
        a(f's_mul_i32 s10, s7, {4*X2T}')
        a('v_min_u32 v15, 19, v13')
        a('v_lshlrev_b32 v15, 4, v15')
        a('v_mul_u32_u24 v16, 320, v14')
        a(f'v_add3_u32 v{V_X2B}, s10, v15, v16')
        a('s_lshl_b32 s10, s7, 9')
        a(f's_add_u32 s10, s10, {RAW}')
        a(f'v_lshrrev_b32 v15, 3, v{LANE}')
        a('v_lshlrev_b32 v15, 2, v15')
        a(f'v_add_u32 v{V_RAWB}, s10, v15')
    tile0_addresses()
    a('s_lshl_b32 s11, s6, 7')
    a(f'v_and_b32 v15, 7, v{LANE}')
    a('v_lshlrev_b32 v15, 4, v15')
    a(f'v_add_u32 v{V_GOFF}, s11, v15')
    a(f'v_and_b32 v16, 15, v{LANE}')
    a('v_lshrrev_b32 v17, 2, v16')
    a('v_and_b32 v16, 3, v16')
    a('v_and_b32 v18, 1, v16')
    a('v_lshlrev_b32 v18, 5, v18')
    a('v_lshrrev_b32 v16, 1, v16')
    a('v_lshl_add_u32 v18, v16, 3, v18')
    a(f'v_bfe_u32 v16, v{LANE}, 4, 1')
    a('v_lshl_add_u32 v18, v16, 4, v18')
    a('s_lshl_b32 s10, s6, 7')
    a('v_add_u32 v18, s10, v18')
    a(f's_mul_i32 s11, s7, {5*ARS}')
    a(f'v_cmp_lt_u32 vcc, 31, v{LANE}')
    a('v_cmp_gt_u32 s[80:81], 2, v17')
    a('v_cmp_gt_u32 s[82:83], 3, v17')
    a(f's_add_u32 s12, s11, {AR - 2*ARS}')
    a(f'v_mul_u32_u24 v13, {ARS}, v17')
    a('v_add_u32 v13, s12, v13')
    a('v_lshlrev_b32 v14, 8, v17')
    a(f'v_add_u32 v15, {WDEL}, v14')
    a('v_cndmask_b32 v13, v13, v15, s[80:81]')
    a(f'v_add_u32 v15, {WDEL+512}, v14')
    a(f'v_mov_b32 v16, {Z}')
    a('v_cndmask_b32 v15, v16, v15, s[80:81]')
    a('v_cndmask_b32 v13, v13, v15, vcc')
    a(f'v_add_u32 v{VY0}, v13, v18')
    a(f's_add_u32 s12, s11, {AR + 2*ARS}')
    a(f'v_mul_u32_u24 v13, {ARS}, v17')
    a('v_add_u32 v13, s12, v13')
    a('v_cndmask_b32 v13, v16, v13, s[82:83]')
    a('v_cndmask_b32 v13, v13, v16, vcc')
    a(f'v_add_u32 v{VY1}, v13, v18')
    for i in range(32):
        a(f'v_mov_b32 v{ACC+i}, 0')
    a('s_mov_b32 s92, 0')
    a('s_cmp_ge_u32 s4, 8')
    a('s_cbranch_scc1 K2_W5')
    a('s_cmp_lt_u32 s4, 5')
    a('s_cbranch_scc1 K2_W3')
    a('s_cmp_eq_u32 s4, 7')
    a('s_cbranch_scc1 K2_W1')
    a('s_waitcnt vmcnt(2)')
    a('s_branch K2_WD')
    a.label('K2_W1')
    a('s_waitcnt vmcnt(1)')
    a('s_branch K2_WD')
    a.label('K2_W3')
    a('s_waitcnt vmcnt(3)')
    a('s_branch K2_WD')
    a.label('K2_W5')
    a('s_waitcnt vmcnt(5)')
    a.label('K2_WD')
    stamp(a, SV, 3)
    a(f'v_cmp_ne_u32 vcc, -1, v{RR}')
    a(f'v_cmp_gt_i32 s[84:85], 0, v{RR}')
    a(f'v_mov_b32 v{RR+2}, -1')
    a(f'v_cndmask_b32 v{PEND}, 0, 1, vcc')
    a('s_and_b64 s[84:85], s[84:85], vcc')
    a('s_cmp_eq_u64 s[84:85], 0')
    a('s_cbranch_scc1 K2_ROUND')
    a.srd(72, 36, G.C_BYTES, G.WS_C2)
    a('s_mov_b64 exec, s[84:85]')
    a(f'buffer_load_dwordx2 {vr(RR+2,2)}, v19, s[72:75], s8 offen')
    a('s_mov_b64 exec, -1')

    PSA = 56; PDA = 58; PSB = 60; PDB = 62
    def phase1(w0, ps, pd, S, pm):
        a(f'v_and_b32 v14, 0x38, v{w0}')
        a(f'ds_add_rtn_u32 v16, v14, v12 offset:{CNT}')
        a('s_mov_b64 exec, -1')
        a(f'v_bfe_u32 v13, v{w0}, 8, 14')
        a('v_lshlrev_b32 v13, 3, v13')
        a(f'v_and_b32 v14, 0x38, v{w0}')
        a(f'v_and_b32 v15, 7, v{w0}')
        a('v_lshlrev_b32 v15, 3, v15')
        a('v_mad_u32_u24 v15, v14, 5, v15')
        a(f'buffer_load_dwordx2 {vr(ps,2)}, v13, s[64:67], 0 offen')
        a(f'buffer_load_dwordx2 {vr(pd,2)}, v15, s[64:67], s78 offen')
        a('s_mov_b64 exec, s[80:81]')
        a('s_waitcnt lgkmcnt(0)')
        a(f'v_cmp_gt_u32 vcc, {CAP}, v16')
        a(f'v_lshl_add_u32 v{S}, v14, 4, v16')
        a('s_and_b64 exec, exec, vcc')
        a(f's_mov_b64 s[{pm}:{pm+1}], exec')
        a(f'v_lshlrev_b32 v13, 2, v{S}')
        a(f'ds_write_b32 v13, v{w0} offset:{RAW}')
    def xaddr(w0, S, o1, o2):
        a(f'v_lshlrev_b32 v{o1}, 4, v{S}')
        a(f'v_lshrrev_b32 v16, 5, v{S}')
        a(f'v_mul_u32_u24 v16, {X2T}, v16')
        a(f'v_bfe_u32 v17, v{S}, 4, 1')
        a(f'v_bfe_u32 v18, v{S}, 2, 1')
        a('v_lshl_add_u32 v17, v17, 1, v18')
        a('v_mul_u32_u24 v17, 320, v17')
        a(f'v_and_b32 v18, 8, v{S}')
        a('v_add3_u32 v16, v16, v17, v18')
        a(f'v_and_b32 v18, 3, v{S}')
        a('v_lshl_add_u32 v16, v18, 1, v16')
        a(f'v_and_b32 v17, 7, v{w0}')
        a(f'v_lshl_add_u32 v{o1+1}, v17, 1, v{o1}')
        a(f'v_lshl_add_u32 v{o2}, v17, 6, v16')
    def xbuild(ea, ps, pd, o1, o2, pm):
        a(f'v_lshlrev_b32 v64, 16, v{pd}')
        a(f'v_and_b32 v65, 0xffff0000, v{pd}')
        a(f'v_lshlrev_b32 v66, 16, v{ps}')
        a(f'v_and_b32 v67, 0xffff0000, v{ps}')
        a(f'v_lshlrev_b32 v68, 16, v{pd+1}')
        a(f'v_lshlrev_b32 v69, 16, v{ps+1}')
        a('v_pk_add_f32 v[64:65], v[64:65], v[66:67] neg_lo:[0,1] neg_hi:[0,1]')
        a('v_sub_f32 v68, v68, v69')
        a('v_cvt_pk_bf16_f32 v70, v64, v65')
        a('v_cvt_pk_bf16_f32 v71, v68, v68')
        a('v_lshlrev_b32 v64, 16, v70')
        a('v_and_b32 v65, 0xffff0000, v70')
        a('v_lshlrev_b32 v66, 16, v71')
        a('v_mul_f32 v64, v64, v64')
        a('v_fma_f32 v64, v65, v65, v64')
        a('v_fma_f32 v64, v66, v66, v64')
        a('v_mov_b32 v69, 0x3f80')
        a(f'v_cvt_pk_bf16_f32 v64, v64, v{ea}')
        a(f's_mov_b64 exec, s[{pm}:{pm+1}]')
        a(f'ds_write_b32 v{o1}, v64 offset:{X1}')
        a(f'ds_write_b16 v{o1+1}, v69 offset:{X1+4}')
        a(f'ds_write_b16 v{o2}, v69 offset:{X2}')
        a(f'ds_write_b16 v{o2}, v70 offset:{X2+16}')
        a(f'ds_write_b16_d16_hi v{o2}, v70 offset:{X2+32}')
        a(f'ds_write_b16 v{o2}, v71 offset:{X2+48}')
        a('s_mov_b64 exec, -1')
    def dma0():
        for i in range(4):
            a(f'ds_read_b32 v{DA+i}, v{V_RAWB} offset:{32*i}')
        a('s_waitcnt lgkmcnt(0)')
        for i in range(4):
            a(f'v_and_or_b32 v{DA+i}, v{DA+i}, s77, v{V_GOFF}')
        for i in range(4):
            a(f's_add_u32 m0, s9, {i*1024}')
            a('s_nop 0')
            a(f'buffer_load_dwordx4 v{DA+i}, s[48:51], 0 offen lds')

    a.label('K2_ROUND')
    a('v_mov_b32 v12, 1')
    a(f'v_and_b32 v13, 1, v{PEND}')
    a('v_cmp_ne_u32 s[80:81], 0, v13')
    a('s_mov_b64 exec, s[80:81]')
    phase1(RR, PSA, PDA, SA, 96)
    a(f'v_and_b32 v{PEND}, 2, v{PEND}')
    a('s_mov_b64 exec, -1')
    a('s_cmp_ge_u32 s4, 8')
    a('s_cbranch_scc1 K2_RB')
    a('s_waitcnt vmcnt(2)')
    a.label('K2_RB')
    a('s_waitcnt lgkmcnt(0)')
    a('s_barrier')
    stamp(a, SV, 4)
    a('s_mov_b32 s95, 0')
    a('s_cmp_lg_u64 s[84:85], 0')
    a('s_cbranch_scc1 K2_LATE')
    a('s_cmp_ge_u32 s4, 4')
    a('s_cbranch_scc1 K2_C1')
    dma0()
    a('s_mov_b32 s95, 1')
    xaddr(RR, SA, 72 if False else 44, 46)
    a('s_waitcnt vmcnt(4)')
    xbuild(RR+1, PSA, PDA, 44, 46, 96)
    a('s_branch K2_C3')
    a.label('K2_C1')
    xaddr(RR, SA, 44, 46)
    a('s_waitcnt vmcnt(0)')
    xbuild(RR+1, PSA, PDA, 44, 46, 96)
    a('s_cmp_ge_u32 s4, 8')
    a('s_cbranch_scc1 K2_C3')
    dma0()
    a('s_mov_b32 s95, 1')
    a('s_branch K2_C3')
    a.label('K2_LATE')
    a('s_waitcnt vmcnt(2)')
    a(f'v_cmp_ne_u32 vcc, -1, v{RR+2}')
    a('s_and_b64 s[80:81], s[84:85], vcc')
    a('s_mov_b64 s[82:83], s[80:81]')
    a('s_mov_b64 exec, s[80:81]')
    a(f'v_and_b32 v14, 0x38, v{RR+2}')
    a(f'ds_add_u32 v14, v12 offset:{CNT+4}')
    phase1(RR+2, PSB, PDB, SB, 98)
    a('s_mov_b64 exec, -1')
    a('s_andn2_b64 s[82:83], s[82:83], s[98:99]')
    a(f'v_and_b32 v{PEND}, 1, v{PEND}')
    a(f'v_cndmask_b32 v13, 0, 2, s[82:83]')
    a(f'v_or_b32 v{PEND}, v{PEND}, v13')
    xaddr(RR, SA, 44, 46)
    a('s_waitcnt vmcnt(2)')
    xbuild(RR+1, PSA, PDA, 44, 46, 96)
    xaddr(RR+2, SB, 44, 46)
    a('s_waitcnt vmcnt(0)')
    xbuild(RR+3, PSB, PDB, 44, 46, 98)
    a.label('K2_C3')
    stamp(a, SV, 5)
    a(f'v_cmp_ne_u32 vcc, 0, v{PEND}')
    a(f'v_mov_b32 v13, {FLAG}')
    a('s_mov_b64 exec, vcc')
    a('ds_write_b32 v13, v12')
    a('s_mov_b64 exec, -1')
    a('s_cmp_eq_u32 s76, 0')
    a('s_cbranch_scc1 K2_C4')
    a('s_cmp_lt_u32 s4, 8')
    a('s_cbranch_scc1 K2_C4')
    BB = (20, 24, 28, 44)
    AU = 32
    a(f'v_and_b32 v18, 15, v{LANE}')
    a(f'v_lshrrev_b32 v19, 4, v{LANE}')
    a('v_xor_b32 v17, v19, v18')
    a('v_lshlrev_b32 v17, 4, v17')
    a('v_lshl_add_u32 v16, v18, 8, v17')
    a(f'v_add_u32 v16, {AR}, v16')
    a('v_xor_b32 v13, 64, v16')
    a('v_xor_b32 v14, 128, v16')
    a('v_xor_b32 v15, 192, v16')
    XA0 = (16, 13, 14, 15)
    a(f's_mov_b32 s88, {G.NLOG2E}'); a(f's_mov_b32 s89, {G.NLOG2E}')
    for job in range(3):
        for s in range(4):
            a(f'ds_read_b128 {vr(BB[s],4)}, v{XA0[s]} offset:{HS - AR + job*4096}')
        for s in range(4):
            a(f's_waitcnt lgkmcnt({3-s})')
            u = vr(AU+4*job, 4)
            a(f'v_mfma_f32_16x16x32_bf16 {u}, {vr(D1+4*s,4)}, {vr(BB[s],4)}, {"0" if s == 0 else u}')
    a(f'v_mul_u32_u24 v16, {ARS}, v18')
    a('v_lshl_add_u32 v16, v19, 3, v16')
    a('s_and_b32 s10, s4, 7')
    a('s_lshl_b32 s10, s10, 5')
    a(f's_add_u32 s10, s10, {AR}')
    a('v_add_u32 v16, s10, v16')
    a('v_cmp_gt_u32 vcc, 8, v18')
    a('s_nop 2')
    for job in range(3):
        u = AU + 4*job
        a(f'v_pk_mul_f32 {vr(u,2)}, {vr(u,2)}, s[88:89]')
        a(f'v_pk_mul_f32 {vr(u+2,2)}, {vr(u+2,2)}, s[88:89]')
        a(f'v_cvt_pk_bf16_f32 v{u}, v{u}, v{u+1}')
        a(f'v_cvt_pk_bf16_f32 v{u+1}, v{u+2}, v{u+3}')
        if job == 2: a('s_mov_b64 exec, vcc')
        a(f'ds_write_b64 v16, {vr(u,2)} offset:{job*16*ARS}')
    a('s_mov_b64 exec, -1')
    a.label('K2_C4')
    for i in range(8):
        a(f'v_mov_b32 v{MP+i}, 0')
    stamp(a, SV, 6)
    a('s_waitcnt lgkmcnt(0)')
    a('s_barrier')
    stamp(a, SV, 7)
    a('s_lshl_b32 s10, s7, 3')
    a('v_mov_b32 v13, s10')
    a(f'ds_read_b64 v[14:15], v13 offset:{CNT}')
    a(f'v_mov_b32 v13, {FLAG}')
    a('ds_read_b32 v16, v13')
    a('s_cmp_eq_u32 s76, 0')
    a('s_cbranch_scc1 K2_SKIPY')
    a(f'v_cmp_ne_u32 vcc, 0, v{OVCV}')
    a('s_mov_b64 s[90:91], vcc')
    for ct in range(2):
        a(f'ds_read_b64_tr_b16 {vr(Y1+4*ct,2)}, v{VY0} offset:{64*ct}')
        a(f'ds_read_b64_tr_b16 {vr(Y1+4*ct+2,2)}, v{VY1} offset:{64*ct}')
    a.label('K2_SKIPY')
    a(f'ds_read_b128 {vr(X1R,4)}, v{V_X1B}')
    a('s_cmp_eq_u32 s95, 0')
    a('s_cbranch_scc1 K2_D0')
    a('s_waitcnt lgkmcnt(0)')
    a('v_readfirstlane_b32 s8, v14')
    a('v_readfirstlane_b32 s79, v15')
    a('s_cmp_eq_u32 s79, 0')
    a('s_cbranch_scc1 K2_D1')
    a('s_sub_u32 s79, s8, s79')
    a('s_cmp_ge_u32 s79, 32')
    a('s_cbranch_scc1 K2_D1')
    a.label('K2_D0')
    dma0()
    a('v_readfirstlane_b32 s8, v14')
    a.label('K2_D1')
    a('v_readfirstlane_b32 s93, v16')
    a(f's_min_u32 s8, s8, {CAP}')
    def dma_rows(lab):
        for i in range(4):
            a(f's_cmp_le_u32 s12, {i}')
            a(f's_cbranch_scc1 {lab}')
            a(f's_add_u32 m0, s9, {i*1024}')
            a('s_nop 0')
            a(f'buffer_load_dwordx4 v{DA+i}, s[48:51], 0 offen lds')
        a.label(lab)

    def quad(d, mp):
        e = EE
        for i in range(4): a(f'v_exp_f32 v{e+i}, v{d+i}')
        a(f'v_pk_add_f32 {vr(e,2)}, {vr(e,2)}, 1.0 op_sel_hi:[1,0]')
        a(f'v_pk_add_f32 {vr(e+2,2)}, {vr(e+2,2)}, 1.0 op_sel_hi:[1,0]')
        for i in range(4): a(f'v_rcp_f32 v{e+i}, v{e+i}')
        a(f'v_pk_mul_f32 {vr(d,2)}, {vr(d,2)}, {vr(e,2)}')
        a(f'v_pk_mul_f32 {vr(d+2,2)}, {vr(d+2,2)}, {vr(e+2,2)}')
        a(f'v_cvt_pk_bf16_f32 v{mp}, v{d}, v{d+1}')
        a(f'v_cvt_pk_bf16_f32 v{mp+1}, v{d+2}, v{d+3}')
    def creads(d, ct):
        for q in range(4):
            for i in range(4):
                a(f'ds_read_u16_d16_hi v{d+4*q+i}, v{V_CB} offset:{(8*q+i)*128 + 64*ct}')
    def front(d, ct):
        a(f'v_mfma_f32_32x32x16_bf16 {vr(d,16)}, {vr(X1R,4)}, {vr(Y1+4*ct,4)}, {vr(d,16)}')
    def back(ct, m, pad=True):
        acc = vr(ACC+16*ct, 16)
        if pad: a('s_nop 1')
        a(f'v_mfma_f32_32x32x16_bf16 {acc}, {vr(MP+4*m,4)}, {vr(X2R+4*m,4)}, {acc}')
    def wdma():
        lab = a.newlabel('K2_WD')
        a('s_cmp_ge_u32 s4, 8')
        a(f's_cbranch_scc1 {lab}')
        a(f'v_lshlrev_b32 v15, 4, v{LANE}')
        a('s_lshl_b32 s10, s4, 12')
        a('s_add_u32 s10, s10, 32768')
        for i in range(4):
            a(f's_add_u32 m0, s9, {i*1024}')
            if i: a('s_add_u32 s10, s10, 1024')
            else: a('s_nop 0')
            a(f'buffer_load_dwordx4 v15, s[56:59], s10 offen lds')
        a.label(lab)
    def w2load():
        lab = a.newlabel('K2_W2')
        a('s_cmp_ge_u32 s4, 8')
        a(f's_cbranch_scc1 {lab}')
        a(f'v_lshlrev_b32 v15, 4, v{LANE}')
        a('s_lshl_b32 s10, s4, 12')
        a('s_add_u32 s10, s10, 65536')
        for s in range(4):
            a(f'buffer_load_dwordx4 {vr(D0+4*s,4)}, v15, s[56:59], s10 offen offset:{s*1024}')
        a.label(lab)
    def setprio(levels):
        if not PRIO: return
        end = a.newlabel('K2_PE')
        for (rem_le, pr) in levels[:-1]:
            nxt = a.newlabel('K2_PN')
            a(f's_cmp_gt_u32 s8, {rem_le}')
            a(f's_cbranch_scc1 {nxt}')
            a(f's_setprio {pr}')
            a(f's_branch {end}')
            a.label(nxt)
        a(f's_setprio {levels[-1][1]}')
        a.label(end)

    a('s_cmp_eq_u32 s8, 0')
    a('s_cbranch_scc1 K2_EMPTY')
    a('s_waitcnt vmcnt(0)')
    stamp(a, SV, 8)
    creads(D0, 0)
    a('s_waitcnt lgkmcnt(0)')
    front(D0, 0)
    a('s_nop 7')
    a('s_cmp_gt_u32 s8, 32')
    a('s_nop 1')
    a('s_cbranch_scc0 K2_LAST')
    a.label('K2_FULL')
    if PRIO: a('s_setprio 3')
    creads(D1, 1)
    a(f'ds_read_b128 {vr(X2R,4)}, v{V_X2B}')
    a(f'ds_read_b128 {vr(X2R+4,4)}, v{V_X2B} offset:640')
    for i in range(4):
        a(f'ds_read_b32 v{DA+i}, v{V_RAWB} offset:{128 + 32*i}')
    a('s_sub_u32 s11, s8, 32')
    a('s_add_u32 s12, s11, 7')
    a('s_lshr_b32 s12, s12, 3')
    a('s_min_u32 s12, s12, 4')
    quad(D0, MP); quad(D0+4, MP+2)
    a('s_waitcnt lgkmcnt(0)')
    back(0, 0)
    for i in range(4):
        a(f'v_and_or_b32 v{DA+i}, v{DA+i}, s77, v{V_GOFF}')
    quad(D0+8, MP+4)
    front(D1, 1)
    dma_rows(a.newlabel('K2_ND'))
    quad(D0+12, MP+6)
    back(0, 1)
    setprio([(64, 2), (None, 3)])
    quad(D1, MP); quad(D1+4, MP+2)
    back(1, 0)
    a('s_waitcnt vmcnt(0)')
    creads(D0, 0)
    a(f'ds_read_b128 {vr(X1R,4)}, v{V_X1B} offset:512')
    a(f'v_add_u32 v{V_RAWB}, 128, v{V_RAWB}')
    a(f'v_add_u32 v{V_X1B}, 512, v{V_X1B}')
    a(f'v_add_u32 v{V_X2B}, {X2T}, v{V_X2B}')
    quad(D1+8, MP+4)
    a('s_waitcnt lgkmcnt(0)')
    front(D0, 0)
    quad(D1+12, MP+6)
    back(1, 1)
    a('s_mov_b32 s8, s11')
    a('s_cmp_gt_u32 s8, 32')
    a('s_cbranch_scc1 K2_FULL')
    a.label('K2_LAST')
    if PRIO: a('s_setprio 1')
    a('s_add_u32 s10, s8, 7')
    a('s_lshr_b32 s14, s10, 3')
    creads(D1, 1)
    a(f'ds_read_b128 {vr(X2R,4)}, v{V_X2B}')
    a(f'ds_read_b128 {vr(X2R+4,4)}, v{V_X2B} offset:640')
    def skip_lt(n):
        lab = a.newlabel('K2_S')
        a(f's_cmp_lt_u32 s14, {n}')
        a(f's_cbranch_scc1 {lab}')
        return lab
    quad(D0, MP)
    l = skip_lt(2); quad(D0+4, MP+2); a.label(l)
    a('s_waitcnt lgkmcnt(0)')
    back(0, 0)
    l = skip_lt(3); quad(D0+8, MP+4); a.label(l)
    front(D1, 1)
    wdma()
    l3 = skip_lt(3)
    l = skip_lt(4); quad(D0+12, MP+6); a.label(l)
    back(0, 1)
    a.label(l3)
    w2load()
    if PRIO: a('s_setprio 0')
    quad(D1, MP)
    l = skip_lt(2); quad(D1+4, MP+2); a.label(l)
    back(1, 0)
    l3 = skip_lt(3)
    quad(D1+8, MP+4)
    l = skip_lt(4); quad(D1+12, MP+6); a.label(l)
    back(1, 1)
    a.label(l3)
    a('s_branch K2_LOOP_END')
    a.label('K2_EMPTY')
    a('s_waitcnt vmcnt(0) lgkmcnt(0)')
    wdma()
    w2load()
    a.label('K2_LOOP_END')
    stamp(a, SV, 9)
    a('s_or_b32 s10, s90, s91')
    a('s_or_b32 s10, s10, s93')
    a('s_cmp_eq_u32 s10, 0')
    a('s_cbranch_scc1 K2_EPI')
    a('s_waitcnt vmcnt(0) lgkmcnt(0)')
    a('s_barrier')
    zero_lds()
    a(f'v_and_b32 v13, 31, v{LANE}')
    a(f'v_lshrrev_b32 v14, 5, v{LANE}')
    tile0_addresses()
    a('s_mov_b32 s76, 0')
    a('s_cmp_lg_u32 s93, 0')
    a('s_cbranch_scc1 K2_NOREFILL')
    a('s_ff1_i32_b64 s94, s[90:91]')
    a.srd(44, 36, G.OVF_BYTES, G.WS_OVF)
    a.srd(72, 36, 256, G.WS_OVC)
    a('s_lshl_b32 s10, s94, 2')
    a('v_mov_b32 v16, s10')
    a('buffer_load_dword v17, v16, s[72:75], 0 offen')
    a(f's_mul_i32 s11, s94, {G.CH*16}')
    a('v_add_u32 v16, s92, v0')
    a('v_lshlrev_b32 v18, 4, v16')
    a('buffer_load_dwordx4 v[60:63], v18, s[44:47], s11 offen')
    a('s_waitcnt vmcnt(0)')
    a('v_cmp_lt_u32 vcc, v16, v17')
    a('v_cmp_eq_u32 s[80:81], s2, v62')
    a('s_and_b64 vcc, vcc, s[80:81]')
    a('s_nop 1')
    a(f'v_cndmask_b32 v{RR}, -1, v60, vcc')
    a(f'v_mov_b32 v{RR+1}, v61')
    a(f'v_cndmask_b32 v{PEND}, 0, 1, vcc')
    a(f'v_mov_b32 v{RR+2}, -1')
    a('v_readfirstlane_b32 s10, v17')
    a('s_add_u32 s92, s92, 1024')
    a('s_cmp_lt_u32 s92, s10')
    a('s_cbranch_scc1 K2_NOREFILL')
    a('s_bitset0_b64 s[90:91], s94')
    a('s_mov_b32 s92, 0')
    a.label('K2_NOREFILL')
    a(f'v_and_b32 v13, 2, v{PEND}')
    a('v_cmp_ne_u32 s[84:85], 0, v13')
    a('s_waitcnt lgkmcnt(0)')
    a('s_barrier')
    a('s_branch K2_ROUND')

    a.label('K2_EPI')
    A2 = D0; A1 = D1
    P = ACC; ZD = ACC + 16
    WXA = 32
    U = (48, 52, 120)
    BBR = (16, 20, 24, 28)
    XA = (8, 9, 10, 11)
    IDX = 124
    a(f'v_subrev_u32 v{IDX}, 512, v0')
    a(f's_mul_i32 s5, s2, {G.NPB*6}')
    a(f'v_lshlrev_b32 v18, 1, v{IDX}')
    a('s_lshr_b32 s10, s4, 1')
    a('s_cmp_lg_u32 s10, 4')
    a('s_cbranch_scc1 K2_E0')
    a(f'buffer_load_short_d16_hi v{POSV}, v18, s[60:63], s5 offen')
    a.label('K2_E0')
    a(f'v_and_b32 v13, 31, v{LANE}')
    a(f'v_lshrrev_b32 v14, 5, v{LANE}')
    a('s_lshl_b32 s10, s6, 7')
    a('v_lshlrev_b32 v16, 5, v14')
    a('v_add_u32 v16, s10, v16')
    for k in range(4):
        a(f'ds_read_b128 {vr(WXA+4*k,4)}, v16 offset:{WX + (k>>1)*64 + (k&1)*16}')
    a('v_lshrrev_b32 v16, 2, v13')
    a('s_mul_i32 s11, s7, 5')
    a('v_add_u32 v16, s11, v16')
    a('v_and_b32 v17, 15, v16')
    a('s_lshl_b32 s10, s6, 3')
    a('v_lshl_add_u32 v18, v14, 1, s10')
    a('v_xor_b32 v17, v17, v18')
    a('v_lshlrev_b32 v17, 4, v17')
    a('v_lshl_add_u32 v17, v16, 8, v17')
    a('v_and_b32 v18, 3, v13')
    a('v_cmp_eq_u32 vcc, 0, v18')
    a('v_cmp_gt_u32 s[80:81], 20, v13')
    a('v_lshlrev_b32 v18, 2, v18')
    a('v_lshl_add_u32 v16, v16, 4, v18')
    a('s_and_b64 s[82:83], vcc, s[80:81]')
    a('s_andn2_b64 s[84:85], s[80:81], vcc')
    a('s_mov_b32 s85, 0')
    for ct in range(2):
        for p in range(8):
            a(f'v_cvt_pk_bf16_f32 v{P+8*ct+p}, v{ACC+16*ct+2*p}, v{ACC+16*ct+2*p+1}')
    a('s_mov_b64 exec, s[82:83]')
    for k in range(4):
        ct, h2 = k >> 1, k & 1
        x = (4*ct + h2) * 16
        if x: a(f'v_xor_b32 v18, {x}, v17')
        a(f'ds_write_b128 v{18 if x else 17}, {vr(P+8*ct+4*h2,4)} offset:{TM}')
    a('s_mov_b64 exec, -1')
    a('s_waitcnt lgkmcnt(4)')
    a('s_nop 2')
    for k in range(4):
        a(f'v_mfma_f32_32x32x16_bf16 {vr(ZD,16)}, {vr(WXA+4*k,4)}, {vr(P+4*k,4)}, {"0" if k == 0 else vr(ZD,16)}')
    a(f's_mov_b32 s86, {G.NLN2}'); a(f's_mov_b32 s87, {G.NLN2}')
    a(f's_mov_b32 s88, {G.NLOG2E}'); a(f's_mov_b32 s89, {G.NLOG2E}')
    a('s_cmp_lt_u32 s4, 8')
    a('s_cbranch_scc1 K2_EG')
    a('s_nop 7'); a('s_nop 7')
    a('s_mov_b64 exec, s[84:85]')
    a(f'ds_add_f32 v16, v{ZD} offset:{Z}')
    a('s_mov_b64 exec, -1')
    a('s_waitcnt lgkmcnt(0)')
    stamp(a, SV, 10)
    a('s_barrier')
    stamp(a, SV, 11)
    a('s_lshr_b32 s10, s4, 1')
    a('s_cmp_lg_u32 s10, 4')
    a('s_cbranch_scc1 K2_FIN')
    a(f'v_mul_u32_u24 v13, 171, v{IDX}')
    a('v_lshrrev_b32 v13, 9, v13')
    a('v_mul_u32_u24 v14, 3, v13')
    a(f'v_sub_u32 v14, v{IDX}, v14')
    a('v_lshlrev_b32 v14, 2, v14')
    a('v_lshl_add_u32 v13, v13, 4, v14')
    a(f'ds_read_b32 v16, v13 offset:{Z+4}')
    a(f'v_lshlrev_b32 v15, 1, v{IDX}')
    a(f'v_cmp_gt_u32 vcc, 120, v{IDX}')
    a(f's_add_u32 s5, s5, {G.N*256}')
    a('s_waitcnt vmcnt(0) lgkmcnt(0)')
    a(f'v_fma_f32 v16, s86, v16, v{POSV}')
    a('v_cvt_pk_bf16_f32 v16, v16, v16')
    a('s_mov_b64 exec, vcc')
    a('buffer_store_short v16, v15, s[68:71], s5 offen')
    a('s_branch K2_FIN')
    a.label('K2_EG')
    a(f'v_lshlrev_b32 v17, 4, v{LANE}')
    a('v_add_u32 v17, s9, v17')
    a('s_waitcnt vmcnt(4)')
    for s in range(4):
        a(f'ds_read_b128 {vr(A1+4*s,4)}, v17 offset:{s*1024}')
    a('s_mov_b64 exec, s[84:85]')
    a(f'ds_add_f32 v16, v{ZD} offset:{Z}')
    a('s_mov_b64 exec, -1')
    a(f'v_and_b32 v18, 15, v{LANE}')
    a(f'v_lshrrev_b32 v19, 4, v{LANE}')
    a('v_xor_b32 v17, v19, v18')
    a('v_lshlrev_b32 v17, 4, v17')
    a(f'v_lshl_add_u32 v{XA[0]}, v18, 8, v17')
    a(f'v_add_u32 v{XA[0]}, {TM}, v{XA[0]}')
    for s in range(1, 4):
        a(f'v_xor_b32 v{XA[s]}, {64*s}, v{XA[0]}')
    for job in range(3):
        for s in range(4):
            a(f'ds_read_b128 {vr(BBR[s],4)}, v{XA[s]} offset:{HS - TM + job*4096}')
        for s in range(4):
            a(f's_waitcnt lgkmcnt({3-s})')
            u = vr(U[job], 4)
            a(f'v_mfma_f32_16x16x32_bf16 {u}, {vr(A1+4*s,4)}, {vr(BBR[s],4)}, {"0" if s == 0 else u}')
    a(f'v_and_b32 v18, 15, v{LANE}')
    a(f'v_lshrrev_b32 v19, 4, v{LANE}')
    a('v_lshrrev_b32 v13, 1, v19')
    a('s_lshl_b32 s10, s4, 1')
    a('v_add_u32 v13, s10, v13')
    a('v_xor_b32 v13, v13, v18')
    a('v_lshlrev_b32 v13, 4, v13')
    a('v_lshl_add_u32 v13, v18, 8, v13')
    a('v_and_b32 v14, 1, v19')
    a('v_lshl_add_u32 v13, v14, 3, v13')
    a(f'v_add_u32 v13, {TM}, v13')
    for job in range(3):
        a(f'ds_read_b64 {vr(32+2*job,2)}, v13 offset:{HS - TM + job*4096}')
    a('v_lshlrev_b32 v15, 8, v18')
    a('v_lshl_add_u32 v15, v19, 3, v15')
    a('s_lshl_b32 s10, s4, 5')
    a(f's_mul_i32 s11, s2, {G.NPB*256}')
    a('s_add_u32 s11, s11, s10')
    a('v_cmp_gt_u32 s[80:81], 8, v18')
    for job in range(3):
        u = U[job]
        a(f'v_pk_mul_f32 {vr(u,2)}, {vr(u,2)}, s[88:89]')
        a(f'v_pk_mul_f32 {vr(u+2,2)}, {vr(u+2,2)}, s[88:89]')
    a('s_waitcnt lgkmcnt(0)')
    stamp(a, SV, 10)
    a('s_barrier')
    stamp(a, SV, 11)
    TB = (72, 88, 104)
    for job in range(3):
        for s in range(4):
            a(f'ds_read_b128 {vr(TB[job]+4*s,4)}, v{XA[s]} offset:{job*4096}')
    a('s_waitcnt vmcnt(0)')
    for job in range(3):
        for s in range(4):
            a(f's_waitcnt lgkmcnt({11 - 4*job - s})')
            u = vr(U[job], 4)
            a(f'v_mfma_f32_16x16x32_bf16 {u}, {vr(A2+4*s,4)}, {vr(TB[job]+4*s,4)}, {u}')
    def silu_job(job):
        u = U[job]; hb = 32 + 2*job
        for i in range(4): a(f'v_exp_f32 v{24+i}, v{u+i}')
        a(f'v_lshlrev_b32 v28, 16, v{hb}')
        a('v_pk_add_f32 v[24:25], v[24:25], 1.0 op_sel_hi:[1,0]')
        a('v_pk_add_f32 v[26:27], v[26:27], 1.0 op_sel_hi:[1,0]')
        for i in range(4): a(f'v_rcp_f32 v{24+i}, v{24+i}')
        a(f'v_and_b32 v29, 0xffff0000, v{hb}')
        a(f'v_lshlrev_b32 v30, 16, v{hb+1}')
        a(f'v_and_b32 v31, 0xffff0000, v{hb+1}')
        a(f'v_pk_mul_f32 {vr(u,2)}, {vr(u,2)}, v[24:25]')
        a(f'v_pk_mul_f32 {vr(u+2,2)}, {vr(u+2,2)}, v[26:27]')
        a(f'v_pk_fma_f32 v[28:29], {vr(u,2)}, s[86:87], v[28:29]')
        a(f'v_pk_fma_f32 v[30:31], {vr(u+2,2)}, s[86:87], v[30:31]')
        a(f'v_cvt_pk_bf16_f32 v{40+2*job}, v28, v29')
        a(f'v_cvt_pk_bf16_f32 v{41+2*job}, v30, v31')
    silu_job(0)
    a('buffer_store_dwordx2 v[40:41], v15, s[68:71], s11 offen')
    silu_job(1)
    a('s_add_u32 s11, s11, 4096')
    a('buffer_store_dwordx2 v[42:43], v15, s[68:71], s11 offen')
    silu_job(2)
    a('s_add_u32 s11, s11, 4096')
    a('s_mov_b64 exec, s[80:81]')
    a('buffer_store_dwordx2 v[44:45], v15, s[68:71], s11 offen')
    a.label('K2_FIN')
    a('s_mov_b64 exec, -1')
    stamp(a, SV, 12)
    if STAMP: a('s_waitcnt vmcnt(0)')
    stamp(a, SV, 13); stamp(a, SV, 14, True)
    if STAMP:
        a('v_lshlrev_b32 v127, 2, v0')
        a.srd(40, 36, 2 << 20, 0x1100000)
        a('s_lshl_b32 s38, s2, 12')
        a(f'buffer_store_dword v{SV}, v127, s[40:43], s38 offen')
    a.label('K2_END')
    a('s_endpgm')
    a.raw(G.kd(name, NV))
```

```python
import sys, os
from asmlib import Asm, vr, sr, stamp, stamp_flush, STAMP

N = 10000; E = 160000; D = 128
NCH = 64; CH = E // NCH
NPB = 40; NB = N // NPB
WS_B = 0
WS_W = 0x280000
WS_WDE = WS_W + 0x18000
WS_OVC = 0x2A0000
WS_P8 = 0x2B0000
WS_C1 = 0x300000
WS_C2 = 0x500000
C_BYTES = NB * NCH * 128
WS_OVF = 0xA00000
OVF_BYTES = E * 16
GN = 64
N_GEMM = (N + GN - 1) // GN
N_P8 = 5
N_TR = 6
K1_GRID = NCH + N_GEMM + N_P8 + N_TR + 1
K1_LDS = 66560
NLOG2E = 0xbfb8aa3b
NLN2 = 0xbf317218

HEADER = open('standalone__cheap_equivariant_egnn__graph.s.ref').read().split('; Override')[0]

def kd(name, vgpr, sgpr=102):
    acc = (vgpr + 3) // 4 * 4
    return f'''.section .rodata,"a"
.p2align 6
.amdhsa_kernel {name}
  .amdhsa_next_free_vgpr {vgpr}
  .amdhsa_next_free_sgpr {sgpr}
  .amdhsa_accum_offset {acc}
  .amdhsa_group_segment_fixed_size 0
  .amdhsa_kernarg_size 88
  .amdhsa_user_sgpr_count 2
  .amdhsa_user_sgpr_kernarg_segment_ptr 1
  .amdhsa_system_sgpr_workgroup_id_x 1
.end_amdhsa_kernel
.text
'''

def kernel_head(a, name):
    a.raw(f'.globl {name}')
    a.raw('.p2align 8')
    a.raw(f'.type {name},@function')
    a.label(name)

def load_kernargs(a):
    a('s_load_dwordx16 s[16:31], s[0:1], 0')
    a('s_load_dwordx4 s[32:35], s[0:1], 64')
    a('s_load_dwordx2 s[36:37], s[0:1], 80')

SC = os.environ.get('SC', ' sc1')

def gen_k1(a):
    name = 'egnn_prep_kernel'
    SV = 126
    kernel_head(a, name)
    a(f's_cmp_ge_u32 s2, {K1_GRID}')
    a('s_cbranch_scc1 K1_END')
    stamp(a, SV, 7, True); stamp(a, SV, 8)
    load_kernargs(a)
    a(f's_cmp_lt_u32 s2, {NCH}')
    a('s_cbranch_scc1 K1_BIN')
    a(f's_cmp_lt_u32 s2, {NCH + N_GEMM}')
    a('s_cbranch_scc1 K1_GEMM')
    a(f's_cmp_lt_u32 s2, {NCH + N_GEMM + N_TR}')
    a('s_cbranch_scc1 K1_TR')
    a(f's_cmp_lt_u32 s2, {NCH + N_GEMM + N_TR + N_P8}')
    a('s_cbranch_scc1 K1_P8')
    a('s_branch K1_WDE')
    def endstamps():
        stamp(a, SV, 4)
        if STAMP: a('s_waitcnt vmcnt(0)')
        stamp(a, SV, 5); stamp(a, SV, 6, True)
        if STAMP:
            a('v_lshlrev_b32 v125, 2, v0')
            a.srd(40, 36, 1 << 20, 0x1000000)
            a('s_mov_b64 exec, -1')
            a('s_lshl_b32 s38, s2, 12')
            a(f'buffer_store_dword v{SV}, v125, s[40:43], s38 offen')

    CNT = 64000; OVFC = 65024
    NE = 3
    a.label('K1_BIN')
    a('v_mov_b32 v4, -1'); a('v_mov_b32 v5, -1'); a('v_mov_b32 v6, -1'); a('v_mov_b32 v7, -1')
    a('v_lshlrev_b32 v3, 4, v0')
    a('v_lshlrev_b32 v1, 2, v0')
    a('v_lshlrev_b32 v2, 1, v0')
    a('v_mov_b32 v8, 0')
    a(f'v_cmp_gt_u32 vcc, 257, v0')
    a('s_and_saveexec_b64 s[70:71], vcc')
    a(f'ds_write_b32 v1, v8 offset:{CNT}')
    a('s_mov_b64 exec, s[70:71]')
    for k in range(3):
        a(f'ds_write_b128 v3, v[4:7] offset:{k*16384}')
    LASTV = (NB*256 - 3*16384)//16
    a(f'v_cmp_gt_u32 vcc, {LASTV}, v0')
    a('s_and_saveexec_b64 s[70:71], vcc')
    a(f'ds_write_b128 v3, v[4:7] offset:{3*16384}')
    a('s_mov_b64 exec, s[70:71]')
    a(f's_mul_i32 s60, s2, {CH*4}')
    a('s_add_u32 s61, s60, 4096')
    a('s_add_u32 s62, s60, 8192')
    a(f's_mul_i32 s63, s2, {CH*2}')
    a('s_add_u32 s64, s63, 4096')
    a('s_waitcnt lgkmcnt(0)')
    stamp(a, SV, 0, True); stamp(a, SV, 1)
    a.srd(40, 24, E*4)
    a.srd(44, 22, E*4)
    a.srd(48, 20, E*2)
    TAIL = CH - 2048
    a(f'v_cmp_gt_u32 vcc, {TAIL}, v0')
    a('s_mov_b64 s[68:69], vcc')
    def tail_on(j):
        if j == NE-1: a('s_mov_b64 exec, s[68:69]')
    def tail_off(j):
        if j == NE-1: a('s_mov_b64 exec, -1')
    for j in range(NE):
        tail_on(j)
        a(f'buffer_load_dword v{10+j}, v1, s[40:43], s{60+j} offen')
        tail_off(j)
    for j in range(NE):
        tail_on(j)
        a(f'buffer_load_dword v{15+j}, v1, s[44:47], s{60+j} offen')
        tail_off(j)
    for j in range(NE):
        tail_on(j)
        a(f'buffer_load_short_d16_hi v{41+2*j}, v2, s[48:51], s{63 + j//2} offen offset:{(j%2)*2048}')
        tail_off(j)
    a.srd(52, 36, C_BYTES, WS_C1)
    a.srd(88, 36, C_BYTES, WS_C2)
    a.srd(56, 36, OVF_BYTES, WS_OVF)
    a.srd(72, 36, NCH*4, WS_OVC)
    a('s_barrier')
    a('s_mov_b32 s65, 52429')
    a('v_mov_b32 v6, 1')
    for j in range(NE):
        a(f's_waitcnt vmcnt({3*NE-1-j})')
        a(f'v_mul_u32_u24 v{25+j}, s65, v{10+j}')
        a(f'v_lshrrev_b32 v{25+j}, 21, v{25+j}')
        a(f'v_mul_u32_u24 v7, 40, v{25+j}')
        a(f'v_sub_u32 v{10+j}, v{10+j}, v7')
        a(f'v_lshlrev_b32 v{30+j}, 2, v{25+j}')
        tail_on(j)
        a(f'ds_add_rtn_u32 v{35+j}, v{30+j}, v6 offset:{CNT}')
        tail_off(j)
    for j in range(NE):
        a(f'v_mul_u32_u24 v7, 13, v{10+j}')
        a('v_lshrrev_b32 v7, 6, v7')
        a('v_mul_u32_u24 v8, 5, v7')
        a(f'v_sub_u32 v8, v{10+j}, v8')
        a('v_lshl_or_b32 v8, v7, 3, v8')
        a(f's_waitcnt vmcnt({2*NE-1-j})')
        a(f'v_lshl_or_b32 v{40+2*j}, v{15+j}, 8, v8')
    a('s_waitcnt vmcnt(0)')
    for j in range(NE):
        a(f's_waitcnt lgkmcnt({NE-1-j})')
        a(f'v_cmp_gt_u32 vcc, 32, v{35+j}')
        if j == NE-1:
            a('s_and_b64 vcc, vcc, s[68:69]')
        a(f'v_lshl_add_u32 v7, v{25+j}, 1, v{35+j}')
        a('v_and_b32 v7, 31, v7')
        a(f'v_lshlrev_b32 v8, 8, v{25+j}')
        a('v_lshl_add_u32 v7, v7, 3, v8')
        a('s_mov_b64 exec, vcc')
        a(f'ds_write_b64 v7, {vr(40+2*j,2)}')
        if j == NE-1:
            a('s_andn2_b64 exec, s[68:69], vcc')
        else:
            a('s_not_b64 exec, vcc')
        lab = a.newlabel('K1_NOV')
        a(f's_cbranch_execz {lab}')
        a(f'v_mov_b32 v9, {OVFC}')
        a('ds_add_rtn_u32 v8, v9, v6')
        a(f's_mul_i32 s76, s2, {CH*16}')
        a(f'v_mov_b32 v50, v{40+2*j}')
        a(f'v_mov_b32 v51, v{41+2*j}')
        a(f'v_mov_b32 v52, v{25+j}')
        a('v_mov_b32 v53, 0')
        a('s_waitcnt lgkmcnt(0)')
        a('v_lshlrev_b32 v8, 4, v8')
        a('buffer_store_dwordx4 v[50:53], v8, s[56:59], s76 offen')
        a('s_nop 1')
        a.label(lab)
        a('s_mov_b64 exec, -1')
    a('v_lshrrev_b32 v9, 3, v0')
    a('v_and_b32 v7, 7, v0')
    a('v_add_u32 v8, v7, v9')
    a('v_and_b32 v8, 15, v8')
    a('v_lshlrev_b32 v8, 4, v8')
    a('v_lshl_add_u32 v60, v9, 8, v8')
    a('v_xor_b32 v61, 128, v60')
    a('v_lshlrev_b32 v62, 2, v9')
    a('v_lshlrev_b32 v63, 13, v9')
    a('v_lshl_add_u32 v63, v7, 4, v63')
    a('s_lshl_b32 s77, s2, 7')
    a(f's_add_u32 s78, s77, {128*8192}')
    a(f'v_cmp_gt_u32 vcc, {(NB-128)*8}, v0')
    a('s_mov_b64 s[66:67], vcc')
    a('s_waitcnt lgkmcnt(0)')
    stamp(a, SV, 2)
    a('s_barrier')
    a('ds_read_b128 v[64:67], v60')
    a(f'ds_read_b128 v[68:71], v60 offset:{128*256}')
    a(f'ds_read_b32 v72, v62 offset:{CNT}')
    a(f'ds_read_b32 v73, v62 offset:{CNT+512}')
    a(f'v_mov_b32 v9, {OVFC}')
    a('ds_read_b32 v8, v9')
    a('s_mov_b32 s79, 0x80000000')
    for k in range(2):
        b = 64 + 4*k
        a(f's_waitcnt lgkmcnt({2-k})' if k == 0 else 's_waitcnt lgkmcnt(1)')
        a(f'v_cmp_lt_u32 s[{82+2*k}:{83+2*k}], 16, v{72+k}')
        a(f'v_or_b32 v74, s79, v{b}')
        a(f'v_or_b32 v75, s79, v{b+2}')
        a(f'v_cndmask_b32 v{b}, v{b}, v74, s[{82+2*k}:{83+2*k}]')
        a(f'v_cndmask_b32 v{b+2}, v{b+2}, v75, s[{82+2*k}:{83+2*k}]')
        if k == 1: a('s_mov_b64 exec, s[66:67]')
        a(f'buffer_store_dwordx4 {vr(b,4)}, v63, s[52:55], s{77+k} offen{SC}')
    a('s_mov_b64 exec, -1')
    for k in range(2):
        lab = a.newlabel('K1_NH')
        if k == 0: a('s_mov_b64 exec, s[82:83]')
        else: a('s_and_b64 exec, s[84:85], s[66:67]')
        a(f's_cbranch_execz {lab}')
        a(f'ds_read_b128 v[76:79], v61 offset:{k*128*256}')
        a('s_waitcnt lgkmcnt(0)')
        a(f'buffer_store_dwordx4 v[76:79], v63, s[88:91], s{77+k} offen{SC}')
        a('s_nop 1')
        a.label(lab)
        a('s_mov_b64 exec, -1')
    a('s_waitcnt lgkmcnt(0)')
    a('v_cmp_eq_u32 vcc, 0, v0')
    a('s_and_saveexec_b64 s[70:71], vcc')
    a('s_cbranch_execz K1_BIN_SK2')
    a('s_lshl_b32 s77, s2, 2')
    a('v_mov_b32 v9, 0')
    a(f'buffer_store_dword v8, v9, s[72:75], s77 offen{SC}')
    a.label('K1_BIN_SK2')
    a('s_mov_b64 exec, s[70:71]')
    endstamps()
    a('s_endpgm')

    a.label('K1_GEMM')
    W2S = 0; HT = 32768; OT = 49152
    a(f's_sub_u32 s3, s2, {NCH}')
    a('v_and_b32 v1, 63, v0')
    a('v_lshrrev_b32 v2, 6, v0')
    a('v_lshrrev_b32 v3, 4, v1')
    a('v_readfirstlane_b32 s4, v2')
    a('v_and_b32 v4, 15, v1')
    a('v_lshlrev_b32 v5, 2, v3')
    a('v_xor_b32 v5, v5, v4')
    a('v_lshlrev_b32 v5, 4, v5')
    a('v_lshl_add_u32 v5, v3, 8, v5')
    a('s_and_b32 s10, s4, 3')
    a('s_lshl_b32 s10, s10, 2')
    a('v_or_b32 v6, s10, v3')
    a('v_xor_b32 v6, v6, v4')
    a('v_lshlrev_b32 v6, 4, v6')
    a('v_lshl_add_u32 v6, v3, 8, v6')
    a('s_lshl_b32 s5, s4, 10')
    a(f's_mul_i32 s8, s3, {GN*256}')
    a('s_add_u32 s9, s8, s5')
    a('s_lshl_b32 s6, s4, 11')
    a('s_add_u32 s7, s6, 32768')
    a('s_waitcnt lgkmcnt(0)')
    stamp(a, SV, 0, True); stamp(a, SV, 1)
    a.srd(44, 16, N*256)
    a.srd(40, 26, 258*256)
    a(f's_add_u32 m0, s5, {HT}')
    a('s_nop 0')
    a(f'buffer_load_dwordx4 v6, s[44:47], s9 offen lds')
    for i in range(2):
        a(f's_add_u32 m0, s6, {W2S + i*1024}')
        a('s_nop 0')
        a('buffer_load_dwordx4 v5, s[40:43], s7 offen lds')
        a('s_add_u32 s7, s7, 1024')
    a.srd(48, 36, N*256, WS_B)
    a('s_and_b32 s12, s4, 3')
    a('s_lshr_b32 s13, s4, 2')
    a('v_and_b32 v4, 31, v1')
    a('v_lshrrev_b32 v5, 5, v1')
    a('v_and_b32 v7, 15, v1')
    a('v_lshrrev_b32 v8, 2, v7')
    a('v_and_b32 v9, 3, v7')
    a('v_lshl_add_u32 v10, v5, 3, v8')
    a('v_lshlrev_b32 v10, 8, v10')
    a('v_and_b32 v11, 1, v9')
    a('v_lshlrev_b32 v11, 5, v11')
    a('v_lshrrev_b32 v12, 1, v9')
    a('v_lshl_add_u32 v11, v12, 3, v11')
    a('v_bfe_u32 v12, v1, 4, 1')
    a('v_lshl_add_u32 v11, v12, 4, v11')
    a('v_xor_b32 v12, s12, v8')
    a('v_lshl_add_u32 v11, v12, 6, v11')
    a('v_add_u32 v10, v10, v11')
    a('v_and_b32 v11, 15, v4')
    a('v_xor_b32 v11, v11, v5')
    a('v_lshlrev_b32 v11, 4, v11')
    a('v_lshl_add_u32 v11, v4, 8, v11')
    a('s_lshl_b32 s14, s13, 13')
    a(f's_add_u32 s15, s14, {HT}')
    a('v_add_u32 v11, s15, v11')
    a('v_and_b32 v12, 15, v4')
    a('v_lshlrev_b32 v13, 1, v5')
    a('s_lshl_b32 s15, s12, 2')
    a('v_add_u32 v13, s15, v13')
    a('v_xor_b32 v13, v13, v12')
    a('v_lshlrev_b32 v13, 4, v13')
    a('v_lshl_add_u32 v13, v4, 8, v13')
    a(f's_add_u32 s14, s14, {OT}')
    a('v_add_u32 v13, s14, v13')
    a('v_xor_b32 v14, 16, v13')
    a('v_lshlrev_b32 v15, 4, v1')
    a(f's_add_u32 s14, s5, {OT}')
    a('v_add_u32 v15, s14, v15')
    a(f's_mov_b32 s14, {NLOG2E}')
    a(f's_mov_b32 s15, {NLOG2E}')
    a('s_waitcnt vmcnt(0)')
    stamp(a, SV, 2)
    a('s_barrier')
    a('s_cmp_ge_u32 s4, 8')
    a('s_cbranch_scc1 K1_G2')
    XB = 32
    for s in range(8):
        a(f'ds_read_b64_tr_b16 {vr(XB+4*s,2)}, v10 offset:{s*4096}')
        a(f'ds_read_b64_tr_b16 {vr(XB+4*s+2,2)}, v10 offset:{s*4096+1024}')
    DB = 96
    HB = 64
    for s in range(8):
        if s: a(f'v_xor_b32 v12, {32*s}, v11')
        a(f'ds_read_b128 {vr(HB+4*s,4)}, v{12 if s else 11}')
    for s in range(8):
        a(f's_waitcnt lgkmcnt({7-s})')
        cin = '0' if s == 0 else vr(DB, 16)
        a(f'v_mfma_f32_32x32x16_bf16 {vr(DB,16)}, {vr(XB+4*s,4)}, {vr(HB+4*s,4)}, {cin}')
    stamp(a, SV, 3)
    a('s_nop 7'); a('s_nop 3')
    for p in range(8):
        a(f'v_pk_mul_f32 {vr(DB+2*p,2)}, {vr(DB+2*p,2)}, s[14:15]')
    for p in range(8):
        a(f'v_cvt_pk_bf16_f32 v{XB+p}, v{DB+2*p}, v{DB+2*p+1}')
    a(f'ds_write_b128 v13, {vr(XB,4)}')
    a(f'ds_write_b128 v14, {vr(XB+4,4)}')
    a.label('K1_G2')
    a('s_waitcnt lgkmcnt(0)')
    a('s_barrier')
    a(f'ds_read_b128 {vr(XB,4)}, v15')
    a('s_waitcnt lgkmcnt(0)')
    a(f'buffer_store_dwordx4 {vr(XB,4)}, v6, s[48:51], s9 offen{SC}')
    endstamps()
    a('s_endpgm')

    a.label('K1_TR')
    a(f's_sub_u32 s3, s2, {NCH + N_GEMM}')
    a('v_and_b32 v1, 63, v0')
    a('v_lshrrev_b32 v2, 8, v0')
    a('s_lshl_b32 s4, s3, 2')
    a('v_add_u32 v2, s4, v2')
    a('v_and_b32 v4, 7, v2')
    a('v_bfe_u32 v5, v0, 6, 2')
    a('v_lshlrev_b32 v6, 5, v5')
    a('v_lshrrev_b32 v7, 4, v1')
    a('v_lshl_add_u32 v6, v7, 3, v6')
    a('v_lshlrev_b32 v6, 8, v6')
    a('v_and_b32 v7, 15, v1')
    a('v_lshl_add_u32 v7, v4, 4, v7')
    a('v_lshl_add_u32 v6, v7, 1, v6')
    a('s_lshr_b32 s5, s3, 1')
    a('s_waitcnt lgkmcnt(0)')
    stamp(a, SV, 0, True); stamp(a, SV, 1)
    a('s_cmp_eq_u32 s5, 0')
    a('s_cselect_b32 s40, s26, s30')
    a('s_cselect_b32 s41, s27, s31')
    a('s_mov_b32 s42, 65536')
    a('s_mov_b32 s43, 0x20000')
    a('s_cmp_eq_u32 s5, 2')
    a('s_cselect_b32 s6, 32768, 0')
    a.srd(44, 36, 3*32768, WS_W)
    a('v_add_u32 v6, s6, v6')
    for i in range(8):
        a(f'buffer_load_ushort v{16+i}, v6, s[40:43], 0 offen offset:{i*256}')
    a('v_lshlrev_b32 v5, 4, v0')
    a('s_lshl_b32 s9, s3, 14')
    a('s_waitcnt vmcnt(0)')
    for p in range(4):
        a(f'v_lshl_or_b32 v{8+p}, v{16+2*p+1}, 16, v{16+2*p}')
    a(f'buffer_store_dwordx4 v[8:11], v5, s[44:47], s9 offen{SC}')
    endstamps()
    a('s_endpgm')

    a.label('K1_P8')
    a(f's_sub_u32 s3, s2, {NCH + N_GEMM + N_TR}')
    a('s_lshl_b32 s3, s3, 10')
    a('v_add_u32 v1, s3, v0')
    a(f'v_cmp_gt_u32 vcc, {N//2}, v1')
    a('s_and_saveexec_b64 s[70:71], vcc')
    a('s_cbranch_execz K1_END')
    a('v_mul_u32_u24 v2, 12, v1')
    a('v_lshlrev_b32 v3, 4, v1')
    a('s_waitcnt lgkmcnt(0)')
    a.srd(40, 18, N*6)
    a.srd(44, 36, N*8, WS_P8)
    a('buffer_load_dwordx3 v[4:6], v2, s[40:43], 0 offen')
    a('s_waitcnt vmcnt(0)')
    a('v_alignbit_b32 v10, v6, v5, 16')
    a('v_lshrrev_b32 v11, 16, v6')
    a('v_mov_b32 v8, v4')
    a('v_and_b32 v9, 0xffff, v5')
    a(f'buffer_store_dwordx4 v[8:11], v3, s[44:47], 0 offen{SC}')
    a('s_endpgm')

    a.label('K1_WDE')
    a('v_cmp_gt_u32 vcc, 256, v0')
    a('s_and_saveexec_b64 s[70:71], vcc')
    a('s_cbranch_execz K1_END')
    a('v_lshlrev_b32 v1, 1, v0')
    a('s_waitcnt lgkmcnt(0)')
    a.srd(40, 26, 258*256)
    a.srd(44, 36, 1024, WS_WDE)
    a('s_mov_b32 s10, 65536')
    a('buffer_load_short_d16_hi v2, v1, s[40:43], s10 offen')
    a(f's_mov_b32 s11, {NLOG2E}')
    a('s_waitcnt vmcnt(0)')
    a('v_mul_f32 v2, s11, v2')
    a('v_cvt_pk_bf16_f32 v3, v2, v2')
    a('v_lshlrev_b32 v4, 16, v3')
    a('v_sub_f32 v4, v2, v4')
    a('v_cvt_pk_bf16_f32 v4, v4, v4')
    a(f'buffer_store_short v3, v1, s[44:47], 0 offen{SC}')
    a(f'buffer_store_short v4, v1, s[44:47], 0 offen offset:512{SC}')
    a.label('K1_END')
    a('s_endpgm')
    a.raw(kd(name, 128))

def build(k2=True):
    a = Asm()
    hdr = HEADER
    hdr += f'; @launch kernel=egnn_prep_kernel grid=({K1_GRID},1,1) block=(1024,1,1) lds={K1_LDS}\n'
    if k2:
        import gen5_k2
        hdr += f'; @launch kernel=egnn_edge_kernel grid=({NB},1,1) block=(1024,1,1) lds={gen5_k2.K2_LDS}\n'
    a.raw(hdr + '.amdgcn_target "amdgcn-amd-amdhsa--gfx950"\n.text')
    gen_k1(a)
    if k2:
        gen5_k2.gen_k2(a)
    return a.text()

if __name__ == '__main__':
    k2 = '--nok2' not in sys.argv
    out = sys.argv[1] if len(sys.argv) > 1 and not sys.argv[1].startswith('--') else 'full5.s'
    open(out, 'w').write(build(k2))
    print('wrote', out)
```

```python
from asmlib import Asm, vr, sr, stamp, stamp_flush, STAMP
import gen6 as G
import os

CNT = 0
FLAG = 64
Z = 128
RAW = 1024
X1 = 5120
X2 = 21504
ZEND = X2 + 40960
AR = ZEND
ARS = 272
WDEL = AR + 40*ARS
WX = WDEL + 1024
PDL = WX + 256
TM = (PDL + 768 + 255) // 256 * 256
HS = TM + 10240
RING = HS + 10240
K2_LDS = RING + 65536
CAP = 128

E_TMW = 0
LANE = 1
V_CB = 2; V_X1B = 3; V_X2B = 4; V_RAWB = 5
E_ZOFF = 6; E_WXA = 7
RR = 8
DAP = 12
Y1 = 20; X1R = 28; X2R = 32; MP = 40; EE = 48
D0 = 56; D1 = 72; ACC = 88
U = (48, 8, 12)
E_XA0 = 124; E_R1 = 125; E_OUT = 126
SV = 127
SA = 52; SB = 53; ONE = 54
VY0 = 120; VY1 = 121; E_AW = 122; OVCV = 123
XO = 20
DUM = 55
NV = 128
PRIO = os.environ.get('PRIO', '1') == '1'
PF_P = int(os.environ.get('PF_P', '1'))
PF_B = int(os.environ.get('PF_B', '1'))
PF_B7 = int(os.environ.get('PF_B7', '1'))

def gen_k2(a):
    name = 'egnn_edge_kernel'
    G.kernel_head(a, name)
    a(f's_cmp_ge_u32 s2, {G.NB}')
    a('s_cbranch_scc1 K2_END')
    stamp(a, SV, 20, True); stamp(a, SV, 21)
    G.load_kernargs(a)
    a('v_lshrrev_b32 v11, 6, v0')
    a(f'v_and_b32 v{LANE}, 63, v0')
    a('v_lshlrev_b32 v10, 3, v0')
    a('v_readfirstlane_b32 s4, v11')
    L16 = 69
    a(f'v_lshlrev_b32 v{L16}, 4, v{LANE}')
    ZR = 64
    a('v_lshlrev_b32 v68, 4, v0')
    a('v_lshlrev_b32 v70, 7, v0')
    a('s_and_b32 s5, s4, 3')
    a('s_lshr_b32 s6, s5, 1')
    a('s_and_b32 s5, s5, 1')
    a('s_lshr_b32 s7, s4, 2')
    a('s_lshl_b32 s7, s7, 1')
    a('s_add_u32 s7, s7, s5')
    a('s_lshl_b32 s9, s4, 12')
    a(f's_add_u32 s9, s9, {RING}')
    a('s_lshl_b32 s8, s2, 13')
    a('s_lshr_b32 s13, s2, 3')
    a('s_waitcnt lgkmcnt(0)')
    stamp(a, SV, 0, True); stamp(a, SV, 1)
    a.srd(40, 36, G.C_BYTES, G.WS_C1)
    a(f'buffer_load_dwordx2 {vr(RR,2)}, v10, s[40:43], s8 offen')
    a.srd(56, 36, 3*32768, G.WS_W)
    def lane_consts():
        a(f'v_and_b32 v56, 31, v{LANE}')
        a(f'v_lshrrev_b32 v57, 5, v{LANE}')
        a(f'v_bfe_u32 v58, v{LANE}, 2, 2')
        a(f'v_and_b32 v59, 3, v{LANE}')
        a(f'v_and_b32 v60, 15, v{LANE}')
        a(f'v_lshrrev_b32 v61, 4, v{LANE}')
    def c_cb():
        a(f'v_and_b32 v62, 0x18, v{LANE}')
        a('v_lshl_or_b32 v62, v59, 1, v62')
        a(f'v_and_b32 v63, 4, v{LANE}')
        a('v_lshl_or_b32 v62, v63, 3, v62')
        a('v_lshl_or_b32 v62, v57, 9, v62')
        a(f'v_add_u32 v{V_CB}, s9, v62')
    def c_rawb():
        a('s_lshl_b32 s10, s7, 9')
        a(f's_add_u32 s10, s10, {RAW}')
        a(f'v_lshrrev_b32 v62, 3, v{LANE}')
        a(f'v_lshl_add_u32 v{V_RAWB}, v62, 2, s10')
    def c_tile0():
        a('s_lshl_b32 s10, s7, 11')
        a(f's_add_u32 s10, s10, {X1}')
        a(f'v_lshl_add_u32 v{V_X1B}, v56, 4, s10')
        a('v_lshl_add_u32 v62, v57, 2, v58')
        a('v_mul_u32_u24 v62, 40, v62')
        a('v_lshl_add_u32 v62, v59, 3, v62')
        a(f'v_and_b32 v63, 16, v{LANE}')
        a('v_lshl_add_u32 v62, v63, 1, v62')
        a('s_mul_i32 s10, s7, 5120')
        a(f's_add_u32 s10, s10, {X2}')
        a(f'v_add_u32 v{V_X2B}, s10, v62')
    def c_dap():
        a('s_lshl_b32 s11, s6, 7')
        a(f'v_and_b32 v62, 7, v{LANE}')
        a(f'v_lshl_add_u32 v{DAP+1}, v62, 4, s11')
        for i in range(1, 4): a(f'v_mov_b32 v{DAP+1+2*i}, v{DAP+1}')
    def c_y1():
        a('s_lshl_b32 s11, s6, 7')
        a('v_and_b32 v62, 1, v59')
        a('v_lshlrev_b32 v62, 5, v62')
        a('v_lshrrev_b32 v63, 1, v59')
        a('v_lshl_add_u32 v62, v63, 3, v62')
        a(f'v_and_b32 v63, 16, v{LANE}')
        a('v_add3_u32 v62, v62, v63, s11')
        a(f's_mul_i32 s12, s7, {5*ARS}')
        a(f'v_cmp_lt_u32 vcc, 31, v{LANE}')
        a('v_cmp_gt_u32 s[80:81], 2, v58')
        a('v_cmp_gt_u32 s[82:83], 3, v58')
        a(f's_add_u32 s14, s12, {AR - 2*ARS}')
        a(f'v_mul_u32_u24 v63, {ARS}, v58')
        a('v_add_u32 v44, s14, v63')
        a('v_lshlrev_b32 v45, 8, v58')
        a(f'v_add_u32 v46, {WDEL}, v45')
        a('v_cndmask_b32 v44, v44, v46, s[80:81]')
        a(f'v_add_u32 v46, {WDEL+512}, v45')
        a(f'v_mov_b32 v45, {Z}')
        a('v_cndmask_b32 v46, v45, v46, s[80:81]')
        a('v_cndmask_b32 v44, v44, v46, vcc')
        a(f'v_add_u32 v{VY0}, v44, v62')
        a(f's_add_u32 s14, s12, {AR + 2*ARS}')
        a('v_add_u32 v44, s14, v63')
        a('v_cndmask_b32 v44, v45, v44, s[82:83]')
        a('v_cndmask_b32 v44, v44, v45, vcc')
        a(f'v_add_u32 v{VY1}, v44, v62')
    def c_epi():
        a('s_lshl_b32 s11, s6, 7')
        a('v_lshrrev_b32 v62, 2, v56')
        a('s_mul_i32 s12, s7, 5')
        a('v_add_u32 v62, s12, v62')
        a('v_and_b32 v63, 15, v62')
        a('s_lshl_b32 s10, s6, 3')
        a('v_lshl_add_u32 v44, v57, 1, s10')
        a('v_xor_b32 v63, v63, v44')
        a(f's_mov_b32 s10, {TM}')
        a('v_lshl_add_u32 v63, v63, 4, s10')
        a(f'v_lshl_add_u32 v{E_TMW}, v62, 8, v63')
        a('v_cmp_eq_u32 vcc, 3, v59')
        a('v_cmp_gt_u32 s[80:81], 20, v56')
        a('v_lshlrev_b32 v63, 2, v59')
        a(f'v_lshl_add_u32 v{E_ZOFF}, v62, 4, v63')
        a('s_and_b64 s[40:41], vcc, s[80:81]')
        a('s_andn2_b64 s[42:43], s[80:81], vcc')
        a('s_mov_b32 s43, 0')
        a(f's_add_u32 s10, s11, {WX}')
        a(f'v_lshl_add_u32 v{E_WXA}, v57, 5, s10')
    def c_xa0():
        a('v_xor_b32 v62, v61, v60')
        a('v_lshlrev_b32 v62, 4, v62')
        a('v_lshl_add_u32 v62, v60, 8, v62')
        a(f'v_add_u32 v{E_XA0}, {TM}, v62')
    def c_aw():
        a(f'v_mul_u32_u24 v62, {ARS}, v60')
        a('v_lshl_add_u32 v62, v61, 3, v62')
        a('s_and_b32 s10, s4, 7')
        a('s_lshl_b32 s12, s10, 5')
        a(f's_add_u32 s12, s12, {AR}')
        a(f'v_add_u32 v{E_AW}, s12, v62')
    def c_out():
        a('v_lshrrev_b32 v62, 1, v61')
        a('s_lshl_b32 s10, s4, 1')
        a('v_add_u32 v62, s10, v62')
        a('v_xor_b32 v62, v62, v60')
        a('v_lshlrev_b32 v62, 4, v62')
        a('v_lshl_add_u32 v62, v60, 8, v62')
        a('v_and_b32 v63, 1, v61')
        a('v_lshl_add_u32 v62, v63, 3, v62')
        a(f'v_add_u32 v{E_R1}, {TM}, v62')
        a('v_lshlrev_b32 v62, 8, v60')
        a(f'v_lshl_add_u32 v{E_OUT}, v61, 3, v62')
    def srds():
        a.srd(48, 36, G.N, G.WS_B)
        a(f's_or_b32 s49, s49, {256 << 16}')
        a.srd(64, 36, G.N, G.WS_P16)
        a(f's_or_b32 s65, s65, {16 << 16}')
        a.srd(60, 18, G.N*6)
        a.srd(68, 32, G.N*256 + G.N*6)
        a(f's_mul_i32 s76, s2, {G.NPB*16}')
        a(f's_sub_u32 s76, {PDL}, s76')
        a('s_mov_b32 s92, 0')
        a('s_mov_b32 s77, 0')
        a('s_mov_b64 s[100:101], 0')
        a('s_mov_b64 s[86:87], 0')
        a('s_mov_b64 s[90:91], 0')

    a('s_cmp_lt_u32 s4, 8')
    a('s_cbranch_scc1 K2_J0')
    a('s_and_b32 s10, s4, 7')
    a('s_lshl_b32 s10, s10, 12')
    for i in range(4):
        a(f'buffer_load_dwordx4 {vr(D1+4*i,4)}, v{L16}, s[56:59], s10 offen offset:{i*1024}')
    NW8 = 4
    srds()
    a(f'v_and_b32 v60, 15, v{LANE}')
    a(f'v_lshrrev_b32 v61, 4, v{LANE}')
    c_xa0(); c_aw(); c_rawb(); c_dap()
    for r in (E_TMW, E_ZOFF, E_WXA, E_R1, E_OUT, V_CB, V_X1B, V_X2B, VY0, VY1): a(f'v_mov_b32 v{r}, 0')
    stamp(a, SV, 16); stamp(a, SV, 17)
    a('s_branch K2_JA')
    a.label('K2_J0')
    a.srd(44, 36, G.N*16, G.WS_P16)
    a.srd(52, 16, G.N*256)
    a('s_and_b32 s10, s13, 3')
    a('s_mul_i32 s10, s10, 40960')
    if PF_P: a(f'buffer_load_dword v{DUM}, v70, s[44:47], s10 offen')
    NW0 = 2 + PF_P
    for i in range(4): a(f'v_mov_b32 v{ZR+i}, 0')
    for i in range(ZEND // 8192):
        a(f'ds_write_b128 v68, v[{ZR}:{ZR+3}] offset:{i*8192}')
    rem = (ZEND % 8192) // 1024
    a(f's_cmp_ge_u32 s4, {rem}')
    a('s_cbranch_scc1 K2_Z0')
    a(f'ds_write_b128 v68, v[{ZR}:{ZR+3}] offset:{(ZEND // 8192)*8192}')
    a.label('K2_Z0')
    stamp(a, SV, 16)
    a('s_cmp_ge_u32 s4, 5')
    a('s_cbranch_scc1 K2_J1')
    a(f's_mul_i32 s10, s2, {G.NPB*256}')
    a('s_lshl_b32 s11, s4, 11')
    a('s_add_u32 s10, s10, s11')
    a(f'v_lshrrev_b32 v72, 4, v{LANE}')
    a('s_and_b32 s12, s4, 1')
    a('s_lshl_b32 s12, s12, 3')
    a('v_or_b32 v71, s12, v72')
    a(f'v_and_b32 v73, 15, v{LANE}')
    a('v_xor_b32 v71, v71, v73')
    a('v_lshlrev_b32 v71, 4, v71')
    a('v_lshl_add_u32 v71, v72, 8, v71')
    a(f's_add_u32 m0, s11, {HS}')
    a('v_xor_b32 v73, 64, v71')
    a('buffer_load_dwordx4 v71, s[52:55], s10 offen lds')
    a(f's_add_u32 m0, s11, {HS+1024}')
    a('s_add_u32 s10, s10, 1024')
    a('buffer_load_dwordx4 v73, s[52:55], s10 offen lds')
    a('s_branch K2_J3')
    a.label('K2_J1')
    a('s_cmp_eq_u32 s4, 7')
    a('s_cbranch_scc1 K2_J7')
    a('s_cmp_eq_u32 s4, 5')
    a('s_cbranch_scc1 K2_J2')
    a.srd(72, 28, 256)
    a(f's_mov_b32 m0, {WX}')
    a('s_mov_b64 exec, 0xffff')
    a(f'buffer_load_dwordx4 v{L16}, s[72:75], 0 offen lds')
    a(f's_mul_i32 s10, s2, {G.NPB*16}')
    a(f's_mov_b32 m0, {PDL}')
    a('s_mov_b32 exec_hi, 0xff')
    a('s_mov_b32 exec_lo, -1')
    a(f'buffer_load_dwordx4 v{L16}, s[44:47], s10 offen lds')
    a('s_mov_b64 exec, -1')
    a('s_branch K2_J3')
    a.label('K2_J2')
    a.srd(72, 36, 1024, G.WS_WDE)
    a(f's_mov_b32 m0, {WDEL}')
    a(f'v_lshlrev_b32 v71, 2, v{LANE}')
    a(f'buffer_load_dwordx4 v{L16}, s[72:75], 0 offen lds')
    a.srd(72, 36, 256, G.WS_OVC)
    a(f'buffer_load_dword v{OVCV}, v71, s[72:75], 0 offen')
    a('s_branch K2_J3')
    a.label('K2_J7')
    a(f'v_lshlrev_b32 v71, 7, v{LANE}')
    a('s_mov_b32 s10, 0x7fffff00')
    a(f'buffer_load_dword v{DUM}, v71, s[44:47], s10 offen')
    a(f'buffer_load_dword v{DUM}, v71, s[44:47], s10 offen')
    a.label('K2_J3')
    stamp(a, SV, 17)
    srds()
    lane_consts(); c_cb(); c_rawb(); c_tile0(); c_dap(); c_y1(); c_epi(); c_xa0(); c_out()
    a(f'v_mov_b32 v{E_AW}, 0')
    a.label('K2_JA')
    stamp(a, SV, 18)
    a('s_waitcnt lgkmcnt(0)')
    a('s_barrier')
    stamp(a, SV, 2)
    a('s_cmp_ge_u32 s4, 8')
    a('s_cbranch_scc1 K2_W5')
    a(f's_waitcnt vmcnt({NW0})')
    a('s_branch K2_WD')
    a.label('K2_W5')
    a(f's_waitcnt vmcnt({NW8})')
    a.label('K2_WD')
    stamp(a, SV, 3)
    a(f'v_cmp_ne_u32 s[80:81], -1, v{RR}')
    a(f'v_cmp_gt_i32 vcc, 0, v{RR}')
    a('s_and_b64 s[84:85], s[80:81], vcc')
    a('s_cbranch_scc0 K2_ROUND')
    a.srd(72, 36, G.C_BYTES, G.WS_C2)
    a('s_mov_b64 exec, s[84:85]')
    a(f'buffer_load_dwordx2 {vr(RR+2,2)}, v10, s[72:75], s8 offen')
    a('s_mov_b64 exec, -1')

    PSA = 56; PDA = 60; PSB = 64; PDB = 68
    def phase1(w0, ps, pd, S, cand, pm, ONE=ONE):
        a(f'v_and_b32 v48, 0x38, v{w0}')
        a(f'v_bfe_u32 v49, v{w0}, 8, 14')
        a(f's_mov_b64 exec, s[{cand}:{cand+1}]')
        a(f'ds_add_rtn_u32 v51, v48, v{ONE} offset:{CNT}')
        a('s_mov_b64 exec, -1')
        a(f'buffer_load_dwordx3 {vr(ps,3)}, v49, s[64:67], 0 idxen')
        a('s_waitcnt lgkmcnt(0)')
        a(f'v_cmp_gt_u32 vcc, {CAP}, v51')
        a(f'v_lshl_add_u32 v{S}, v48, 4, v51')
        a(f's_and_b64 s[{pm}:{pm+1}], s[{cand}:{cand+1}], vcc')
        a(f'v_lshlrev_b32 v48, 2, v{S}')
        a(f's_mov_b64 exec, s[{pm}:{pm+1}]')
        a(f'ds_write_b32 v48, v49 offset:{RAW}')
        a('s_mov_b64 exec, -1')
    def xaddr(w0, S, o, pd):
        a(f'v_and_b32 v49, 0xffff, v{w0+1}')
        a('v_lshl_add_u32 v49, v49, 4, s76')
        a(f'ds_read_b96 {vr(pd,3)}, v49')
        a(f'v_and_b32 v48, 7, v{w0}')
        a(f'v_lshlrev_b32 v{o}, 4, v{S}')
        a(f'v_mul_u32_u24 v{o+2}, 40, v{S}')
        a(f'v_lshl_add_u32 v{o+1}, v48, 1, v{o}')
        a(f'v_lshl_add_u32 v{o+2}, v48, 3, v{o+2}')
    def xbuild(w1, ps, pd, o, pm):
        a(f'v_pk_add_f32 {vr(pd,2)}, {vr(pd,2)}, {vr(ps,2)} neg_lo:[0,1] neg_hi:[0,1]')
        a(f'v_sub_f32 v{pd+2}, v{pd+2}, v{ps+2}')
        a(f'v_cvt_pk_bf16_f32 v{ps}, v{pd}, v{pd+1}')
        a(f'v_cvt_pk_bf16_f32 v{ps+1}, v{pd+2}, 1.0')
        a(f'v_lshlrev_b32 v{pd}, 16, v{ps}')
        a(f'v_and_b32 v{pd+1}, 0xffff0000, v{ps}')
        a(f'v_lshlrev_b32 v{pd+2}, 16, v{ps+1}')
        a(f'v_mul_f32 v{pd}, v{pd}, v{pd}')
        a(f'v_fma_f32 v{pd}, v{pd+1}, v{pd+1}, v{pd}')
        a('v_mov_b32 v48, 0x3f80')
        a(f'v_fma_f32 v{pd}, v{pd+2}, v{pd+2}, v{pd}')
        a(f'v_and_b32 v{pd+1}, 0xffff0000, v{w1}')
        a(f'v_cvt_pk_bf16_f32 v{pd}, v{pd}, v{pd+1}')
        a(f's_mov_b64 exec, s[{pm}:{pm+1}]')
        a(f'ds_write_b64 v{o+2}, {vr(ps,2)} offset:{X2}')
        a(f'ds_write_b16 v{o+1}, v48 offset:{X1+4}')
        a(f'ds_write_b32 v{o}, v{pd} offset:{X1}')
        a('s_mov_b64 exec, -1')
    def dma0_reads():
        for i in range(4):
            a(f'ds_read_b32 v{DAP+2*i}, v{V_RAWB} offset:{32*i}')
    def dma0_issue():
        for i in range(4):
            a(f's_add_u32 m0, s9, {i*1024}')
            a('s_nop 0')
            a(f'buffer_load_dwordx4 {vr(DAP+2*i,2)}, s[48:51], 0 idxen offen lds')
    def aprime(nvm):
        lab = a.newlabel('K2_AP')
        a('s_cmp_lt_u32 s4, 8')
        a(f's_cbranch_scc1 {lab}')
        FB = (104, 32, 104)
        AU = 20
        a(f'v_xor_b32 v48, 64, v{E_XA0}')
        a(f'v_xor_b32 v49, 128, v{E_XA0}')
        a(f'v_xor_b32 v50, 192, v{E_XA0}')
        xa = (E_XA0, 48, 49, 50)
        for job in range(2):
            for s in range(4):
                a(f'ds_read_b128 {vr(FB[job]+4*s,4)}, v{xa[s]} offset:{HS - TM + job*4096}')
        a(f's_mov_b32 s88, {G.NLOG2E}'); a(f's_mov_b32 s89, {G.NLOG2E}')
        a(f'v_and_b32 v51, 15, v{LANE}')
        a('v_cmp_gt_u32 vcc, 8, v51')
        a(f's_waitcnt vmcnt({nvm})')
        for s in range(4):
            a(f's_waitcnt lgkmcnt({7-s})')
            u = vr(AU, 4)
            a(f'v_mfma_f32_16x16x32_bf16 {u}, {vr(D1+4*s,4)}, {vr(FB[0]+4*s,4)}, {"0" if s == 0 else u}')
        for s in range(4):
            a(f'ds_read_b128 {vr(FB[2]+4*s,4)}, v{xa[s]} offset:{HS - TM + 2*4096}')
        for job in (1, 2):
            for s in range(4):
                a(f's_waitcnt lgkmcnt({7-s if job == 1 else 3-s})')
                u = vr(AU+4*job, 4)
                a(f'v_mfma_f32_16x16x32_bf16 {u}, {vr(D1+4*s,4)}, {vr(FB[job]+4*s,4)}, {"0" if s == 0 else u}')
        for job in range(3):
            u = AU + 4*job
            if job == 2: a('s_nop 4')
            a(f'v_pk_mul_f32 {vr(u,2)}, {vr(u,2)}, s[88:89]')
            a(f'v_pk_mul_f32 {vr(u+2,2)}, {vr(u+2,2)}, s[88:89]')
            a(f'v_cvt_pk_bf16_f32 v{u}, v{u}, v{u+1}')
            a(f'v_cvt_pk_bf16_f32 v{u+1}, v{u+2}, v{u+3}')
            if job == 2: a('s_mov_b64 exec, vcc')
            a(f'ds_write_b64 v{E_AW}, {vr(u,2)} offset:{job*16*ARS}')
        a('s_mov_b64 exec, -1')
        a.label(lab)

    a.label('K2_ROUND')
    a(f'v_mov_b32 v{ONE}, 1')
    phase1(RR, PSA, PDA, SA, 80, 96)
    a('s_andn2_b64 s[100:101], s[80:81], s[96:97]')
    a('s_cmp_ge_u32 s4, 8')
    a('s_cbranch_scc1 K2_RB')
    a('s_waitcnt vmcnt(1)')
    a('s_cmp_lg_u32 s4, 5')
    a('s_cbranch_scc1 K2_RB')
    a(f'v_cmp_ne_u32 vcc, 0, v{OVCV}')
    a('s_cbranch_vccz K2_RB')
    a(f'v_mov_b32 v48, {FLAG}')
    a(f'ds_write_b32 v48, v{ONE} offset:4')
    a.label('K2_RB')
    a('s_waitcnt lgkmcnt(0)')
    a('s_barrier')
    stamp(a, SV, 4)
    a('s_mov_b32 s95, 0')
    a('s_cmp_lg_u64 s[84:85], 0')
    a('s_cbranch_scc1 K2_LATE')
    a('s_cmp_ge_u32 s4, 8')
    a('s_cbranch_scc1 K2_CH')
    dma0_reads()
    xaddr(RR, SA, XO, PDA)
    a('s_waitcnt lgkmcnt(1)')
    dma0_issue()
    a('s_mov_b32 s95, 1')
    a('s_waitcnt vmcnt(4) lgkmcnt(0)')
    stamp(a, SV, 15)
    xbuild(RR+1, PSA, PDA, XO, 96)
    a('s_branch K2_C3')
    a.label('K2_CH')
    aprime(1)
    xaddr(RR, SA, XO, PDA)
    a('s_waitcnt vmcnt(0) lgkmcnt(0)')
    stamp(a, SV, 15)
    xbuild(RR+1, PSA, PDA, XO, 96)
    a('s_branch K2_C3')
    a.label('K2_LATE')
    a('s_waitcnt vmcnt(1)')
    a(f'v_cmp_ne_u32 vcc, -1, v{RR+2}')
    a('s_and_b64 s[82:83], s[84:85], vcc')
    a(f'v_and_b32 v48, 0x38, v{RR+2}')
    a('s_mov_b64 exec, s[82:83]')
    a(f'ds_add_u32 v48, v{ONE} offset:{CNT+4}')
    a('s_mov_b64 exec, -1')
    phase1(RR+2, PSB, PDB, SB, 82, 98)
    a('s_andn2_b64 s[86:87], s[82:83], s[98:99]')
    xaddr(RR, SA, XO, PDA)
    a('s_waitcnt vmcnt(1) lgkmcnt(0)')
    xbuild(RR+1, PSA, PDA, XO, 96)
    xaddr(RR+2, SB, XO, PDB)
    a('s_waitcnt vmcnt(0) lgkmcnt(0)')
    xbuild(RR+3, PSB, PDB, XO, 98)
    aprime(0)
    a.label('K2_C3')
    stamp(a, SV, 5)
    a('s_or_b64 s[82:83], s[100:101], s[86:87]')
    a('s_cbranch_scc0 K2_C4')
    a(f'v_mov_b32 v48, {FLAG}')
    a(f'ds_write_b32 v48, v{ONE}')
    a.label('K2_C4')
    stamp(a, SV, 6)
    a('s_waitcnt lgkmcnt(0)')
    a('s_barrier')
    stamp(a, SV, 7)
    a('s_lshl_b32 s10, s7, 3')
    a('v_mov_b32 v48, s10')
    a(f'ds_read_b64 v[50:51], v48 offset:{CNT}')
    a(f'v_mov_b32 v49, {FLAG}')
    a('ds_read_b64 v[60:61], v49')
    def y1reads():
        for ct in range(2):
            a(f'ds_read_b64_tr_b16 {vr(Y1+4*ct,2)}, v{VY0} offset:{64*ct}')
            a(f'ds_read_b64_tr_b16 {vr(Y1+4*ct+2,2)}, v{VY1} offset:{64*ct}')
        a(f'ds_read_b128 {vr(X1R,4)}, v{V_X1B}')
    a('s_cmp_ge_u32 s4, 8')
    a('s_cbranch_scc1 K2_DH')
    y1reads()
    a('s_waitcnt lgkmcnt(5)')
    a('v_readfirstlane_b32 s8, v50')
    a('v_readfirstlane_b32 s79, v51')
    a('v_readfirstlane_b32 s93, v60')
    a('v_readfirstlane_b32 s15, v61')
    a('s_cmp_eq_u32 s95, 0')
    a('s_cbranch_scc1 K2_D0')
    a('s_cmp_eq_u32 s79, 0')
    a('s_cbranch_scc1 K2_D1')
    a('s_sub_u32 s79, s8, s79')
    a('s_cmp_ge_u32 s79, 32')
    a('s_cbranch_scc1 K2_D1')
    a('s_waitcnt vmcnt(0)')
    a.label('K2_D0')
    dma0_reads()
    a('s_waitcnt lgkmcnt(0)')
    dma0_issue()
    a('s_branch K2_D1')
    a.label('K2_DH')
    dma0_reads()
    a('s_waitcnt lgkmcnt(0)')
    dma0_issue()
    a('v_readfirstlane_b32 s8, v50')
    a('v_readfirstlane_b32 s93, v60')
    a('v_readfirstlane_b32 s15, v61')
    lane_consts(); c_cb(); c_tile0(); c_y1()
    y1reads()
    c_epi()
    a.label('K2_D1')
    a(f's_min_u32 s8, s8, {CAP}')
    a('s_cmp_eq_u32 s15, 0')
    a('s_cbranch_scc1 K2_G0')
    a.srd(72, 36, 256, G.WS_OVC)
    a(f'v_lshlrev_b32 v48, 2, v{LANE}')
    a('buffer_load_dword v49, v48, s[72:75], 0 offen')
    a('s_waitcnt vmcnt(0)')
    a('v_cmp_ne_u32 vcc, 0, v49')
    a('s_mov_b64 s[90:91], vcc')
    a.label('K2_G0')
    for i in range(4): a(f'v_mov_b32 v{EE+i}, 0')
    a('s_nop 1')
    a(f'v_mfma_f32_32x32x16_bf16 {vr(X2R,16)}, {vr(EE,4)}, {vr(EE,4)}, 0')
    a(f'v_mfma_f32_32x32x16_bf16 {vr(ACC,16)}, {vr(EE,4)}, {vr(EE,4)}, 0')
    a(f'v_mfma_f32_32x32x16_bf16 {vr(ACC+16,16)}, {vr(EE,4)}, {vr(EE,4)}, 0')
    a.label('K2_G1')
    def dma_rows(lab):
        for i in range(4):
            a(f's_cmp_le_u32 s12, {i}')
            a(f's_cbranch_scc1 {lab}')
            a(f's_add_u32 m0, s9, {i*1024}')
            a('s_nop 0')
            a(f'buffer_load_dwordx4 {vr(DAP+2*i,2)}, s[48:51], 0 idxen offen lds')
        a.label(lab)

    def quad(d, mp):
        e = EE
        for i in range(4): a(f'v_exp_f32 v{e+i}, v{d+i}')
        a(f'v_pk_add_f32 {vr(e,2)}, {vr(e,2)}, 1.0 op_sel_hi:[1,0]')
        a(f'v_pk_add_f32 {vr(e+2,2)}, {vr(e+2,2)}, 1.0 op_sel_hi:[1,0]')
        for i in range(4): a(f'v_rcp_f32 v{e+i}, v{e+i}')
        a(f'v_pk_mul_f32 {vr(d,2)}, {vr(d,2)}, {vr(e,2)}')
        a(f'v_pk_mul_f32 {vr(d+2,2)}, {vr(d+2,2)}, {vr(e+2,2)}')
        a(f'v_cvt_pk_bf16_f32 v{mp}, v{d}, v{d+1}')
        a(f'v_cvt_pk_bf16_f32 v{mp+1}, v{d+2}, v{d+3}')
    def creads(d, ct):
        for q in range(4):
            for i in range(4):
                a(f'ds_read_u16_d16_hi v{d+4*q+i}, v{V_CB} offset:{(8*q+i)*128 + 64*ct}')
    def x2reads():
        for m in range(2):
            for q in range(2):
                a(f'ds_read_b64_tr_b16 {vr(X2R+4*m+2*q,2)}, v{V_X2B} offset:{640*m + 320*q}')
    def front(d, ct):
        a(f'v_mfma_f32_32x32x16_bf16 {vr(d,16)}, {vr(X1R,4)}, {vr(Y1+4*ct,4)}, {vr(d,16)}')
    def back(ct, m, pad=True):
        acc = vr(ACC+16*ct, 16)
        if pad: a('s_nop 1')
        a(f'v_mfma_f32_32x32x16_bf16 {acc}, {vr(MP+4*m,4)}, {vr(X2R+4*m,4)}, {acc}')
    def wload():
        lab = a.newlabel('K2_W2')
        a('s_cmp_ge_u32 s4, 8')
        a(f's_cbranch_scc1 {lab}')
        a(f'v_lshlrev_b32 v{DAP}, 4, v{LANE}')
        a('s_lshl_b32 s10, s4, 12')
        a('s_add_u32 s10, s10, 32768')
        for i in range(4):
            a(f's_add_u32 m0, s9, {i*1024}')
            if i: a('s_add_u32 s10, s10, 1024')
            else: a('s_nop 0')
            a(f'buffer_load_dwordx4 v{DAP}, s[56:59], s10 offen lds')
        a.label(lab)
    def w2load():
        lab = a.newlabel('K2_W2')
        a('s_cmp_ge_u32 s4, 8')
        a(f's_cbranch_scc1 {lab}')
        a(f'v_lshlrev_b32 v{DAP}, 4, v{LANE}')
        a('s_lshl_b32 s10, s4, 12')
        a('s_add_u32 s10, s10, 65536')
        for s in range(4):
            a(f'buffer_load_dwordx4 {vr(D0+4*s,4)}, v{DAP}, s[56:59], s10 offen offset:{s*1024}')
        a.label(lab)
    def setprio(levels):
        if not PRIO: return
        end = a.newlabel('K2_PE')
        for (rem_le, pr) in levels[:-1]:
            nxt = a.newlabel('K2_PN')
            a(f's_cmp_gt_u32 s8, {rem_le}')
            a(f's_cbranch_scc1 {nxt}')
            a(f's_setprio {pr}')
            a(f's_branch {end}')
            a.label(nxt)
        a(f's_setprio {levels[-1][1]}')
        a.label(end)

    a('s_cmp_eq_u32 s8, 0')
    a('s_cbranch_scc1 K2_EMPTY')
    a('s_waitcnt vmcnt(0)')
    stamp(a, SV, 8)
    a('s_nop 7')
    creads(D0, 0)
    a('s_waitcnt lgkmcnt(0)')
    front(D0, 0)
    a('s_nop 7')
    a('s_cmp_gt_u32 s8, 32')
    a('s_nop 1')
    a('s_cbranch_scc0 K2_LAST')
    a.label('K2_FULL')
    if PRIO: a('s_setprio 3')
    creads(D1, 1)
    x2reads()
    a('s_sub_u32 s11, s8, 32')
    a('s_add_u32 s12, s11, 7')
    a('s_lshr_b32 s12, s12, 3')
    a('s_min_u32 s12, s12, 4')
    quad(D0, MP); quad(D0+4, MP+2)
    a('s_waitcnt lgkmcnt(0)')
    back(0, 0)
    for i in range(4):
        a(f'ds_read_b32 v{DAP+2*i}, v{V_RAWB} offset:{128 + 32*i}')
    quad(D0+8, MP+4)
    front(D1, 1)
    a('s_waitcnt lgkmcnt(0)')
    dma_rows(a.newlabel('K2_ND'))
    quad(D0+12, MP+6)
    back(0, 1)
    setprio([(64, 2), (None, 3)])
    quad(D1, MP); quad(D1+4, MP+2)
    back(1, 0)
    a('s_waitcnt vmcnt(0)')
    creads(D0, 0)
    a(f'ds_read_b128 {vr(X1R,4)}, v{V_X1B} offset:512')
    a(f'v_add_u32 v{V_RAWB}, 128, v{V_RAWB}')
    a(f'v_add_u32 v{V_X1B}, 512, v{V_X1B}')
    a(f'v_add_u32 v{V_X2B}, 1280, v{V_X2B}')
    quad(D1+8, MP+4)
    a('s_waitcnt lgkmcnt(0)')
    front(D0, 0)
    quad(D1+12, MP+6)
    back(1, 1)
    a('s_mov_b32 s8, s11')
    a('s_cmp_gt_u32 s8, 32')
    a('s_cbranch_scc1 K2_FULL')
    a.label('K2_LAST')
    if PRIO: a('s_setprio 1')
    a('s_add_u32 s10, s8, 7')
    a('s_lshr_b32 s14, s10, 3')
    creads(D1, 1)
    x2reads()
    def skip_lt(n):
        lab = a.newlabel('K2_S')
        a(f's_cmp_lt_u32 s14, {n}')
        a(f's_cbranch_scc1 {lab}')
        return lab
    quad(D0, MP)
    l = skip_lt(2); quad(D0+4, MP+2); a.label(l)
    a('s_waitcnt lgkmcnt(0)')
    back(0, 0)
    l = skip_lt(3); quad(D0+8, MP+4); a.label(l)
    front(D1, 1)
    wload()
    l3 = skip_lt(3)
    l = skip_lt(4); quad(D0+12, MP+6); a.label(l)
    back(0, 1)
    a.label(l3)
    w2load()
    if PRIO: a('s_setprio 0')
    quad(D1, MP)
    l = skip_lt(2); quad(D1+4, MP+2); a.label(l)
    back(1, 0)
    l3 = skip_lt(3)
    quad(D1+8, MP+4)
    l = skip_lt(4); quad(D1+12, MP+6); a.label(l)
    back(1, 1)
    a.label(l3)
    a('s_branch K2_LOOP_END')
    a.label('K2_EMPTY')
    a('s_waitcnt vmcnt(0) lgkmcnt(0)')
    wload()
    w2load()
    a.label('K2_LOOP_END')
    stamp(a, SV, 9)
    a('s_or_b32 s10, s90, s91')
    a('s_or_b32 s10, s10, s93')
    a('s_cmp_eq_u32 s10, 0')
    a('s_cbranch_scc1 K2_EPI')
    a('s_waitcnt vmcnt(0) lgkmcnt(0)')
    a('s_barrier')
    a('s_lshl_b32 s10, s4, 6')
    a(f'v_add_u32 v60, s10, v{LANE}')
    for i in range(4): a(f'v_mov_b32 v{ZR+i}, 0')
    a('v_lshlrev_b32 v68, 4, v60')
    for i in range(3):
        a(f'ds_write_b128 v68, v[{ZR}:{ZR+3}] offset:{i*16384}')
    a(f's_cmp_ge_u32 s4, {(ZEND - 3*16384)//1024}')
    a('s_cbranch_scc1 K2_Z1')
    a(f'ds_write_b128 v68, v[{ZR}:{ZR+3}] offset:{3*16384}')
    a.label('K2_Z1')
    a(f'v_and_b32 v56, 31, v{LANE}')
    a(f'v_lshrrev_b32 v57, 5, v{LANE}')
    a(f'v_bfe_u32 v58, v{LANE}, 2, 2')
    a(f'v_and_b32 v59, 3, v{LANE}')
    c_rawb(); c_tile0()
    a('s_branch K2_SLOW')

    a.label('K2_EPI')
    A2 = D0
    P = ACC; ZD = ACC + 16
    WXA = 32
    for k in range(4):
        a(f'ds_read_b128 {vr(WXA+4*k,4)}, v{E_WXA} offset:{(k>>1)*64 + (k&1)*16}')
    for ct in range(2):
        for p in range(8):
            a(f'v_cvt_pk_bf16_f32 v{P+8*ct+p}, v{ACC+16*ct+2*p}, v{ACC+16*ct+2*p+1}')
    a('s_mov_b64 exec, s[40:41]')
    for k in range(4):
        ct, h2 = k >> 1, k & 1
        x = (4*ct + h2) * 16
        if x: a(f'v_xor_b32 v{20+k}, {x}, v{E_TMW}')
        a(f'ds_write_b128 v{20+k if x else E_TMW}, {vr(P+8*ct+4*h2,4)}')
    a('s_mov_b64 exec, -1')
    a('s_waitcnt lgkmcnt(4)')
    for k in range(4):
        a(f'v_mfma_f32_32x32x16_bf16 {vr(ZD,16)}, {vr(WXA+4*k,4)}, {vr(P+4*k,4)}, {"0" if k == 0 else vr(ZD,16)}')
    a(f's_mov_b32 s86, {G.NLN2}'); a(f's_mov_b32 s87, {G.NLN2}')
    a(f's_mov_b32 s88, {G.NLOG2E}'); a(f's_mov_b32 s89, {G.NLOG2E}')
    a('s_cmp_lt_u32 s4, 8')
    a('s_cbranch_scc1 K2_EG')
    IDX = 24; POSV = 25
    a('s_sub_u32 s10, s4, 8')
    a('s_lshl_b32 s10, s10, 6')
    a(f'v_add_u32 v{IDX}, s10, v{LANE}')
    a(f's_mul_i32 s5, s2, {G.NPB*6}')
    a(f'v_lshlrev_b32 v15, 1, v{IDX}')
    a('s_cmp_ge_u32 s4, 10')
    a('s_cbranch_scc1 K2_E0')
    a(f'v_mov_b32 v{POSV}, 0')
    a(f'buffer_load_short_d16_hi v{POSV}, v15, s[60:63], s5 offen')
    a(f'v_mul_u32_u24 v13, 171, v{IDX}')
    a('v_lshrrev_b32 v13, 9, v13')
    a('v_mul_u32_u24 v14, 3, v13')
    a(f'v_sub_u32 v14, v{IDX}, v14')
    a('v_lshlrev_b32 v14, 2, v14')
    a('v_lshl_add_u32 v13, v13, 4, v14')
    a(f'v_cmp_gt_u32 vcc, 120, v{IDX}')
    a(f's_add_u32 s5, s5, {G.N*256}')
    a.label('K2_E0')
    a('s_nop 7'); a('s_nop 3')
    a('s_mov_b64 exec, s[42:43]')
    a(f'ds_add_f32 v{E_ZOFF}, v{ZD} offset:{Z}')
    a('s_mov_b64 exec, -1')
    a('s_waitcnt lgkmcnt(0)')
    stamp(a, SV, 10)
    a('s_barrier')
    stamp(a, SV, 11)
    a('s_cmp_ge_u32 s4, 10')
    a('s_cbranch_scc1 K2_FIN')
    a(f'ds_read_b32 v16, v13 offset:{Z}')
    a('s_waitcnt vmcnt(0) lgkmcnt(0)')
    a(f'v_fma_f32 v16, s86, v16, v{POSV}')
    a('v_cvt_pk_bf16_f32 v16, v16, v16')
    a('s_mov_b64 exec, vcc')
    a('buffer_store_short v16, v15, s[68:71], s5 offen')
    a('s_branch K2_FIN')
    a.label('K2_EG')
    A1 = D1
    XA = (E_XA0, 121, 122, 123)
    a(f'v_lshlrev_b32 v120, 4, v{LANE}')
    a('v_add_u32 v120, s9, v120')
    for s in range(1, 4):
        a(f'v_xor_b32 v{XA[s]}, {64*s}, v{E_XA0}')
    FJ = (16, 32, 88)
    a('s_waitcnt vmcnt(4)')
    for s in range(4):
        a(f'ds_read_b128 {vr(A1+4*s,4)}, v120 offset:{s*1024}')
    for job in range(2):
        for s in range(4):
            a(f'ds_read_b128 {vr(FJ[job]+4*s,4)}, v{XA[s]} offset:{HS - TM + job*4096}')
    a('s_mov_b64 exec, s[42:43]')
    a(f'ds_add_f32 v{E_ZOFF}, v{ZD} offset:{Z}')
    a('s_mov_b64 exec, -1')
    for job in range(3):
        for s in range(4):
            rem = (3 - s) + (5 if job == 0 else 5 if job == 1 else 0)
            a(f's_waitcnt lgkmcnt({rem})')
            u = vr(U[job], 4)
            a(f'v_mfma_f32_16x16x32_bf16 {u}, {vr(A1+4*s,4)}, {vr(FJ[job]+4*s,4)}, {"0" if s == 0 else u}')
        if job == 0:
            for s in range(4):
                a(f'ds_read_b128 {vr(FJ[2]+4*s,4)}, v{XA[s]} offset:{HS - TM + 2*4096}')
    HBS = (52, 54, 20)
    for job in range(3):
        a(f'ds_read_b64 {vr(HBS[job],2)}, v{E_R1} offset:{HS - TM + job*4096}')
    a('s_lshl_b32 s10, s4, 5')
    a(f's_mul_i32 s11, s2, {G.NPB*256}')
    a('s_add_u32 s11, s11, s10')
    a(f'v_and_b32 v27, 15, v{LANE}')
    a('v_cmp_gt_u32 s[80:81], 8, v27')
    a('s_nop 2')
    for job in range(3):
        u = U[job]
        a(f'v_pk_mul_f32 {vr(u,2)}, {vr(u,2)}, s[88:89]')
        a(f'v_pk_mul_f32 {vr(u+2,2)}, {vr(u+2,2)}, s[88:89]')
    a('s_waitcnt lgkmcnt(0)')
    stamp(a, SV, 10)
    a('s_barrier')
    stamp(a, SV, 11)
    TB = (72, 88, 104)
    for job in range(3):
        for s in range(4):
            a(f'ds_read_b128 {vr(TB[job]+4*s,4)}, v{XA[s]} offset:{job*4096}')
    a('s_waitcnt vmcnt(0)')
    for job in range(3):
        for s in range(4):
            a(f's_waitcnt lgkmcnt({11 - 4*job - s})')
            u = vr(U[job], 4)
            a(f'v_mfma_f32_16x16x32_bf16 {u}, {vr(A2+4*s,4)}, {vr(TB[job]+4*s,4)}, {u}')
    def silu_job(job):
        u = U[job]; hb = HBS[job]
        for i in range(4): a(f'v_exp_f32 v{28+i}, v{u+i}')
        a(f'v_lshlrev_b32 v32, 16, v{hb}')
        a('v_pk_add_f32 v[28:29], v[28:29], 1.0 op_sel_hi:[1,0]')
        a('v_pk_add_f32 v[30:31], v[30:31], 1.0 op_sel_hi:[1,0]')
        for i in range(4): a(f'v_rcp_f32 v{28+i}, v{28+i}')
        a(f'v_and_b32 v33, 0xffff0000, v{hb}')
        a(f'v_lshlrev_b32 v34, 16, v{hb+1}')
        a(f'v_and_b32 v35, 0xffff0000, v{hb+1}')
        a(f'v_pk_mul_f32 {vr(u,2)}, {vr(u,2)}, v[28:29]')
        a(f'v_pk_mul_f32 {vr(u+2,2)}, {vr(u+2,2)}, v[30:31]')
        a(f'v_pk_fma_f32 v[32:33], {vr(u,2)}, s[86:87], v[32:33]')
        a(f'v_pk_fma_f32 v[34:35], {vr(u+2,2)}, s[86:87], v[34:35]')
        a(f'v_cvt_pk_bf16_f32 v{36+2*job}, v32, v33')
        a(f'v_cvt_pk_bf16_f32 v{37+2*job}, v34, v35')
    a('s_nop 1')
    silu_job(0)
    a(f'buffer_store_dwordx2 v[36:37], v{E_OUT}, s[68:71], s11 offen')
    silu_job(1)
    a('s_add_u32 s11, s11, 4096')
    a(f'buffer_store_dwordx2 v[38:39], v{E_OUT}, s[68:71], s11 offen')
    silu_job(2)
    a('s_add_u32 s11, s11, 4096')
    a('s_mov_b64 exec, s[80:81]')
    a(f'buffer_store_dwordx2 v[40:41], v{E_OUT}, s[68:71], s11 offen')
    a.label('K2_FIN')
    a('s_mov_b64 exec, -1')
    stamp(a, SV, 12)
    if STAMP: a('s_waitcnt vmcnt(0)')
    stamp(a, SV, 13); stamp(a, SV, 14, True)
    if STAMP:
        a('s_lshl_b32 s10, s4, 6')
        a(f'v_add_u32 v126, s10, v{LANE}')
        a('v_lshlrev_b32 v126, 2, v126')
        a.srd(40, 36, 2 << 20, 0x1100000)
        a('s_lshl_b32 s38, s2, 12')
        a(f'buffer_store_dword v{SV}, v126, s[40:43], s38 offen')
    a.label('K2_END')
    a('s_endpgm')

    a.label('K2_SLOW')
    a('s_cmp_lg_u32 s93, 0')
    a('s_cbranch_scc1 K2_RETRY')
    a('s_ff1_i32_b64 s94, s[90:91]')
    a('s_mov_b32 s77, 1')
    a('s_mov_b32 s78, s92')
    a.srd(72, 36, 256, G.WS_OVC)
    a('s_lshl_b32 s10, s94, 2')
    a('v_mov_b32 v48, s10')
    a('buffer_load_dword v49, v48, s[72:75], 0 offen')
    a('s_waitcnt vmcnt(0)')
    a('v_readfirstlane_b32 s79, v49')
    a('s_mov_b32 s15, s79')
    a('s_add_u32 s92, s92, 1024')
    a('s_cmp_lt_u32 s92, s79')
    a('s_cbranch_scc1 K2_SL1')
    a('s_bitset0_b64 s[90:91], s94')
    a('s_mov_b32 s92, 0')
    a.label('K2_SL1')
    a('s_mov_b32 s3, s79')
    a('s_mov_b64 s[100:101], -1')
    a('s_mov_b64 s[86:87], 0')
    a.label('K2_RETRY')
    a('s_cmp_eq_u32 s77, 0')
    a('s_cbranch_scc1 K2_RECELL')
    a.srd(44, 36, G.OVF_BYTES, G.WS_OVF)
    a(f's_mul_i32 s11, s94, {G.CH*16}')
    a('v_add_u32 v48, s78, v60')
    a('v_lshlrev_b32 v50, 4, v48')
    a('buffer_load_dwordx4 v[60:63], v50, s[44:47], s11 offen')
    a('s_waitcnt vmcnt(0)')
    a('v_cmp_gt_u32 vcc, s3, v48')
    a('v_cmp_eq_u32 s[80:81], s2, v62')
    a('s_and_b64 s[80:81], vcc, s[80:81]')
    a('s_and_b64 s[80:81], s[80:81], s[100:101]')
    a(f'v_mov_b32 v64, v60')
    a(f'v_mov_b32 v65, v61')
    a('s_mov_b64 s[84:85], 0')
    a('s_branch K2_SL2')
    a.label('K2_RECELL')
    a('v_lshlrev_b32 v50, 3, v60')
    a.srd(72, 36, G.C_BYTES, G.WS_C1)
    a('s_lshl_b32 s11, s2, 13')
    a('buffer_load_dwordx2 v[64:65], v50, s[72:75], s11 offen')
    a.srd(72, 36, G.C_BYTES, G.WS_C2)
    a('s_mov_b64 s[80:81], s[100:101]')
    a('s_mov_b64 s[84:85], s[86:87]')
    a('s_mov_b64 exec, s[84:85]')
    a('s_cbranch_execz K2_SL3')
    a('buffer_load_dwordx2 v[66:67], v50, s[72:75], s11 offen')
    a.label('K2_SL3')
    a('s_mov_b64 exec, -1')
    a('s_waitcnt vmcnt(0)')
    a.label('K2_SL2')
    a('s_waitcnt lgkmcnt(0)')
    a('s_barrier')
    RS = 64; S_A = 32; S_B = 33; S_ONE = 34; S_XO = 36
    a(f'v_mov_b32 v{S_ONE}, 1')
    phase1(RS, 72, 76, S_A, 80, 96, S_ONE)
    a('s_andn2_b64 s[100:101], s[80:81], s[96:97]')
    xaddr(RS, S_A, S_XO, 76)
    a('s_waitcnt vmcnt(0) lgkmcnt(0)')
    xbuild(RS+1, 72, 76, S_XO, 96)
    a('s_cmp_eq_u64 s[84:85], 0')
    a('s_cbranch_scc1 K2_SL4')
    phase1(RS+2, 80, 84, S_B, 84, 98, S_ONE)
    a('s_andn2_b64 s[86:87], s[84:85], s[98:99]')
    xaddr(RS+2, S_B, S_XO, 84)
    a('s_waitcnt vmcnt(0) lgkmcnt(0)')
    xbuild(RS+3, 80, 84, S_XO, 98)
    a.label('K2_SL4')
    a('s_or_b64 s[82:83], s[100:101], s[86:87]')
    a('s_cbranch_scc0 K2_SL5')
    a(f'v_mov_b32 v48, {FLAG}')
    a(f'ds_write_b32 v48, v{S_ONE}')
    a.label('K2_SL5')
    a('s_waitcnt lgkmcnt(0)')
    a('s_barrier')
    a('s_lshl_b32 s10, s7, 3')
    a('v_mov_b32 v48, s10')
    a(f'ds_read_b32 v50, v48 offset:{CNT}')
    a(f'v_mov_b32 v49, {FLAG}')
    a('ds_read_b32 v60, v49')
    a(f'ds_read_b128 {vr(X1R,4)}, v{V_X1B}')
    dma0_reads()
    a('s_waitcnt lgkmcnt(0)')
    dma0_issue()
    a('v_readfirstlane_b32 s8, v50')
    a('v_readfirstlane_b32 s93, v60')
    a(f's_min_u32 s8, s8, {CAP}')
    for i in range(4): a(f'v_mov_b32 v{EE+i}, 0')
    a('s_nop 1')
    a(f'v_mfma_f32_32x32x16_bf16 {vr(X2R,16)}, {vr(EE,4)}, {vr(EE,4)}, 0')
    a('s_branch K2_G1')
    a.raw(G.kd(name, NV))
```

```python
import sys, os
from asmlib import Asm, vr, sr, stamp, stamp_flush, STAMP

N = 10000; E = 160000; D = 128
NCH = 64; CH = E // NCH
NPB = 40; NB = N // NPB
WS_B = 0
WS_W = 0x280000
WS_WDE = WS_W + 0x18000
WS_OVC = 0x2A0000
WS_P16 = 0x2B0000
WS_C1 = 0x300000
WS_C2 = 0x500000
C_BYTES = NB * NCH * 128
WS_OVF = 0xA00000
OVF_BYTES = E * 16
GN = 64
N_GEMM = (N + GN - 1) // GN
N_P8 = 5
N_TR = 6
K1_GRID = NCH + N_GEMM + N_P8 + N_TR + 1
K1_LDS = 66560
NLOG2E = 0xbfb8aa3b
NLN2 = 0xbf317218

HEADER = open('standalone__cheap_equivariant_egnn__graph.s.ref').read().split('; Override')[0]

def kd(name, vgpr, sgpr=102):
    acc = (vgpr + 3) // 4 * 4
    return f'''.section .rodata,"a"
.p2align 6
.amdhsa_kernel {name}
  .amdhsa_next_free_vgpr {vgpr}
  .amdhsa_next_free_sgpr {sgpr}
  .amdhsa_accum_offset {acc}
  .amdhsa_group_segment_fixed_size 0
  .amdhsa_kernarg_size 88
  .amdhsa_user_sgpr_count 2
  .amdhsa_user_sgpr_kernarg_segment_ptr 1
  .amdhsa_system_sgpr_workgroup_id_x 1
.end_amdhsa_kernel
.text
'''

def kernel_head(a, name):
    a.raw(f'.globl {name}')
    a.raw('.p2align 8')
    a.raw(f'.type {name},@function')
    a.label(name)

def load_kernargs(a):
    a('s_load_dwordx16 s[16:31], s[0:1], 0')
    a('s_load_dwordx4 s[32:35], s[0:1], 64')
    a('s_load_dwordx2 s[36:37], s[0:1], 80')

SC = os.environ.get('SC', ' sc1')

def gen_k1(a):
    name = 'egnn_prep_kernel'
    SV = 126
    kernel_head(a, name)
    a(f's_cmp_ge_u32 s2, {K1_GRID}')
    a('s_cbranch_scc1 K1_END')
    stamp(a, SV, 7, True); stamp(a, SV, 8)
    load_kernargs(a)
    a(f's_cmp_lt_u32 s2, {NCH}')
    a('s_cbranch_scc1 K1_BIN')
    a(f's_cmp_lt_u32 s2, {NCH + N_GEMM}')
    a('s_cbranch_scc1 K1_GEMM')
    a(f's_cmp_lt_u32 s2, {NCH + N_GEMM + N_TR}')
    a('s_cbranch_scc1 K1_TR')
    a(f's_cmp_lt_u32 s2, {NCH + N_GEMM + N_TR + N_P8}')
    a('s_cbranch_scc1 K1_P8')
    a('s_branch K1_WDE')
    def endstamps():
        stamp(a, SV, 4)
        if STAMP: a('s_waitcnt vmcnt(0)')
        stamp(a, SV, 5); stamp(a, SV, 6, True)
        if STAMP:
            a('v_lshlrev_b32 v125, 2, v0')
            a.srd(40, 36, 1 << 20, 0x1000000)
            a('s_mov_b64 exec, -1')
            a('s_lshl_b32 s38, s2, 12')
            a(f'buffer_store_dword v{SV}, v125, s[40:43], s38 offen')

    CNT = 64000; OVFC = 65024
    NE = 3
    a.label('K1_BIN')
    a('v_mov_b32 v4, -1'); a('v_mov_b32 v5, -1'); a('v_mov_b32 v6, -1'); a('v_mov_b32 v7, -1')
    a('v_lshlrev_b32 v3, 4, v0')
    a('v_lshlrev_b32 v1, 2, v0')
    a('v_lshlrev_b32 v2, 1, v0')
    a('v_mov_b32 v8, 0')
    for j in range(NE): a(f'v_mov_b32 v{41+2*j}, 0')
    a(f'v_cmp_gt_u32 vcc, 257, v0')
    a('s_and_saveexec_b64 s[70:71], vcc')
    a(f'ds_write_b32 v1, v8 offset:{CNT}')
    a('s_mov_b64 exec, s[70:71]')
    for k in range(3):
        a(f'ds_write_b128 v3, v[4:7] offset:{k*16384}')
    LASTV = (NB*256 - 3*16384)//16
    a(f'v_cmp_gt_u32 vcc, {LASTV}, v0')
    a('s_and_saveexec_b64 s[70:71], vcc')
    a(f'ds_write_b128 v3, v[4:7] offset:{3*16384}')
    a('s_mov_b64 exec, s[70:71]')
    a(f's_mul_i32 s60, s2, {CH*4}')
    a('s_add_u32 s61, s60, 4096')
    a('s_add_u32 s62, s60, 8192')
    a(f's_mul_i32 s63, s2, {CH*2}')
    a('s_add_u32 s64, s63, 4096')
    a('s_waitcnt lgkmcnt(0)')
    stamp(a, SV, 0, True); stamp(a, SV, 1)
    a.srd(40, 24, E*4)
    a.srd(44, 22, E*4)
    a.srd(48, 20, E*2)
    TAIL = CH - 2048
    a(f'v_cmp_gt_u32 vcc, {TAIL}, v0')
    a('s_mov_b64 s[68:69], vcc')
    def tail_on(j):
        if j == NE-1: a('s_mov_b64 exec, s[68:69]')
    def tail_off(j):
        if j == NE-1: a('s_mov_b64 exec, -1')
    for j in range(NE):
        tail_on(j)
        a(f'buffer_load_dword v{10+j}, v1, s[40:43], s{60+j} offen')
        tail_off(j)
    for j in range(NE):
        tail_on(j)
        a(f'buffer_load_dword v{15+j}, v1, s[44:47], s{60+j} offen')
        tail_off(j)
    for j in range(NE):
        tail_on(j)
        a(f'buffer_load_short_d16_hi v{41+2*j}, v2, s[48:51], s{63 + j//2} offen offset:{(j%2)*2048}')
        tail_off(j)
    a.srd(52, 36, C_BYTES, WS_C1)
    a.srd(88, 36, C_BYTES, WS_C2)
    a.srd(56, 36, OVF_BYTES, WS_OVF)
    a.srd(72, 36, NCH*4, WS_OVC)
    a('s_barrier')
    a('s_mov_b32 s65, 52429')
    a('v_mov_b32 v6, 1')
    for j in range(NE):
        a(f's_waitcnt vmcnt({3*NE-1-j})')
        a(f'v_mul_u32_u24 v{25+j}, s65, v{10+j}')
        a(f'v_lshrrev_b32 v{25+j}, 21, v{25+j}')
        a(f'v_mul_u32_u24 v7, 40, v{25+j}')
        a(f'v_sub_u32 v{20+j}, v{10+j}, v7')
        a(f'v_lshlrev_b32 v{30+j}, 2, v{25+j}')
        tail_on(j)
        a(f'ds_add_rtn_u32 v{35+j}, v{30+j}, v6 offset:{CNT}')
        tail_off(j)
    for j in range(NE):
        a(f'v_mul_u32_u24 v7, 13, v{20+j}')
        a('v_lshrrev_b32 v7, 6, v7')
        a('v_mul_u32_u24 v8, 5, v7')
        a(f'v_sub_u32 v8, v{20+j}, v8')
        a('v_lshl_or_b32 v8, v7, 3, v8')
        a(f's_waitcnt vmcnt({2*NE-1-j})')
        a(f'v_lshl_or_b32 v{40+2*j}, v{15+j}, 8, v8')
    a('s_waitcnt vmcnt(0)')
    for j in range(NE):
        a(f'v_or_b32 v{41+2*j}, v{41+2*j}, v{10+j}')
    for j in range(NE):
        a(f's_waitcnt lgkmcnt({NE-1-j})')
        a(f'v_cmp_gt_u32 vcc, 32, v{35+j}')
        if j == NE-1:
            a('s_and_b64 vcc, vcc, s[68:69]')
        a(f'v_lshl_add_u32 v7, v{25+j}, 1, v{35+j}')
        a('v_and_b32 v7, 31, v7')
        a(f'v_lshlrev_b32 v8, 8, v{25+j}')
        a('v_lshl_add_u32 v7, v7, 3, v8')
        a('s_mov_b64 exec, vcc')
        a(f'ds_write_b64 v7, {vr(40+2*j,2)}')
        if j == NE-1:
            a('s_andn2_b64 exec, s[68:69], vcc')
        else:
            a('s_not_b64 exec, vcc')
        lab = a.newlabel('K1_NOV')
        a(f's_cbranch_execz {lab}')
        a(f'v_mov_b32 v9, {OVFC}')
        a('ds_add_rtn_u32 v8, v9, v6')
        a(f's_mul_i32 s76, s2, {CH*16}')
        a(f'v_mov_b32 v50, v{40+2*j}')
        a(f'v_mov_b32 v51, v{41+2*j}')
        a(f'v_mov_b32 v52, v{25+j}')
        a('v_mov_b32 v53, 0')
        a('s_waitcnt lgkmcnt(0)')
        a('v_lshlrev_b32 v8, 4, v8')
        a('buffer_store_dwordx4 v[50:53], v8, s[56:59], s76 offen')
        a('s_nop 1')
        a.label(lab)
        a('s_mov_b64 exec, -1')
    a('v_lshrrev_b32 v9, 3, v0')
    a('v_and_b32 v7, 7, v0')
    a('v_add_u32 v8, v7, v9')
    a('v_and_b32 v8, 15, v8')
    a('v_lshlrev_b32 v8, 4, v8')
    a('v_lshl_add_u32 v60, v9, 8, v8')
    a('v_xor_b32 v61, 128, v60')
    a('v_lshlrev_b32 v62, 2, v9')
    a('v_lshlrev_b32 v63, 13, v9')
    a('v_lshl_add_u32 v63, v7, 4, v63')
    a('s_lshl_b32 s77, s2, 7')
    a(f's_add_u32 s78, s77, {128*8192}')
    a(f'v_cmp_gt_u32 vcc, {(NB-128)*8}, v0')
    a('s_mov_b64 s[66:67], vcc')
    a('s_waitcnt lgkmcnt(0)')
    stamp(a, SV, 2)
    a('s_barrier')
    a('ds_read_b128 v[64:67], v60')
    a(f'ds_read_b128 v[68:71], v60 offset:{128*256}')
    a(f'ds_read_b32 v72, v62 offset:{CNT}')
    a(f'ds_read_b32 v73, v62 offset:{CNT+512}')
    a(f'v_mov_b32 v9, {OVFC}')
    a('ds_read_b32 v8, v9')
    a('s_mov_b32 s79, 0x80000000')
    for k in range(2):
        b = 64 + 4*k
        a(f's_waitcnt lgkmcnt({2-k})' if k == 0 else 's_waitcnt lgkmcnt(1)')
        a(f'v_cmp_lt_u32 s[{82+2*k}:{83+2*k}], 16, v{72+k}')
        a(f'v_or_b32 v74, s79, v{b}')
        a(f'v_or_b32 v75, s79, v{b+2}')
        a(f'v_cndmask_b32 v{b}, v{b}, v74, s[{82+2*k}:{83+2*k}]')
        a(f'v_cndmask_b32 v{b+2}, v{b+2}, v75, s[{82+2*k}:{83+2*k}]')
        if k == 1: a('s_mov_b64 exec, s[66:67]')
        a(f'buffer_store_dwordx4 {vr(b,4)}, v63, s[52:55], s{77+k} offen{SC}')
    a('s_mov_b64 exec, -1')
    for k in range(2):
        lab = a.newlabel('K1_NH')
        if k == 0: a('s_mov_b64 exec, s[82:83]')
        else: a('s_and_b64 exec, s[84:85], s[66:67]')
        a(f's_cbranch_execz {lab}')
        a(f'ds_read_b128 v[76:79], v61 offset:{k*128*256}')
        a('s_waitcnt lgkmcnt(0)')
        a(f'buffer_store_dwordx4 v[76:79], v63, s[88:91], s{77+k} offen{SC}')
        a('s_nop 1')
        a.label(lab)
        a('s_mov_b64 exec, -1')
    a('s_waitcnt lgkmcnt(0)')
    a('v_cmp_eq_u32 vcc, 0, v0')
    a('s_and_saveexec_b64 s[70:71], vcc')
    a('s_cbranch_execz K1_BIN_SK2')
    a('s_lshl_b32 s77, s2, 2')
    a('v_mov_b32 v9, 0')
    a(f'buffer_store_dword v8, v9, s[72:75], s77 offen{SC}')
    a.label('K1_BIN_SK2')
    a('s_mov_b64 exec, s[70:71]')
    endstamps()
    a('s_endpgm')

    a.label('K1_GEMM')
    W2S = 0; HT = 32768; OT = 49152
    a(f's_sub_u32 s3, s2, {NCH}')
    a('v_and_b32 v1, 63, v0')
    a('v_lshrrev_b32 v2, 6, v0')
    a('v_lshrrev_b32 v3, 4, v1')
    a('v_readfirstlane_b32 s4, v2')
    a('v_and_b32 v4, 15, v1')
    a('v_lshlrev_b32 v5, 2, v3')
    a('v_xor_b32 v5, v5, v4')
    a('v_lshlrev_b32 v5, 4, v5')
    a('v_lshl_add_u32 v5, v3, 8, v5')
    a('s_and_b32 s10, s4, 3')
    a('s_lshl_b32 s10, s10, 2')
    a('v_or_b32 v6, s10, v3')
    a('v_xor_b32 v6, v6, v4')
    a('v_lshlrev_b32 v6, 4, v6')
    a('v_lshl_add_u32 v6, v3, 8, v6')
    a('s_lshl_b32 s5, s4, 10')
    a(f's_mul_i32 s8, s3, {GN*256}')
    a('s_add_u32 s9, s8, s5')
    a('s_lshl_b32 s6, s4, 11')
    a('s_add_u32 s7, s6, 32768')
    a('s_waitcnt lgkmcnt(0)')
    stamp(a, SV, 0, True); stamp(a, SV, 1)
    a.srd(44, 16, N*256)
    a.srd(40, 26, 258*256)
    a(f's_add_u32 m0, s5, {HT}')
    a('s_nop 0')
    a(f'buffer_load_dwordx4 v6, s[44:47], s9 offen lds')
    for i in range(2):
        a(f's_add_u32 m0, s6, {W2S + i*1024}')
        a('s_nop 0')
        a('buffer_load_dwordx4 v5, s[40:43], s7 offen lds')
        a('s_add_u32 s7, s7, 1024')
    a.srd(48, 36, N*256, WS_B)
    a('s_and_b32 s12, s4, 3')
    a('s_lshr_b32 s13, s4, 2')
    a('v_and_b32 v4, 31, v1')
    a('v_lshrrev_b32 v5, 5, v1')
    a('v_and_b32 v7, 15, v1')
    a('v_lshrrev_b32 v8, 2, v7')
    a('v_and_b32 v9, 3, v7')
    a('v_lshl_add_u32 v10, v5, 3, v8')
    a('v_lshlrev_b32 v10, 8, v10')
    a('v_and_b32 v11, 1, v9')
    a('v_lshlrev_b32 v11, 5, v11')
    a('v_lshrrev_b32 v12, 1, v9')
    a('v_lshl_add_u32 v11, v12, 3, v11')
    a('v_bfe_u32 v12, v1, 4, 1')
    a('v_lshl_add_u32 v11, v12, 4, v11')
    a('v_xor_b32 v12, s12, v8')
    a('v_lshl_add_u32 v11, v12, 6, v11')
    a('v_add_u32 v10, v10, v11')
    a('v_and_b32 v11, 15, v4')
    a('v_xor_b32 v11, v11, v5')
    a('v_lshlrev_b32 v11, 4, v11')
    a('v_lshl_add_u32 v11, v4, 8, v11')
    a('s_lshl_b32 s14, s13, 13')
    a(f's_add_u32 s15, s14, {HT}')
    a('v_add_u32 v11, s15, v11')
    a('v_and_b32 v12, 15, v4')
    a('v_lshlrev_b32 v13, 1, v5')
    a('s_lshl_b32 s15, s12, 2')
    a('v_add_u32 v13, s15, v13')
    a('v_xor_b32 v13, v13, v12')
    a('v_lshlrev_b32 v13, 4, v13')
    a('v_lshl_add_u32 v13, v4, 8, v13')
    a(f's_add_u32 s14, s14, {OT}')
    a('v_add_u32 v13, s14, v13')
    a('v_xor_b32 v14, 16, v13')
    a('v_lshlrev_b32 v15, 4, v1')
    a(f's_add_u32 s14, s5, {OT}')
    a('v_add_u32 v15, s14, v15')
    a(f's_mov_b32 s14, {NLOG2E}')
    a(f's_mov_b32 s15, {NLOG2E}')
    a('s_waitcnt vmcnt(0)')
    stamp(a, SV, 2)
    a('s_barrier')
    a('s_cmp_ge_u32 s4, 8')
    a('s_cbranch_scc1 K1_G2')
    XB = 32
    for s in range(8):
        a(f'ds_read_b64_tr_b16 {vr(XB+4*s,2)}, v10 offset:{s*4096}')
        a(f'ds_read_b64_tr_b16 {vr(XB+4*s+2,2)}, v10 offset:{s*4096+1024}')
    DB = 96
    HB = 64
    for s in range(8):
        if s: a(f'v_xor_b32 v12, {32*s}, v11')
        a(f'ds_read_b128 {vr(HB+4*s,4)}, v{12 if s else 11}')
    for s in range(8):
        a(f's_waitcnt lgkmcnt({7-s})')
        cin = '0' if s == 0 else vr(DB, 16)
        a(f'v_mfma_f32_32x32x16_bf16 {vr(DB,16)}, {vr(XB+4*s,4)}, {vr(HB+4*s,4)}, {cin}')
    stamp(a, SV, 3)
    a('s_nop 7'); a('s_nop 3')
    for p in range(8):
        a(f'v_pk_mul_f32 {vr(DB+2*p,2)}, {vr(DB+2*p,2)}, s[14:15]')
    for p in range(8):
        a(f'v_cvt_pk_bf16_f32 v{XB+p}, v{DB+2*p}, v{DB+2*p+1}')
    a(f'ds_write_b128 v13, {vr(XB,4)}')
    a(f'ds_write_b128 v14, {vr(XB+4,4)}')
    a.label('K1_G2')
    a('s_waitcnt lgkmcnt(0)')
    a('s_barrier')
    a(f'ds_read_b128 {vr(XB,4)}, v15')
    a('s_waitcnt lgkmcnt(0)')
    a(f'buffer_store_dwordx4 {vr(XB,4)}, v6, s[48:51], s9 offen{SC}')
    endstamps()
    a('s_endpgm')

    a.label('K1_TR')
    a(f's_sub_u32 s3, s2, {NCH + N_GEMM}')
    a('v_and_b32 v1, 63, v0')
    a('v_lshrrev_b32 v2, 8, v0')
    a('s_lshl_b32 s4, s3, 2')
    a('v_add_u32 v2, s4, v2')
    a('v_and_b32 v4, 7, v2')
    a('v_bfe_u32 v5, v0, 6, 2')
    a('v_lshlrev_b32 v6, 5, v5')
    a('v_lshrrev_b32 v7, 4, v1')
    a('v_lshl_add_u32 v6, v7, 3, v6')
    a('v_lshlrev_b32 v6, 8, v6')
    a('v_and_b32 v7, 15, v1')
    a('v_lshl_add_u32 v7, v4, 4, v7')
    a('v_lshl_add_u32 v6, v7, 1, v6')
    a('s_lshr_b32 s5, s3, 1')
    a('s_waitcnt lgkmcnt(0)')
    stamp(a, SV, 0, True); stamp(a, SV, 1)
    a('s_cmp_eq_u32 s5, 0')
    a('s_cselect_b32 s40, s26, s30')
    a('s_cselect_b32 s41, s27, s31')
    a('s_mov_b32 s42, 65536')
    a('s_mov_b32 s43, 0x20000')
    a('s_cmp_eq_u32 s5, 2')
    a('s_cselect_b32 s6, 32768, 0')
    a.srd(44, 36, 3*32768, WS_W)
    a('v_add_u32 v6, s6, v6')
    for i in range(8):
        a(f'buffer_load_ushort v{16+i}, v6, s[40:43], 0 offen offset:{i*256}')
    a('v_lshlrev_b32 v5, 4, v0')
    a('s_lshl_b32 s9, s3, 14')
    a('s_waitcnt vmcnt(0)')
    for p in range(4):
        a(f'v_lshl_or_b32 v{8+p}, v{16+2*p+1}, 16, v{16+2*p}')
    a(f'buffer_store_dwordx4 v[8:11], v5, s[44:47], s9 offen{SC}')
    endstamps()
    a('s_endpgm')

    a.label('K1_P8')
    a(f's_sub_u32 s3, s2, {NCH + N_GEMM + N_TR}')
    a('s_lshl_b32 s3, s3, 10')
    a('v_add_u32 v1, s3, v0')
    a(f'v_cmp_gt_u32 vcc, {N//2}, v1')
    a('s_and_saveexec_b64 s[70:71], vcc')
    a('s_cbranch_execz K1_END')
    a('v_mul_u32_u24 v2, 12, v1')
    a('v_lshlrev_b32 v3, 5, v1')
    a('s_waitcnt lgkmcnt(0)')
    a.srd(40, 18, N*6)
    a.srd(44, 36, N*16, WS_P16)
    a('buffer_load_dwordx3 v[4:6], v2, s[40:43], 0 offen')
    a('v_mov_b32 v11, 0'); a('v_mov_b32 v15, 0')
    a('s_waitcnt vmcnt(0)')
    a('v_lshlrev_b32 v8, 16, v4')
    a('v_and_b32 v9, 0xffff0000, v4')
    a('v_lshlrev_b32 v10, 16, v5')
    a('v_and_b32 v12, 0xffff0000, v5')
    a('v_lshlrev_b32 v13, 16, v6')
    a('v_and_b32 v14, 0xffff0000, v6')
    a(f'buffer_store_dwordx4 v[8:11], v3, s[44:47], 0 offen{SC}')
    a(f'buffer_store_dwordx4 v[12:15], v3, s[44:47], 0 offen offset:16{SC}')
    a('s_endpgm')

    a.label('K1_WDE')
    a('v_cmp_gt_u32 vcc, 256, v0')
    a('s_and_saveexec_b64 s[70:71], vcc')
    a('s_cbranch_execz K1_END')
    a('v_lshlrev_b32 v1, 1, v0')
    a('s_waitcnt lgkmcnt(0)')
    a.srd(40, 26, 258*256)
    a.srd(44, 36, 1024, WS_WDE)
    a('s_mov_b32 s10, 65536')
    a('v_mov_b32 v2, 0')
    a('buffer_load_short_d16_hi v2, v1, s[40:43], s10 offen')
    a(f's_mov_b32 s11, {NLOG2E}')
    a('s_waitcnt vmcnt(0)')
    a('v_mul_f32 v2, s11, v2')
    a('v_cvt_pk_bf16_f32 v3, v2, v2')
    a('v_lshlrev_b32 v4, 16, v3')
    a('v_sub_f32 v4, v2, v4')
    a('v_cvt_pk_bf16_f32 v4, v4, v4')
    a(f'buffer_store_short v3, v1, s[44:47], 0 offen{SC}')
    a(f'buffer_store_short v4, v1, s[44:47], 0 offen offset:512{SC}')
    a.label('K1_END')
    a('s_endpgm')
    a.raw(kd(name, 128))

def build(k2=True):
    a = Asm()
    hdr = HEADER
    hdr += f'; @launch kernel=egnn_prep_kernel grid=({K1_GRID},1,1) block=(1024,1,1) lds={K1_LDS}\n'
    if k2:
        import gen6_k2
        hdr += f'; @launch kernel=egnn_edge_kernel grid=({NB},1,1) block=(1024,1,1) lds={gen6_k2.K2_LDS}\n'
    a.raw(hdr + '.amdgcn_target "amdgcn-amd-amdhsa--gfx950"\n.text')
    gen_k1(a)
    if k2:
        gen6_k2.gen_k2(a)
    return a.text()

if __name__ == '__main__':
    k2 = '--nok2' not in sys.argv
    out = sys.argv[1] if len(sys.argv) > 1 and not sys.argv[1].startswith('--') else 'full6.s'
    open(out, 'w').write(build(k2))
    print('wrote', out)
```

```python
from asmlib import Asm, vr, sr, stamp, stamp_flush, STAMP
import gen8 as G
import os

X2 = 0; X2T = 1280
X1 = 40960
RAW = 57344
CNT = 61440
FLAG = CNT + 64
Z = 61568
WX = 62208
AR = 62464; ARS = 272
WDEL = AR + 40*ARS
HS = WDEL + 1024
UB = HS + 10240
RING = UB + 10240
K2_LDS = RING + 65536
CAP = 128
assert AR % 256 == 0 and RING % 128 == 0 and K2_LDS <= 163840

LANE = 1
V_CB = 2; V_X1B = 3; V_X2B = 4; V_RAWB = 5; V_GOFF = 6; PEND = 7; RR = 8
Y1 = 20; X1R = 28; X2R = 32; MP = 40; EE = 48; DA = 52
D0 = 56; D1 = 72; ACC = 88
OVCV = 120; SA = 121; SB = 122; VY0 = 123; VY1 = 124; POSV = 125
SV = 126
NV = 128
PRIO = os.environ.get('PRIO', '1') == '1'
OPT = G.OPT
ONT = ' nt' if 'noont' not in OPT else ''
UPOS = os.environ.get('UPOS', 'afterC')

def gen_k2(a):
    name = 'egnn_edge_kernel'
    G.kernel_head(a, name)
    a(f's_cmp_ge_u32 s2, {G.NB}')
    a('s_cbranch_scc1 K2_END')
    stamp(a, SV, 20, True); stamp(a, SV, 21)
    G.load_kernargs(a)
    a('v_lshrrev_b32 v11, 6, v0')
    a(f'v_and_b32 v{LANE}, 63, v0')
    a('v_readfirstlane_b32 s4, v11')
    def zero_lds():
        a('v_mov_b32 v16, 0'); a('v_mov_b32 v17, 0'); a('v_mov_b32 v18, 0'); a('v_mov_b32 v19, 0')
        a('v_lshlrev_b32 v13, 4, v0')
        for i in range(3):
            a(f'ds_write_b128 v13, v[16:19] offset:{i*16384}')
        lab = a.newlabel('K2_Z')
        a('s_cmp_ge_u32 s4, 12')
        a(f's_cbranch_scc1 {lab}')
        a(f'ds_write_b128 v13, v[16:19] offset:{3*16384}')
        a.label(lab)
        lab = a.newlabel('K2_Z')
        a('s_cmp_lg_u32 s4, 15')
        a(f's_cbranch_scc1 {lab}')
        a(f'v_lshlrev_b32 v13, 4, v{LANE}')
        a('s_mov_b32 exec_hi, 0xffff')
        a(f'ds_write_b128 v13, v[16:19] offset:{CNT}')
        a('s_mov_b64 exec, -1')
        a.label(lab)
    zero_lds()
    a('s_and_b32 s5, s4, 3')
    a('s_lshr_b32 s6, s5, 1')
    a('s_and_b32 s5, s5, 1')
    a('s_lshr_b32 s7, s4, 2')
    a('s_lshl_b32 s7, s7, 1')
    a('s_add_u32 s7, s7, s5')
    a('s_lshl_b32 s9, s4, 12')
    a(f's_add_u32 s9, s9, {RING}')
    a('v_lshlrev_b32 v19, 3, v0')
    a(f'v_lshlrev_b32 v15, 4, v{LANE}')
    a(f'v_lshlrev_b32 v13, 2, v{LANE}')
    a('s_lshl_b32 s8, s2, 13')
    a(f's_mul_i32 s78, s2, {G.NPB*8}')
    a('s_waitcnt lgkmcnt(0)')
    stamp(a, SV, 0, True); stamp(a, SV, 1)
    a.srd(40, 36, G.C_BYTES, G.WS_C1)
    a(f'buffer_load_dwordx2 {vr(RR,2)}, v19, s[40:43], s8 offen')
    a.srd(44, 36, 256, G.WS_OVC)
    a(f'buffer_load_dword v{OVCV}, v13, s[44:47], 0 offen')
    a('s_barrier')
    stamp(a, SV, 2)
    a.srd(56, 36, 3*32768, G.WS_W)
    a.srd(64, 36, G.N*8, G.WS_P8)
    a('s_and_b32 s5, s4, 3')
    a('s_cmp_lt_u32 s4, 4')
    a('s_cbranch_scc1 K2_JA')
    a('s_cmp_ge_u32 s4, 8')
    a('s_cbranch_scc1 K2_J3')
    a.srd(52, 16, G.N*256)
    a(f's_mul_i32 s10, s2, {G.NPB*256}')
    a(f'v_lshrrev_b32 v16, 4, v{LANE}')
    a(f'v_and_b32 v18, 15, v{LANE}')
    a('v_xor_b32 v17, v16, v18')
    a('v_lshlrev_b32 v17, 4, v17')
    a('v_lshl_add_u32 v17, v16, 8, v17')
    def hs_dma(i):
        x = (i & 3) * 64
        if x: a(f'v_xor_b32 v18, {x}, v17')
        a(f's_add_u32 s11, s10, {i*1024}')
        a(f's_mov_b32 m0, {HS + i*1024}')
        a('s_nop 0')
        a(f'buffer_load_dwordx4 v{18 if x else 17}, s[52:55], s11 offen lds')
    a('s_cmp_eq_u32 s4, 5')
    a('s_cbranch_scc1 K2_JH5')
    a('s_cmp_eq_u32 s4, 6')
    a('s_cbranch_scc1 K2_JH6')
    a('s_cmp_eq_u32 s4, 7')
    a('s_cbranch_scc1 K2_JH7')
    for i in (0, 1, 2): hs_dma(i)
    a('s_branch K2_J3')
    a.label('K2_JH5')
    for i in (3, 4, 5): hs_dma(i)
    a('s_branch K2_J3')
    a.label('K2_JH6')
    for i in (6, 7): hs_dma(i)
    a('s_branch K2_J3')
    a.label('K2_JH7')
    for i in (8, 9): hs_dma(i)
    a('s_branch K2_J3')
    a.label('K2_JA')
    a('s_lshl_b32 s10, s5, 13')
    a('s_add_u32 s11, s10, 4096')
    for i in range(4):
        a(f'buffer_load_dwordx4 {vr(D1+4*i,4)}, v15, s[56:59], s10 offen offset:{i*1024}')
    for i in range(4):
        a(f'buffer_load_dwordx4 {vr(20+4*i,4)}, v15, s[56:59], s11 offen offset:{i*1024}')
    a.label('K2_J3')
    a.srd(48, 36, G.N*256, G.WS_B)
    a.srd(68, 32, G.N*256 + G.N*6)
    a('s_mov_b32 s77, 0x003fff00')
    a('s_mov_b32 s76, 1')
    a(f'v_and_b32 v13, 31, v{LANE}')
    a(f'v_lshrrev_b32 v14, 5, v{LANE}')
    a('v_bfe_u32 v15, v13, 2, 1')
    a('v_lshlrev_b32 v15, 4, v15')
    a('v_lshrrev_b32 v16, 3, v13')
    a('v_lshl_add_u32 v15, v16, 2, v15')
    a('v_and_b32 v16, 3, v13')
    a('v_add_u32 v15, v15, v16')
    a('v_lshlrev_b32 v15, 1, v15')
    a('v_lshl_add_u32 v15, v14, 9, v15')
    a(f'v_add_u32 v{V_CB}, s9, v15')
    def tile0_addresses():
        a('s_lshl_b32 s10, s7, 11')
        a(f's_add_u32 s10, s10, {X1}')
        a('v_lshlrev_b32 v15, 4, v13')
        a(f'v_add_u32 v{V_X1B}, s10, v15')
        a(f's_mul_i32 s10, s7, {4*X2T}')
        a('v_min_u32 v15, 19, v13')
        a('v_lshlrev_b32 v15, 4, v15')
        a('v_mul_u32_u24 v16, 320, v14')
        a(f'v_add3_u32 v{V_X2B}, s10, v15, v16')
        a('s_lshl_b32 s10, s7, 9')
        a(f's_add_u32 s10, s10, {RAW}')
        a(f'v_lshrrev_b32 v15, 3, v{LANE}')
        a('v_lshlrev_b32 v15, 2, v15')
        a(f'v_add_u32 v{V_RAWB}, s10, v15')
    tile0_addresses()
    a('s_lshl_b32 s11, s6, 7')
    a(f'v_and_b32 v15, 7, v{LANE}')
    a('v_lshlrev_b32 v15, 4, v15')
    a(f'v_add_u32 v{V_GOFF}, s11, v15')
    a(f'v_and_b32 v16, 15, v{LANE}')
    a('v_lshrrev_b32 v17, 2, v16')
    a('v_and_b32 v16, 3, v16')
    a('v_and_b32 v18, 1, v16')
    a('v_lshlrev_b32 v18, 5, v18')
    a('v_lshrrev_b32 v16, 1, v16')
    a('v_lshl_add_u32 v18, v16, 3, v18')
    a(f'v_bfe_u32 v16, v{LANE}, 4, 1')
    a('v_lshl_add_u32 v18, v16, 4, v18')
    a('s_lshl_b32 s10, s6, 7')
    a('v_add_u32 v18, s10, v18')
    a(f's_mul_i32 s11, s7, {5*ARS}')
    a(f'v_cmp_lt_u32 vcc, 31, v{LANE}')
    a('v_cmp_gt_u32 s[80:81], 2, v17')
    a('v_cmp_gt_u32 s[82:83], 3, v17')
    a(f's_add_u32 s12, s11, {AR - 2*ARS}')
    a(f'v_mul_u32_u24 v13, {ARS}, v17')
    a('v_add_u32 v13, s12, v13')
    a('v_lshlrev_b32 v14, 8, v17')
    a(f'v_add_u32 v15, {WDEL}, v14')
    a('v_cndmask_b32 v13, v13, v15, s[80:81]')
    a(f'v_add_u32 v15, {WDEL+512}, v14')
    a(f'v_mov_b32 v16, {Z}')
    a('v_cndmask_b32 v15, v16, v15, s[80:81]')
    a('v_cndmask_b32 v13, v13, v15, vcc')
    a(f'v_add_u32 v{VY0}, v13, v18')
    a(f's_add_u32 s12, s11, {AR + 2*ARS}')
    a(f'v_mul_u32_u24 v13, {ARS}, v17')
    a('v_add_u32 v13, s12, v13')
    a('v_cndmask_b32 v13, v16, v13, s[82:83]')
    a('v_cndmask_b32 v13, v13, v16, vcc')
    a(f'v_add_u32 v{VY1}, v13, v18')
    for i in range(32):
        a(f'v_mov_b32 v{ACC+i}, 0')
    a('s_mov_b32 s92, 0')
    a('s_cmp_lt_u32 s4, 4')
    a('s_cbranch_scc1 K2_W9')
    a('s_cmp_lt_u32 s4, 6')
    a('s_cbranch_scc1 K2_W4')
    a('s_cmp_lt_u32 s4, 8')
    a('s_cbranch_scc1 K2_W3')
    a('s_waitcnt vmcnt(1)')
    a('s_branch K2_WD')
    a.label('K2_W3')
    a('s_waitcnt vmcnt(3)')
    a('s_branch K2_WD')
    a.label('K2_W4')
    a('s_waitcnt vmcnt(4)')
    a('s_branch K2_WD')
    a.label('K2_W9')
    a('s_waitcnt vmcnt(9)')
    a.label('K2_WD')
    stamp(a, SV, 3)
    a(f'v_cmp_ne_u32 vcc, -1, v{RR}')
    a(f'v_cmp_gt_i32 s[84:85], 0, v{RR}')
    a(f'v_mov_b32 v{RR+2}, -1')
    a(f'v_cndmask_b32 v{PEND}, 0, 1, vcc')
    a('s_and_b64 s[84:85], s[84:85], vcc')
    a('s_cmp_eq_u64 s[84:85], 0')
    a('s_cbranch_scc1 K2_ROUND')
    a.srd(72, 36, G.C_BYTES, G.WS_C2)
    a('s_mov_b64 exec, s[84:85]')
    a(f'buffer_load_dwordx2 {vr(RR+2,2)}, v19, s[72:75], s8 offen')
    a('s_mov_b64 exec, -1')

    PSA = 56; PDA = 58; PSB = 60; PDB = 62
    def phase1(w0, ps, pd, S, pm):
        a(f'v_and_b32 v14, 0x38, v{w0}')
        a(f'ds_add_rtn_u32 v16, v14, v12 offset:{CNT}')
        if 'fullg' in OPT: a('s_mov_b64 exec, -1')
        a(f'v_bfe_u32 v13, v{w0}, 8, 14')
        a('v_lshlrev_b32 v13, 3, v13')
        a(f'v_and_b32 v14, 0x38, v{w0}')
        a(f'v_and_b32 v15, 7, v{w0}')
        a('v_lshlrev_b32 v15, 3, v15')
        a('v_mad_u32_u24 v15, v14, 5, v15')
        a(f'buffer_load_dwordx2 {vr(ps,2)}, v13, s[64:67], 0 offen')
        a(f'buffer_load_dwordx2 {vr(pd,2)}, v15, s[64:67], s78 offen')
        a('s_mov_b64 exec, s[80:81]')
        a('s_waitcnt lgkmcnt(0)')
        a(f'v_cmp_gt_u32 vcc, {CAP}, v16')
        a(f'v_lshl_add_u32 v{S}, v14, 4, v16')
        a('s_and_b64 exec, exec, vcc')
        a(f's_mov_b64 s[{pm}:{pm+1}], exec')
        a(f'v_lshlrev_b32 v13, 2, v{S}')
        a(f'ds_write_b32 v13, v{w0} offset:{RAW}')
    def xaddr(w0, S, o1, o2):
        a(f'v_lshlrev_b32 v{o1}, 4, v{S}')
        a(f'v_lshrrev_b32 v16, 5, v{S}')
        a(f'v_mul_u32_u24 v16, {X2T}, v16')
        a(f'v_bfe_u32 v17, v{S}, 4, 1')
        a(f'v_bfe_u32 v18, v{S}, 2, 1')
        a('v_lshl_add_u32 v17, v17, 1, v18')
        a('v_mul_u32_u24 v17, 320, v17')
        a(f'v_and_b32 v18, 8, v{S}')
        a('v_add3_u32 v16, v16, v17, v18')
        a(f'v_and_b32 v18, 3, v{S}')
        a('v_lshl_add_u32 v16, v18, 1, v16')
        a(f'v_and_b32 v17, 7, v{w0}')
        a(f'v_lshl_add_u32 v{o1+1}, v17, 1, v{o1}')
        a(f'v_lshl_add_u32 v{o2}, v17, 6, v16')
    def xbuild(ea, ps, pd, o1, o2, pm):
        a(f'v_lshlrev_b32 v64, 16, v{pd}')
        a(f'v_and_b32 v65, 0xffff0000, v{pd}')
        a(f'v_lshlrev_b32 v66, 16, v{ps}')
        a(f'v_and_b32 v67, 0xffff0000, v{ps}')
        a(f'v_lshlrev_b32 v68, 16, v{pd+1}')
        a(f'v_lshlrev_b32 v69, 16, v{ps+1}')
        a('v_pk_add_f32 v[64:65], v[64:65], v[66:67] neg_lo:[0,1] neg_hi:[0,1]')
        a('v_sub_f32 v68, v68, v69')
        a('v_cvt_pk_bf16_f32 v70, v64, v65')
        a('v_cvt_pk_bf16_f32 v71, v68, v68')
        a('v_lshlrev_b32 v64, 16, v70')
        a('v_and_b32 v65, 0xffff0000, v70')
        a('v_lshlrev_b32 v66, 16, v71')
        a('v_mul_f32 v64, v64, v64')
        a('v_fma_f32 v64, v65, v65, v64')
        a('v_fma_f32 v64, v66, v66, v64')
        a('v_mov_b32 v69, 0x3f80')
        a(f'v_cvt_pk_bf16_f32 v64, v64, v{ea}')
        a(f's_mov_b64 exec, s[{pm}:{pm+1}]')
        a(f'ds_write_b32 v{o1}, v64 offset:{X1}')
        a(f'ds_write_b16 v{o1+1}, v69 offset:{X1+4}')
        a(f'ds_write_b16 v{o2}, v69 offset:{X2}')
        a(f'ds_write_b16 v{o2}, v70 offset:{X2+16}')
        a(f'ds_write_b16_d16_hi v{o2}, v70 offset:{X2+32}')
        a(f'ds_write_b16 v{o2}, v71 offset:{X2+48}')
        a('s_mov_b64 exec, -1')
    def dma0():
        for i in range(4):
            a(f'ds_read_b32 v{DA+i}, v{V_RAWB} offset:{32*i}')
        a('s_waitcnt lgkmcnt(0)')
        for i in range(4):
            a(f'v_and_or_b32 v{DA+i}, v{DA+i}, s77, v{V_GOFF}')
        for i in range(4):
            a(f's_add_u32 m0, s9, {i*1024}')
            a('s_nop 0')
            a(f'buffer_load_dwordx4 v{DA+i}, s[48:51], 0 offen lds')
    def node_gemm(F, BS, AC, dest, strideB, swz):
        a(f'v_and_b32 v18, 15, v{LANE}')
        a(f'v_lshrrev_b32 v19, 4, v{LANE}')
        a('v_xor_b32 v17, v19, v18')
        a('v_lshlrev_b32 v17, 4, v17')
        a('v_lshl_add_u32 v16, v18, 8, v17')
        a(f'v_add_u32 v16, {AR}, v16')
        a('v_xor_b32 v13, 64, v16')
        a('v_xor_b32 v14, 128, v16')
        a('v_xor_b32 v15, 192, v16')
        XA0 = (16, 13, 14, 15)
        a(f's_mov_b32 s88, {G.NLOG2E}'); a(f's_mov_b32 s89, {G.NLOG2E}')
        def reads(nt):
            for s in range(4):
                a(f'ds_read_b128 {vr(BS[nt&1]+4*s,4)}, v{XA0[s]} offset:{HS - AR + nt*4096}')
        def mm(nt, base_wait):
            for s in range(4):
                a(f's_waitcnt lgkmcnt({base_wait + 3 - s})')
                for j in range(2):
                    u = vr(AC[nt][j], 4)
                    a(f'v_mfma_f32_16x16x32_bf16 {u}, {vr(F[j]+4*s,4)}, {vr(BS[nt&1]+4*s,4)}, {"0" if s == 0 else u}')
        reads(0); reads(1)
        mm(0, 4)
        reads(2)
        mm(1, 4)
        mm(2, 0)
        if swz:
            a('s_lshl_b32 s10, s5, 6')
            a('v_xor_b32 v16, s10, v16')
            off = dest - AR
            rs = 4096
        else:
            a(f'v_mul_u32_u24 v16, {strideB}, v18')
            a('v_lshl_add_u32 v16, v19, 4, v16')
            a('s_lshl_b32 s10, s5, 6')
            a(f's_add_u32 s10, s10, {dest}')
            a('v_add_u32 v16, s10, v16')
            off = 0
            rs = 16*strideB
        a('v_cmp_gt_u32 vcc, 8, v18')
        for nt in range(3):
            if nt == 2: a('s_nop 4')
            for j in range(2):
                u = AC[nt][j]
                a(f'v_pk_mul_f32 {vr(u,2)}, {vr(u,2)}, s[88:89]')
                a(f'v_pk_mul_f32 {vr(u+2,2)}, {vr(u+2,2)}, s[88:89]')
            r = AC[nt][0]
            a(f'v_cvt_pk_bf16_f32 v{r}, v{r}, v{r+1}')
            a(f'v_cvt_pk_bf16_f32 v{r+1}, v{r+2}, v{r+3}')
            u = AC[nt][1]
            a(f'v_cvt_pk_bf16_f32 v{r+2}, v{u}, v{u+1}')
            a(f'v_cvt_pk_bf16_f32 v{r+3}, v{u+2}, v{u+3}')
            if nt == 2: a('s_mov_b64 exec, vcc')
            a(f'ds_write_b128 v16, {vr(r,4)} offset:{off + nt*rs}')
        a('s_mov_b64 exec, -1')

    def bulk():
        a('s_cmp_lt_u32 s4, 8')
        a('s_cbranch_scc1 K2_JE')
        a(f'v_lshlrev_b32 v15, 4, v{LANE}')
        a(f'v_and_b32 v16, 15, v{LANE}')
        a('s_sub_u32 s10, s4, 8')
        a('s_lshl_b32 s10, s10, 4')
        a('v_add_u32 v16, s10, v16')
        a('v_mul_u32_u24 v17, 171, v16')
        a('v_lshrrev_b32 v17, 9, v17')
        a('v_add_u32 v17, v17, v16')
        a('v_lshlrev_b32 v17, 1, v17')
        a(f'buffer_load_short_d16_hi v{POSV}, v17, s[64:67], s78 offen')
        a('s_cmp_lt_u32 s4, 12')
        a('s_cbranch_scc1 K2_JE')
        a('s_cmp_eq_u32 s4, 14')
        a('s_cbranch_scc1 K2_JX')
        a('s_cmp_eq_u32 s4, 15')
        a('s_cbranch_scc1 K2_JW')
        a.srd(72, 32, G.N*256 + G.N*6)
        a(f's_mul_i32 s10, s2, {G.NPB*256}')
        a(f's_mul_i32 s11, s2, {G.NPB*6}')
        a(f's_add_u32 s11, s11, {G.N*256}')
        a('s_cmp_eq_u32 s4, 12')
        a('s_cselect_b32 s10, s10, s11')
        a('v_mov_b32 v13, 0')
        a('s_mov_b64 exec, 1')
        a('buffer_load_dword v127, v13, s[72:75], s10 offen')
        a('s_mov_b64 exec, -1')
        a('s_branch K2_JE')
        a.label('K2_JX')
        a.srd(72, 28, 256)
        a(f's_mov_b32 m0, {WX}')
        a('s_mov_b64 exec, 0xffff')
        a('buffer_load_dwordx4 v15, s[72:75], 0 offen lds')
        a('s_mov_b64 exec, -1')
        a('s_branch K2_JE')
        a.label('K2_JW')
        a.srd(72, 36, 1024, G.WS_WDE)
        a(f's_mov_b32 m0, {WDEL}')
        a('s_nop 0')
        a('buffer_load_dwordx4 v15, s[72:75], 0 offen lds')
        a.label('K2_JE')
    a.label('K2_ROUND')
    a('v_mov_b32 v12, 1')
    a(f'v_and_b32 v13, 1, v{PEND}')
    a('v_cmp_ne_u32 s[80:81], 0, v13')
    a('s_mov_b64 exec, s[80:81]')
    phase1(RR, PSA, PDA, SA, 96)
    a(f'v_and_b32 v{PEND}, 2, v{PEND}')
    a('s_mov_b64 exec, -1')
    a('s_lshr_b32 s10, s4, 2')
    a('s_cmp_eq_u32 s10, 1')
    a('s_cbranch_scc0 K2_RH')
    a('s_cmp_eq_u64 s[80:81], 0')
    a('s_cbranch_scc1 K2_RH0')
    a('s_waitcnt vmcnt(2)')
    a('s_branch K2_RH')
    a.label('K2_RH0')
    a('s_waitcnt vmcnt(0)')
    a.label('K2_RH')
    a('s_cmp_eq_u32 s76, 0')
    a('s_cbranch_scc1 K2_RB')
    bulk()
    a.label('K2_RB')
    a('s_waitcnt lgkmcnt(0)')
    a('s_barrier')
    stamp(a, SV, 4)
    a('s_mov_b32 s95, 0')
    a('s_cmp_lg_u64 s[84:85], 0')
    a('s_cbranch_scc1 K2_LATE')
    a('s_cmp_eq_u32 s76, 0')
    a('s_cbranch_scc1 K2_LATE')
    a('s_mov_b32 s95, 1')
    a('s_cmp_ge_u32 s4, 4')
    a('s_cbranch_scc1 K2_C1')
    dma0()
    xaddr(RR, SA, 44, 46)
    a('s_waitcnt vmcnt(4)')
    xbuild(RR+1, PSA, PDA, 44, 46, 96)
    a('s_branch K2_C3')
    a.label('K2_C1')
    xaddr(RR, SA, 44, 46)
    a('s_lshr_b32 s10, s4, 2')
    a('s_cmp_eq_u32 s10, 2')
    a('s_cbranch_scc1 K2_C19')
    a('s_cmp_eq_u32 s10, 3')
    a('s_cbranch_scc1 K2_C12')
    a('s_waitcnt vmcnt(0)')
    a('s_branch K2_C2')
    a.label('K2_C19')
    a('s_waitcnt vmcnt(1)')
    a('s_branch K2_C2')
    a.label('K2_C12')
    a('s_waitcnt vmcnt(2)')
    a.label('K2_C2')
    xbuild(RR+1, PSA, PDA, 44, 46, 96)
    a('s_mov_b32 s95, 0')
    a('s_cmp_ge_u32 s4, 8')
    a('s_cbranch_scc1 K2_C3')
    dma0()
    a('s_mov_b32 s95, 1')
    a('s_branch K2_C3')
    a.label('K2_LATE')
    a('s_waitcnt vmcnt(0)')
    a(f'v_cmp_ne_u32 vcc, -1, v{RR+2}')
    a('s_and_b64 s[80:81], s[84:85], vcc')
    a('s_mov_b64 s[82:83], s[80:81]')
    a('s_mov_b64 exec, s[80:81]')
    a(f'v_and_b32 v14, 0x38, v{RR+2}')
    a(f'ds_add_u32 v14, v12 offset:{CNT+4}')
    phase1(RR+2, PSB, PDB, SB, 98)
    a('s_mov_b64 exec, -1')
    a('s_andn2_b64 s[82:83], s[82:83], s[98:99]')
    a(f'v_and_b32 v{PEND}, 1, v{PEND}')
    a(f'v_cndmask_b32 v13, 0, 2, s[82:83]')
    a(f'v_or_b32 v{PEND}, v{PEND}, v13')
    xaddr(RR, SA, 44, 46)
    xbuild(RR+1, PSA, PDA, 44, 46, 96)
    xaddr(RR+2, SB, 44, 46)
    a('s_waitcnt vmcnt(0)')
    xbuild(RR+3, PSB, PDB, 44, 46, 98)
    a.label('K2_C3')
    stamp(a, SV, 5)
    a(f'v_cmp_ne_u32 vcc, 0, v{PEND}')
    a(f'v_mov_b32 v13, {FLAG}')
    a('s_mov_b64 exec, vcc')
    a('ds_write_b32 v13, v12')
    a('s_mov_b64 exec, -1')
    a('s_cmp_eq_u32 s76, 0')
    a('s_cbranch_scc1 K2_C4')
    a('s_cmp_ge_u32 s4, 4')
    a('s_cbranch_scc1 K2_C4')
    node_gemm((D1, 20), (56, 40), ((88, 92), (96, 100), (104, 108)), AR, ARS, False)
    for i in range(24):
        a(f'v_mov_b32 v{ACC+i}, 0')
    a.label('K2_C4')
    for i in range(8):
        a(f'v_mov_b32 v{MP+i}, 0')
    stamp(a, SV, 6)
    a('s_cmp_lt_u32 s4, 14')
    a('s_cbranch_scc1 K2_C5')
    a('s_waitcnt vmcnt(0)')
    a.label('K2_C5')
    a('s_waitcnt lgkmcnt(0)')
    a('s_barrier')
    stamp(a, SV, 7)
    a('s_lshl_b32 s10, s7, 3')
    a('v_mov_b32 v13, s10')
    a(f'ds_read_b64 v[14:15], v13 offset:{CNT}')
    a(f'v_mov_b32 v13, {FLAG}')
    a('ds_read_b32 v16, v13')
    for ct in range(2):
        a(f'ds_read_b64_tr_b16 {vr(Y1+4*ct,2)}, v{VY0} offset:{64*ct}')
        a(f'ds_read_b64_tr_b16 {vr(Y1+4*ct+2,2)}, v{VY1} offset:{64*ct}')
    a(f'ds_read_b128 {vr(X1R,4)}, v{V_X1B}')
    a('s_waitcnt lgkmcnt(5)')
    a('v_readfirstlane_b32 s8, v14')
    a('v_readfirstlane_b32 s79, v15')
    a('v_readfirstlane_b32 s93, v16')
    a('s_cmp_eq_u32 s76, 0')
    a('s_cbranch_scc1 K2_SKIPY')
    a(f'v_cmp_ne_u32 vcc, 0, v{OVCV}')
    a('s_mov_b64 s[90:91], vcc')
    a.label('K2_SKIPY')
    a('s_cmp_eq_u32 s95, 0')
    a('s_cbranch_scc1 K2_D0')
    a('s_cmp_eq_u32 s79, 0')
    a('s_cbranch_scc1 K2_D1')
    a('s_sub_u32 s79, s8, s79')
    a('s_cmp_ge_u32 s79, 32')
    a('s_cbranch_scc1 K2_D1')
    a('s_waitcnt vmcnt(0)')
    a.label('K2_D0')
    dma0()
    a.label('K2_D1')
    a(f's_min_u32 s8, s8, {CAP}')
    def dma_rows(lab):
        for i in range(4):
            a(f's_cmp_le_u32 s12, {i}')
            a(f's_cbranch_scc1 {lab}')
            a(f's_add_u32 m0, s9, {i*1024}')
            a('s_nop 0')
            a(f'buffer_load_dwordx4 v{DA+i}, s[48:51], 0 offen lds')
        a.label(lab)

    def quad(d, mp):
        e = EE
        for i in range(4): a(f'v_exp_f32 v{e+i}, v{d+i}')
        a(f'v_pk_add_f32 {vr(e,2)}, {vr(e,2)}, 1.0 op_sel_hi:[1,0]')
        a(f'v_pk_add_f32 {vr(e+2,2)}, {vr(e+2,2)}, 1.0 op_sel_hi:[1,0]')
        for i in range(4): a(f'v_rcp_f32 v{e+i}, v{e+i}')
        a(f'v_pk_mul_f32 {vr(d,2)}, {vr(d,2)}, {vr(e,2)}')
        a(f'v_pk_mul_f32 {vr(d+2,2)}, {vr(d+2,2)}, {vr(e+2,2)}')
        a(f'v_cvt_pk_bf16_f32 v{mp}, v{d}, v{d+1}')
        a(f'v_cvt_pk_bf16_f32 v{mp+1}, v{d+2}, v{d+3}')
    def creads(d, ct):
        for q in range(4):
            for i in range(4):
                a(f'ds_read_u16_d16_hi v{d+4*q+i}, v{V_CB} offset:{(8*q+i)*128 + 64*ct}')
    def front(d, ct):
        a(f'v_mfma_f32_32x32x16_bf16 {vr(d,16)}, {vr(X1R,4)}, {vr(Y1+4*ct,4)}, {vr(d,16)}')
    def back(ct, m, pad=True):
        acc = vr(ACC+16*ct, 16)
        if pad: a('s_nop 1')
        a(f'v_mfma_f32_32x32x16_bf16 {acc}, {vr(MP+4*m,4)}, {vr(X2R+4*m,4)}, {acc}')
    F0 = (D0, D0+4, D0+8, D0+12)
    F1 = (104, 108, 112, 116)
    FU = (20, 24, 28, DA)
    def wload(F, base, sh, lab=True):
        if lab:
            lab = a.newlabel('K2_W2')
            a('s_cmp_ge_u32 s4, 8')
            a(f's_cbranch_scc1 {lab}')
        a(f'v_lshlrev_b32 v15, 4, v{LANE}')
        a(f's_lshl_b32 s10, {"s4" if sh == 12 else "s5"}, {sh}')
        a(f's_add_u32 s10, s10, {base}')
        for s in range(4):
            a(f'buffer_load_dwordx4 {vr(F[s],4)}, v15, s[56:59], s10 offen offset:{s*1024}')
        if lab: a.label(lab)
    def w2load(j):
        if j == 1: wload(FU, 32768, 12)
        else: wload(F0, 65536, 13)
    def setprio(levels):
        if not PRIO: return
        end = a.newlabel('K2_PE')
        for (rem_le, pr) in levels[:-1]:
            nxt = a.newlabel('K2_PN')
            a(f's_cmp_gt_u32 s8, {rem_le}')
            a(f's_cbranch_scc1 {nxt}')
            a(f's_setprio {pr}')
            a(f's_branch {end}')
            a.label(nxt)
        a(f's_setprio {levels[-1][1]}')
        a.label(end)

    a('s_cmp_eq_u32 s8, 0')
    a('s_cbranch_scc1 K2_EMPTY')
    a('s_waitcnt vmcnt(0)')
    stamp(a, SV, 8)
    creads(D0, 0)
    a('s_waitcnt lgkmcnt(0)')
    front(D0, 0)
    a('s_nop 7')
    a('s_cmp_gt_u32 s8, 32')
    a('s_nop 1')
    a('s_cbranch_scc0 K2_LAST')
    a.label('K2_FULL')
    if PRIO: a('s_setprio 3')
    creads(D1, 1)
    a(f'ds_read_b128 {vr(X2R,4)}, v{V_X2B}')
    a(f'ds_read_b128 {vr(X2R+4,4)}, v{V_X2B} offset:640')
    for i in range(4):
        a(f'ds_read_b32 v{DA+i}, v{V_RAWB} offset:{128 + 32*i}')
    a('s_sub_u32 s11, s8, 32')
    a('s_add_u32 s12, s11, 7')
    a('s_lshr_b32 s12, s12, 3')
    a('s_min_u32 s12, s12, 4')
    quad(D0, MP); quad(D0+4, MP+2)
    a('s_waitcnt lgkmcnt(0)')
    back(0, 0)
    for i in range(4):
        a(f'v_and_or_b32 v{DA+i}, v{DA+i}, s77, v{V_GOFF}')
    quad(D0+8, MP+4)
    front(D1, 1)
    dma_rows(a.newlabel('K2_ND'))
    quad(D0+12, MP+6)
    back(0, 1)
    setprio([(64, 2), (None, 3)])
    quad(D1, MP); quad(D1+4, MP+2)
    back(1, 0)
    a('s_waitcnt vmcnt(0)')
    creads(D0, 0)
    a(f'ds_read_b128 {vr(X1R,4)}, v{V_X1B} offset:512')
    a(f'v_add_u32 v{V_RAWB}, 128, v{V_RAWB}')
    a(f'v_add_u32 v{V_X1B}, 512, v{V_X1B}')
    a(f'v_add_u32 v{V_X2B}, {X2T}, v{V_X2B}')
    quad(D1+8, MP+4)
    a('s_waitcnt lgkmcnt(0)')
    front(D0, 0)
    quad(D1+12, MP+6)
    back(1, 1)
    a('s_mov_b32 s8, s11')
    a('s_cmp_gt_u32 s8, 32')
    a('s_cbranch_scc1 K2_FULL')
    a.label('K2_LAST')
    if PRIO: a('s_setprio 1')
    a('s_add_u32 s10, s8, 7')
    a('s_lshr_b32 s14, s10, 3')
    creads(D1, 1)
    a(f'ds_read_b128 {vr(X2R,4)}, v{V_X2B}')
    a(f'ds_read_b128 {vr(X2R+4,4)}, v{V_X2B} offset:640')
    def skip_lt(n):
        lab = a.newlabel('K2_S')
        a(f's_cmp_lt_u32 s14, {n}')
        a(f's_cbranch_scc1 {lab}')
        return lab
    quad(D0, MP)
    l = skip_lt(2); quad(D0+4, MP+2); a.label(l)
    a('s_waitcnt lgkmcnt(0)')
    back(0, 0)
    l = skip_lt(3); quad(D0+8, MP+4); a.label(l)
    front(D1, 1)
    w2load(1)
    l3 = skip_lt(3)
    l = skip_lt(4); quad(D0+12, MP+6); a.label(l)
    back(0, 1)
    a.label(l3)
    w2load(0)
    if PRIO: a('s_setprio 0')
    quad(D1, MP)
    l = skip_lt(2); quad(D1+4, MP+2); a.label(l)
    back(1, 0)
    l3 = skip_lt(3)
    quad(D1+8, MP+4)
    l = skip_lt(4); quad(D1+12, MP+6); a.label(l)
    back(1, 1)
    a.label(l3)
    a('s_branch K2_LOOP_END')
    a.label('K2_EMPTY')
    a('s_waitcnt vmcnt(0) lgkmcnt(0)')
    w2load(1)
    w2load(0)
    a.label('K2_LOOP_END')
    stamp(a, SV, 9)
    a('s_or_b32 s10, s90, s91')
    a('s_or_b32 s10, s10, s93')
    a('s_cmp_eq_u32 s10, 0')
    a('s_cbranch_scc1 K2_EPI')
    a('s_waitcnt vmcnt(0) lgkmcnt(0)')
    a('s_barrier')
    zero_lds()
    a(f'v_and_b32 v13, 31, v{LANE}')
    a(f'v_lshrrev_b32 v14, 5, v{LANE}')
    tile0_addresses()
    a('s_mov_b32 s76, 0')
    a('s_cmp_lg_u32 s93, 0')
    a('s_cbranch_scc1 K2_NOREFILL')
    a('s_ff1_i32_b64 s94, s[90:91]')
    a.srd(44, 36, G.OVF_BYTES, G.WS_OVF)
    a.srd(72, 36, 256, G.WS_OVC)
    a('s_lshl_b32 s10, s94, 2')
    a('v_mov_b32 v16, s10')
    a('buffer_load_dword v17, v16, s[72:75], 0 offen')
    a(f's_mul_i32 s11, s94, {G.CH*16}')
    a('v_add_u32 v16, s92, v0')
    a('v_lshlrev_b32 v18, 4, v16')
    a('buffer_load_dwordx4 v[60:63], v18, s[44:47], s11 offen')
    a('s_waitcnt vmcnt(0)')
    a('v_cmp_lt_u32 vcc, v16, v17')
    a('v_cmp_eq_u32 s[80:81], s2, v62')
    a('s_and_b64 vcc, vcc, s[80:81]')
    a('s_nop 1')
    a(f'v_cndmask_b32 v{RR}, -1, v60, vcc')
    a(f'v_mov_b32 v{RR+1}, v61')
    a(f'v_cndmask_b32 v{PEND}, 0, 1, vcc')
    a(f'v_mov_b32 v{RR+2}, -1')
    a('v_readfirstlane_b32 s10, v17')
    a('s_add_u32 s92, s92, 1024')
    a('s_cmp_lt_u32 s92, s10')
    a('s_cbranch_scc1 K2_NOREFILL')
    a('s_bitset0_b64 s[90:91], s94')
    a('s_mov_b32 s92, 0')
    a.label('K2_NOREFILL')
    a(f'v_and_b32 v13, 2, v{PEND}')
    a('v_cmp_ne_u32 s[84:85], 0, v13')
    a('s_waitcnt lgkmcnt(0)')
    a('s_barrier')
    a('s_branch K2_ROUND')

    a.label('K2_EPI')
    P = ACC
    WXPRE = 'nowxpre' not in OPT
    if WXPRE:
        a('s_cmp_lt_u32 s4, 8')
        a('s_cbranch_scc1 K2_EW')
        a(f'v_lshrrev_b32 v12, 4, v{LANE}')
        a('v_lshlrev_b32 v12, 4, v12')
        for s in range(4):
            a(f'ds_read_b128 {vr(32+4*s,4)}, v12 offset:{WX + 64*s}')
        a.label('K2_EW')
    a(f'v_and_b32 v13, 31, v{LANE}')
    a(f'v_lshrrev_b32 v14, 5, v{LANE}')
    a('v_lshrrev_b32 v16, 2, v13')
    a('v_and_b32 v17, 3, v13')
    a('v_lshl_add_u32 v16, v17, 1, v16')
    a('s_mul_i32 s11, s7, 5')
    a('v_add_u32 v16, s11, v16')
    a('v_lshlrev_b32 v14, 1, v14')
    a('v_xor_b32 v16, v16, v14')
    a('v_and_b32 v16, 7, v16')
    a('v_lshlrev_b32 v16, 4, v16')
    a('v_lshl_add_u32 v16, v13, 7, v16')
    a('v_add_u32 v16, s9, v16')
    a('v_cmp_gt_u32 vcc, 20, v13')
    a('v_xor_b32 v17, 16, v16')
    a('v_xor_b32 v18, 64, v16')
    a('v_xor_b32 v19, 80, v16')
    for ct in range(2):
        for p in range(8):
            a(f'v_cvt_pk_bf16_f32 v{P+8*ct+p}, v{ACC+16*ct+2*p}, v{ACC+16*ct+2*p+1}')
    a('s_mov_b64 exec, vcc')
    for k in range(4):
        ct, h2 = k >> 1, k & 1
        a(f'ds_write_b128 v{16+k}, {vr(P+8*ct+4*h2,4)}')
    a('s_mov_b64 exec, -1')
    a('s_cmp_lt_u32 s4, 8')
    a('s_cbranch_scc1 K2_EG')
    a('s_waitcnt lgkmcnt(0)')
    stamp(a, SV, 10)
    a('s_barrier')
    stamp(a, SV, 11)
    ZP = os.environ.get('ZP', '2')
    if PRIO: a(f's_setprio {ZP}')
    def row_addr(dst, node, kind2, tmp1, tmp2):
        a(f'v_mul_u32_u24 v{tmp1}, 13, v{node}')
        a(f'v_lshrrev_b32 v{tmp1}, 6, v{tmp1}')
        a(f'v_mul_u32_u24 v{tmp2}, 5, v{tmp1}')
        a(f'v_sub_u32 v{tmp2}, v{node}, v{tmp2}')
        a(f'v_lshlrev_b32 v{dst}, 9, v{tmp2}')
        a(f'v_lshrrev_b32 v{tmp2}, 1, v{tmp1}')
        a(f'v_lshl_add_u32 v{dst}, v{tmp2}, 14, v{dst}')
        a(f'v_and_b32 v{tmp1}, 1, v{tmp1}')
        a(f'v_lshl_add_u32 v{dst}, v{tmp1}, 12, v{dst}')
        if kind2 is not None:
            a(f'v_lshl_add_u32 v{dst}, v{kind2}, 7, v{dst}')
            a(f'v_lshl_add_u32 v{tmp1}, v{kind2}, 1, v{node}')
            a(f'v_xor_b32 v{tmp1}, v{tmp1}, v19')
        else:
            a(f'v_xor_b32 v{tmp1}, v{node}, v19')
        a(f'v_and_b32 v{tmp1}, 7, v{tmp1}')
        a(f'v_lshl_add_u32 v{dst}, v{tmp1}, 4, v{dst}')
        a(f'v_add_u32 v{dst}, {RING}, v{dst}')
    a(f'v_and_b32 v18, 15, v{LANE}')
    a(f'v_lshrrev_b32 v19, 4, v{LANE}')
    if not WXPRE:
        a('v_lshlrev_b32 v12, 4, v19')
        for s in range(4):
            a(f'ds_read_b128 {vr(32+4*s,4)}, v12 offset:{WX + 64*s}')
    a('s_sub_u32 s10, s4, 8')
    a('s_lshl_b32 s10, s10, 4')
    a('v_add_u32 v18, s10, v18')
    a('v_min_u32 v17, 119, v18')
    a('v_mul_u32_u24 v13, 171, v17')
    a('v_lshrrev_b32 v13, 9, v13')
    a('v_mul_u32_u24 v14, 3, v13')
    a('v_sub_u32 v14, v17, v14')
    a('v_add_u32 v14, 1, v14')
    row_addr(16, 13, 14, 15, 17)
    a('v_xor_b32 v17, 64, v16')
    a(f'ds_read_b128 {vr(56,4)}, v16')
    a(f'ds_read_b128 {vr(60,4)}, v17')
    a(f'ds_read_b128 {vr(64,4)}, v16 offset:8192')
    a(f'ds_read_b128 {vr(68,4)}, v17 offset:8192')
    a(f's_mov_b32 s86, {G.NLN2}')
    a(f's_mul_i32 s5, s2, {G.NPB*6}')
    a(f's_add_u32 s5, s5, {G.N*256}')
    a('v_lshlrev_b32 v15, 1, v18')
    a('v_cmp_gt_u32 vcc, 120, v18')
    a(f'v_cmp_gt_u32 s[80:81], 16, v{LANE}')
    a('s_and_b64 vcc, vcc, s[80:81]')
    for s in range(4):
        a(f's_waitcnt lgkmcnt({3-s})')
        a(f'v_mfma_f32_16x16x32_bf16 v[72:75], {vr(32+4*s,4)}, {vr(56+4*s,4)}, {"0" if s == 0 else "v[72:75]"}')
    a('s_waitcnt vmcnt(0)')
    a('s_nop 7')
    a(f'v_fma_f32 v16, s86, v72, v{POSV}')
    a('v_cvt_pk_bf16_f32 v16, v16, v16')
    a('s_mov_b64 exec, vcc')
    a('buffer_store_short v16, v15, s[68:71], s5 offen' + ONT)
    a('s_branch K2_FIN')
    a.label('K2_EG')
    BA = (72, 76, 80, 84); BB = FU
    wload(F1, 65536 + 4096, 13, lab=False)
    a(f'v_and_b32 v18, 15, v{LANE}')
    a(f'v_lshrrev_b32 v19, 4, v{LANE}')
    a('v_xor_b32 v17, v19, v18')
    a('v_lshlrev_b32 v17, 4, v17')
    a('v_lshl_add_u32 v16, v18, 8, v17')
    a(f'v_add_u32 v16, {AR}, v16')
    a('v_xor_b32 v13, 64, v16')
    a('v_xor_b32 v14, 128, v16')
    a('v_xor_b32 v15, 192, v16')
    XA0 = (16, 13, 14, 15)
    UBS = (72, 32)
    UAC = (88, 92, 96)
    a(f's_mov_b32 s88, {G.NLOG2E}'); a(f's_mov_b32 s89, {G.NLOG2E}')
    def ureads(nt):
        for s in range(4):
            a(f'ds_read_b128 {vr(UBS[nt&1]+4*s,4)}, v{XA0[s]} offset:{HS - AR + nt*4096}')
    def umm(nt, w):
        for s in range(4):
            a(f's_waitcnt lgkmcnt({w + 3 - s})')
            u = vr(UAC[nt], 4)
            a(f'v_mfma_f32_16x16x32_bf16 {u}, {vr(FU[s],4)}, {vr(UBS[nt&1]+4*s,4)}, {"0" if s == 0 else u}')
    ureads(0); ureads(1)
    a('s_waitcnt vmcnt(8)')
    umm(0, 4)
    ureads(2)
    umm(1, 4)
    umm(2, 0)
    a('s_lshr_b32 s10, s4, 1')
    a('s_lshl_b32 s10, s10, 6')
    a('v_xor_b32 v16, s10, v16')
    a('s_and_b32 s10, s4, 1')
    a('s_lshl_b32 s10, s10, 3')
    a('v_add_u32 v16, s10, v16')
    a('v_cmp_gt_u32 vcc, 8, v18')
    for nt in range(3):
        u = UAC[nt]
        if nt == 2: a('s_nop 2')
        a(f'v_pk_mul_f32 {vr(u,2)}, {vr(u,2)}, s[88:89]')
        a(f'v_pk_mul_f32 {vr(u+2,2)}, {vr(u+2,2)}, s[88:89]')
        a(f'v_cvt_pk_bf16_f32 v{u}, v{u}, v{u+1}')
        a(f'v_cvt_pk_bf16_f32 v{u+1}, v{u+2}, v{u+3}')
        if nt == 2: a('s_mov_b64 exec, vcc')
        a(f'ds_write_b64 v16, {vr(u,2)} offset:{UB - AR + nt*4096}')
    a('s_mov_b64 exec, -1')
    UA = (32, 36); UBB = (40, 44)
    RA = 88; RB = 96
    SEL = 2; UQA = 8; UQB = 120; VUA = 100; VUB = 101
    a(f'v_and_b32 v18, 15, v{LANE}')
    a(f'v_lshrrev_b32 v19, 4, v{LANE}')
    a('s_lshr_b32 s12, s4, 2')
    a('s_lshl_b32 s10, s12, 4')
    a('v_add_u32 v13, s10, v18')
    a('s_lshl_b32 s10, s5, 2')
    a('v_add_u32 v14, s10, v19')
    a('v_xor_b32 v14, v14, v18')
    a('v_lshlrev_b32 v14, 4, v14')
    a('v_lshl_add_u32 v14, v13, 8, v14')
    a(f'v_add_u32 v14, {AR}, v14')
    a(f'ds_read_b128 {vr(72,4)}, v14 offset:{HS - AR}')
    a(f'v_mov_b32 v{VUA}, v14')
    row_addr(12, 13, None, 15, 16)
    a('v_lshlrev_b32 v13, 8, v13')
    a('v_lshl_add_u32 v13, v19, 4, v13')
    a('s_lshl_b32 s10, s5, 6')
    a(f's_mul_i32 s11, s2, {G.NPB*256}')
    a('s_add_u32 s11, s11, s10')
    a('s_waitcnt lgkmcnt(0)')
    def unpack(dst, src, n):
        for i in range(n):
            a(f'v_lshlrev_b32 v{dst+2*i}, 16, v{src+i}')
            a(f'v_and_b32 v{dst+2*i+1}, 0xffff0000, v{src+i}')
    unpack(RA, 72, 4)
    a('v_lshrrev_b32 v15, 2, v18')
    a('v_cmp_eq_u32 vcc, v15, v19')
    a('v_and_b32 v15, 1, v18')
    a('v_lshlrev_b32 v15, 4, v15')
    a('v_mov_b32 v16, 0x3f80')
    a('v_lshlrev_b32 v15, v15, v16')
    a('v_cndmask_b32 v15, 0, v15, vcc')
    a('v_and_b32 v16, 2, v18')
    a('v_cmp_eq_u32 vcc, 0, v16')
    a(f'v_mov_b32 v{SEL}, 0'); a(f'v_mov_b32 v{SEL+1}, 0'); a(f'v_mov_b32 v{SEL+4}, 0'); a(f'v_mov_b32 v{SEL+5}, 0')
    a(f'v_cndmask_b32 v{SEL+2}, 0, v15, vcc')
    a(f'v_cndmask_b32 v{SEL+3}, v15, 0, vcc')
    a('s_cmp_eq_u32 s12, 0')
    a('s_cbranch_scc0 K2_EG1')
    a('v_and_b32 v16, 7, v18')
    a('v_add_u32 v16, 32, v16')
    a('s_lshl_b32 s10, s5, 2')
    a('v_add_u32 v14, s10, v19')
    a('v_xor_b32 v14, v14, v16')
    a('v_and_b32 v14, 15, v14')
    a('v_lshlrev_b32 v14, 4, v14')
    a('v_lshl_add_u32 v14, v16, 8, v14')
    a(f'v_add_u32 v14, {AR}, v14')
    a(f'v_mov_b32 v{VUB}, v14')
    a('v_lshrrev_b32 v15, 3, v18')
    a('v_lshl_add_u32 v14, v15, 3, v14')
    a(f'ds_read_b64 {vr(72,2)}, v14 offset:{HS - AR}')
    a('v_lshlrev_b32 v17, 8, v16')
    a('v_lshl_add_u32 v17, v19, 4, v17')
    a('v_lshl_add_u32 v17, v15, 3, v17')
    row_addr(18, 16, None, 15, 14)
    a('s_waitcnt lgkmcnt(0)')
    unpack(RB, 72, 2)
    a.label('K2_EG1')
    a(f's_mov_b32 s86, {G.NLN2}'); a(f's_mov_b32 s87, {G.NLN2}')
    a('v_xor_b32 v14, 64, v12')
    a('v_xor_b32 v15, 64, v18')
    a('s_waitcnt vmcnt(0) lgkmcnt(0)')
    stamp(a, SV, 10)
    a('s_barrier')
    stamp(a, SV, 11)
    LP = os.environ.get('LP', '0')
    if PRIO and LP != '0': a(f's_setprio {LP}')
    def breads(B, v, vx, uq, vu):
        a(f'ds_read_b128 {vr(uq,4)}, v{vu} offset:{UB - AR}')
        a(f'ds_read_b128 {vr(B[0],4)}, v{v}')
        a(f'ds_read_b128 {vr(B[1],4)}, v{vx}')
        a(f'ds_read_b128 {vr(B[2],4)}, v{v} offset:8192')
        a(f'ds_read_b128 {vr(B[3],4)}, v{vx} offset:8192')
    def mms(B, U, w, uq):
        a(f's_waitcnt lgkmcnt({w + 4})')
        a(f'v_mfma_f32_16x16x32_bf16 {vr(U[0],4)}, {vr(SEL+2,4)}, {vr(uq,4)}, 0')
        a(f'v_mfma_f32_16x16x32_bf16 {vr(U[1],4)}, {vr(SEL,4)}, {vr(uq,4)}, 0')
        for s in range(4):
            a(f's_waitcnt lgkmcnt({w + 3 - s})')
            a(f'v_mfma_f32_16x16x32_bf16 {vr(U[0],4)}, {vr(F0[s],4)}, {vr(B[s],4)}, {vr(U[0],4)}')
            a(f'v_mfma_f32_16x16x32_bf16 {vr(U[1],4)}, {vr(F1[s],4)}, {vr(B[s],4)}, {vr(U[1],4)}')
    def silu(u, r, o, e=48):
        for i in range(4): a(f'v_exp_f32 v{e+i}, v{u+i}')
        a(f'v_pk_add_f32 {vr(e,2)}, {vr(e,2)}, 1.0 op_sel_hi:[1,0]')
        a(f'v_pk_add_f32 {vr(e+2,2)}, {vr(e+2,2)}, 1.0 op_sel_hi:[1,0]')
        for i in range(4): a(f'v_rcp_f32 v{e+i}, v{e+i}')
        a(f'v_pk_mul_f32 {vr(u,2)}, {vr(u,2)}, {vr(e,2)}')
        a(f'v_pk_mul_f32 {vr(u+2,2)}, {vr(u+2,2)}, {vr(e+2,2)}')
        a(f'v_pk_fma_f32 {vr(r,2)}, {vr(u,2)}, s[86:87], {vr(r,2)}')
        a(f'v_pk_fma_f32 {vr(r+2,2)}, {vr(u+2,2)}, s[86:87], {vr(r+2,2)}')
        a(f'v_cvt_pk_bf16_f32 v{o}, v{r}, v{r+1}')
        a(f'v_cvt_pk_bf16_f32 v{o+1}, v{r+2}, v{r+3}')
    breads(BA, 12, 14, UQA, VUA)
    a('s_cmp_eq_u32 s12, 0')
    a('s_cbranch_scc1 K2_EG0')
    mms(BA, UA, 0, UQA)
    a('s_nop 7')
    silu(UA[0], RA, 72)
    silu(UA[1], RA+4, 74)
    a('buffer_store_dwordx4 v[72:75], v13, s[68:71], s11 offen' + ONT)
    a('s_branch K2_FIN')
    a.label('K2_EG0')
    breads(BB, 18, 15, UQB, VUB)
    mms(BA, UA, 5, UQA)
    mms(BB, UBB, 0, UQB)
    silu(UA[0], RA, 72)
    silu(UA[1], RA+4, 74)
    a('buffer_store_dwordx4 v[72:75], v13, s[68:71], s11 offen' + ONT)
    for i in range(4):
        a(f'v_mov_b32_dpp v{UBB[0]+i}, v{UBB[1]+i} row_shr:8 row_mask:0xf bank_mask:0xc')
    a('s_nop 1')
    silu(UBB[0], RB, 76)
    a('buffer_store_dwordx2 v[76:77], v17, s[68:71], s11 offen' + ONT)
    a.label('K2_FIN')
    a('s_mov_b64 exec, -1')
    stamp(a, SV, 12)
    if STAMP: a('s_waitcnt vmcnt(0)')
    stamp(a, SV, 13); stamp(a, SV, 14, True)
    if STAMP:
        a('v_lshlrev_b32 v127, 2, v0')
        a.srd(40, 36, 2 << 20, 0x1100000)
        a('s_lshl_b32 s38, s2, 12')
        a(f'buffer_store_dword v{SV}, v127, s[40:43], s38 offen')
    a.label('K2_END')
    a('s_endpgm')
    a.raw(G.kd(name, NV))
```

```python
import sys, os
from asmlib import Asm, vr, sr, stamp, stamp_flush, STAMP

N = 10000; E = 160000; D = 128
NCH = 64; CH = E // NCH
NPB = 40; NB = N // NPB
WS_B = 0
WS_W = 0x280000
WS_WDE = WS_W + 0x18000
WS_OVC = 0x2A0000
WS_P8 = 0x2B0000
WS_C1 = 0x300000
WS_C2 = 0x500000
C_BYTES = NB * NCH * 128
WS_OVF = 0xA00000
OVF_BYTES = E * 16
GN = 64
N_GEMM = (N + GN - 1) // GN
N_P8 = 5
N_TR = 6
K1_GRID = NCH + N_GEMM + N_P8 + N_TR + 1
K1_LDS = 66560
NLOG2E = 0xbfb8aa3b
NLN2 = 0xbf317218

HEADER = open('standalone__cheap_equivariant_egnn__graph.s.ref').read().split('; Override')[0]

def kd(name, vgpr, sgpr=102):
    acc = (vgpr + 3) // 4 * 4
    return f'''.section .rodata,"a"
.p2align 6
.amdhsa_kernel {name}
  .amdhsa_next_free_vgpr {vgpr}
  .amdhsa_next_free_sgpr {sgpr}
  .amdhsa_accum_offset {acc}
  .amdhsa_group_segment_fixed_size 0
  .amdhsa_kernarg_size 88
  .amdhsa_user_sgpr_count 2
  .amdhsa_user_sgpr_kernarg_segment_ptr 1
  .amdhsa_system_sgpr_workgroup_id_x 1
.end_amdhsa_kernel
.text
'''

def kernel_head(a, name):
    a.raw(f'.globl {name}')
    a.raw('.p2align 8')
    a.raw(f'.type {name},@function')
    a.label(name)

def load_kernargs(a):
    a('s_load_dwordx16 s[16:31], s[0:1], 0')
    a('s_load_dwordx4 s[32:35], s[0:1], 64')
    a('s_load_dwordx2 s[36:37], s[0:1], 80')

SC = os.environ.get('SC', ' sc1')
OPT = set(os.environ.get('OPT', 'codepf,k1touch').split(','))


def gen_k1(a):
    name = 'egnn_prep_kernel'
    SV = 126
    kernel_head(a, name)
    a(f's_cmp_ge_u32 s2, {K1_GRID}')
    a('s_cbranch_scc1 K1_END')
    stamp(a, SV, 7, True); stamp(a, SV, 8)
    load_kernargs(a)
    a(f's_cmp_lt_u32 s2, {NCH}')
    a('s_cbranch_scc1 K1_BIN')
    a(f's_cmp_lt_u32 s2, {NCH + N_GEMM}')
    a('s_cbranch_scc1 K1_GEMM')
    a(f's_cmp_lt_u32 s2, {NCH + N_GEMM + N_TR}')
    a('s_cbranch_scc1 K1_TR')
    a(f's_cmp_lt_u32 s2, {NCH + N_GEMM + N_TR + N_P8}')
    a('s_cbranch_scc1 K1_P8')
    a('s_branch K1_WDE')
    def endstamps():
        stamp(a, SV, 4)
        if STAMP: a('s_waitcnt vmcnt(0)')
        stamp(a, SV, 5); stamp(a, SV, 6, True)
        if STAMP:
            a('v_lshlrev_b32 v125, 2, v0')
            a.srd(40, 36, 1 << 20, 0x1000000)
            a('s_mov_b64 exec, -1')
            a('s_lshl_b32 s38, s2, 12')
            a(f'buffer_store_dword v{SV}, v125, s[40:43], s38 offen')

    CNT = 64000; OVFC = 65024
    NE = 3
    a.label('K1_BIN')
    a('v_mov_b32 v4, -1'); a('v_mov_b32 v5, -1'); a('v_mov_b32 v6, -1'); a('v_mov_b32 v7, -1')
    a('v_lshlrev_b32 v3, 4, v0')
    a('v_lshlrev_b32 v1, 2, v0')
    a('v_lshlrev_b32 v2, 1, v0')
    a('v_mov_b32 v8, 0')
    a(f'v_cmp_gt_u32 vcc, 257, v0')
    a('s_and_saveexec_b64 s[70:71], vcc')
    a(f'ds_write_b32 v1, v8 offset:{CNT}')
    a('s_mov_b64 exec, s[70:71]')
    for k in range(3):
        a(f'ds_write_b128 v3, v[4:7] offset:{k*16384}')
    LASTV = (NB*256 - 3*16384)//16
    a(f'v_cmp_gt_u32 vcc, {LASTV}, v0')
    a('s_and_saveexec_b64 s[70:71], vcc')
    a(f'ds_write_b128 v3, v[4:7] offset:{3*16384}')
    a('s_mov_b64 exec, s[70:71]')
    a(f's_mul_i32 s60, s2, {CH*4}')
    a('s_add_u32 s61, s60, 4096')
    a('s_add_u32 s62, s60, 8192')
    a(f's_mul_i32 s63, s2, {CH*2}')
    a('s_add_u32 s64, s63, 4096')
    a('s_waitcnt lgkmcnt(0)')
    stamp(a, SV, 0, True); stamp(a, SV, 1)
    a.srd(40, 24, E*4)
    a.srd(44, 22, E*4)
    a.srd(48, 20, E*2)
    TAIL = CH - 2048
    a(f'v_cmp_gt_u32 vcc, {TAIL}, v0')
    a('s_mov_b64 s[68:69], vcc')
    def tail_on(j):
        if j == NE-1: a('s_mov_b64 exec, s[68:69]')
    def tail_off(j):
        if j == NE-1: a('s_mov_b64 exec, -1')
    for j in range(NE):
        tail_on(j)
        a(f'buffer_load_dword v{10+j}, v1, s[40:43], s{60+j} offen')
        tail_off(j)
    for j in range(NE):
        tail_on(j)
        a(f'buffer_load_dword v{15+j}, v1, s[44:47], s{60+j} offen')
        tail_off(j)
    for j in range(NE):
        tail_on(j)
        a(f'buffer_load_short_d16_hi v{41+2*j}, v2, s[48:51], s{63 + j//2} offen offset:{(j%2)*2048}')
        tail_off(j)
    a.srd(52, 36, C_BYTES, WS_C1)
    a.srd(88, 36, C_BYTES, WS_C2)
    a.srd(56, 36, OVF_BYTES, WS_OVF)
    a.srd(72, 36, NCH*4, WS_OVC)
    T1 = 1 if 'k1touch' in OPT else 0
    if T1:
        a('v_and_b32 v99, 1, v0')
        a('v_lshlrev_b32 v99, 20, v99')
        a('s_mov_b64 exec, 3')
        a('buffer_load_dword v100, v99, s[52:55], 0 offen')
        a('s_mov_b64 exec, -1')
    a('s_barrier')
    a('s_mov_b32 s65, 52429')
    a('v_mov_b32 v6, 1')
    for j in range(NE):
        a(f's_waitcnt vmcnt({3*NE-1-j+T1})')
        a(f'v_mul_u32_u24 v{25+j}, s65, v{10+j}')
        a(f'v_lshrrev_b32 v{25+j}, 21, v{25+j}')
        a(f'v_mul_u32_u24 v7, 40, v{25+j}')
        a(f'v_sub_u32 v{10+j}, v{10+j}, v7')
        a(f'v_lshlrev_b32 v{30+j}, 2, v{25+j}')
        tail_on(j)
        a(f'ds_add_rtn_u32 v{35+j}, v{30+j}, v6 offset:{CNT}')
        tail_off(j)
    for j in range(NE):
        a(f'v_mul_u32_u24 v7, 13, v{10+j}')
        a('v_lshrrev_b32 v7, 6, v7')
        a('v_mul_u32_u24 v8, 5, v7')
        a(f'v_sub_u32 v8, v{10+j}, v8')
        a('v_lshl_or_b32 v8, v7, 3, v8')
        a(f's_waitcnt vmcnt({2*NE-1-j+T1})')
        a(f'v_lshl_or_b32 v{40+2*j}, v{15+j}, 8, v8')
    a(f's_waitcnt vmcnt({T1})')
    for j in range(NE):
        a(f's_waitcnt lgkmcnt({NE-1-j})')
        a(f'v_cmp_gt_u32 vcc, 32, v{35+j}')
        if j == NE-1:
            a('s_and_b64 vcc, vcc, s[68:69]')
        a(f'v_lshl_add_u32 v7, v{25+j}, 1, v{35+j}')
        a('v_and_b32 v7, 31, v7')
        a(f'v_lshlrev_b32 v8, 8, v{25+j}')
        a('v_lshl_add_u32 v7, v7, 3, v8')
        a('s_mov_b64 exec, vcc')
        a(f'ds_write_b64 v7, {vr(40+2*j,2)}')
        if j == NE-1:
            a('s_andn2_b64 exec, s[68:69], vcc')
        else:
            a('s_not_b64 exec, vcc')
        lab = a.newlabel('K1_NOV')
        a(f's_cbranch_execz {lab}')
        a(f'v_mov_b32 v9, {OVFC}')
        a('ds_add_rtn_u32 v8, v9, v6')
        a(f's_mul_i32 s76, s2, {CH*16}')
        a(f'v_mov_b32 v50, v{40+2*j}')
        a(f'v_mov_b32 v51, v{41+2*j}')
        a(f'v_mov_b32 v52, v{25+j}')
        a('v_mov_b32 v53, 0')
        a('s_waitcnt lgkmcnt(0)')
        a('v_lshlrev_b32 v8, 4, v8')
        a('buffer_store_dwordx4 v[50:53], v8, s[56:59], s76 offen')
        a('s_nop 1')
        a.label(lab)
        a('s_mov_b64 exec, -1')
    a('v_lshrrev_b32 v9, 3, v0')
    a('v_and_b32 v7, 7, v0')
    a('v_add_u32 v8, v7, v9')
    a('v_and_b32 v8, 15, v8')
    a('v_lshlrev_b32 v8, 4, v8')
    a('v_lshl_add_u32 v60, v9, 8, v8')
    a('v_xor_b32 v61, 128, v60')
    a('v_lshlrev_b32 v62, 2, v9')
    a('v_lshlrev_b32 v63, 13, v9')
    a('v_lshl_add_u32 v63, v7, 4, v63')
    a('s_lshl_b32 s77, s2, 7')
    a(f's_add_u32 s78, s77, {128*8192}')
    a(f'v_cmp_gt_u32 vcc, {(NB-128)*8}, v0')
    a('s_mov_b64 s[66:67], vcc')
    a('s_waitcnt lgkmcnt(0)')
    stamp(a, SV, 2)
    a('s_barrier')
    a('ds_read_b128 v[64:67], v60')
    a(f'ds_read_b128 v[68:71], v60 offset:{128*256}')
    a(f'ds_read_b32 v72, v62 offset:{CNT}')
    a(f'ds_read_b32 v73, v62 offset:{CNT+512}')
    a(f'v_mov_b32 v9, {OVFC}')
    a('ds_read_b32 v8, v9')
    a('s_mov_b32 s79, 0x80000000')
    for k in range(2):
        b = 64 + 4*k
        a(f's_waitcnt lgkmcnt({2-k})' if k == 0 else 's_waitcnt lgkmcnt(1)')
        a(f'v_cmp_lt_u32 s[{82+2*k}:{83+2*k}], 16, v{72+k}')
        a(f'v_or_b32 v74, s79, v{b}')
        a(f'v_or_b32 v75, s79, v{b+2}')
        a(f'v_cndmask_b32 v{b}, v{b}, v74, s[{82+2*k}:{83+2*k}]')
        a(f'v_cndmask_b32 v{b+2}, v{b+2}, v75, s[{82+2*k}:{83+2*k}]')
        if k == 1: a('s_mov_b64 exec, s[66:67]')
        a(f'buffer_store_dwordx4 {vr(b,4)}, v63, s[52:55], s{77+k} offen{SC}')
    a('s_mov_b64 exec, -1')
    for k in range(2):
        lab = a.newlabel('K1_NH')
        if k == 0: a('s_mov_b64 exec, s[82:83]')
        else: a('s_and_b64 exec, s[84:85], s[66:67]')
        a(f's_cbranch_execz {lab}')
        a(f'ds_read_b128 v[76:79], v61 offset:{k*128*256}')
        a('s_waitcnt lgkmcnt(0)')
        a(f'buffer_store_dwordx4 v[76:79], v63, s[88:91], s{77+k} offen{SC}')
        a('s_nop 1')
        a.label(lab)
        a('s_mov_b64 exec, -1')
    a('s_waitcnt lgkmcnt(0)')
    a('v_cmp_eq_u32 vcc, 0, v0')
    a('s_and_saveexec_b64 s[70:71], vcc')
    a('s_cbranch_execz K1_BIN_SK2')
    a('s_lshl_b32 s77, s2, 2')
    a('v_mov_b32 v9, 0')
    a(f'buffer_store_dword v8, v9, s[72:75], s77 offen{SC}')
    a.label('K1_BIN_SK2')
    a('s_mov_b64 exec, s[70:71]')
    endstamps()
    a('s_endpgm')

    a.label('K1_GEMM')
    W2S = 0; HT = 32768; OT = 49152
    a(f's_sub_u32 s3, s2, {NCH}')
    a('v_and_b32 v1, 63, v0')
    a('v_lshrrev_b32 v2, 6, v0')
    a('v_lshrrev_b32 v3, 4, v1')
    a('v_readfirstlane_b32 s4, v2')
    a('v_and_b32 v4, 15, v1')
    a('v_lshlrev_b32 v5, 2, v3')
    a('v_xor_b32 v5, v5, v4')
    a('v_lshlrev_b32 v5, 4, v5')
    a('v_lshl_add_u32 v5, v3, 8, v5')
    a('s_and_b32 s10, s4, 3')
    a('s_lshl_b32 s10, s10, 2')
    a('v_or_b32 v6, s10, v3')
    a('v_xor_b32 v6, v6, v4')
    a('v_lshlrev_b32 v6, 4, v6')
    a('v_lshl_add_u32 v6, v3, 8, v6')
    a('s_lshl_b32 s5, s4, 10')
    a(f's_mul_i32 s8, s3, {GN*256}')
    a('s_add_u32 s9, s8, s5')
    a('s_lshl_b32 s6, s4, 11')
    a('s_add_u32 s7, s6, 32768')
    a('s_waitcnt lgkmcnt(0)')
    stamp(a, SV, 0, True); stamp(a, SV, 1)
    a.srd(44, 16, N*256)
    a.srd(40, 26, 258*256)
    a(f's_add_u32 m0, s5, {HT}')
    a('s_nop 0')
    a(f'buffer_load_dwordx4 v6, s[44:47], s9 offen lds')
    for i in range(2):
        a(f's_add_u32 m0, s6, {W2S + i*1024}')
        a('s_nop 0')
        a('buffer_load_dwordx4 v5, s[40:43], s7 offen lds')
        a('s_add_u32 s7, s7, 1024')
    a.srd(48, 36, N*256, WS_B)
    if T1:
        a('s_mov_b64 exec, 1')
        a('buffer_load_dword v120, v6, s[48:51], s9 offen')
        a('s_mov_b64 exec, -1')
    a('s_and_b32 s12, s4, 3')
    a('s_lshr_b32 s13, s4, 2')
    a('v_and_b32 v4, 31, v1')
    a('v_lshrrev_b32 v5, 5, v1')
    a('v_and_b32 v7, 15, v1')
    a('v_lshrrev_b32 v8, 2, v7')
    a('v_and_b32 v9, 3, v7')
    a('v_lshl_add_u32 v10, v5, 3, v8')
    a('v_lshlrev_b32 v10, 8, v10')
    a('v_and_b32 v11, 1, v9')
    a('v_lshlrev_b32 v11, 5, v11')
    a('v_lshrrev_b32 v12, 1, v9')
    a('v_lshl_add_u32 v11, v12, 3, v11')
    a('v_bfe_u32 v12, v1, 4, 1')
    a('v_lshl_add_u32 v11, v12, 4, v11')
    a('v_xor_b32 v12, s12, v8')
    a('v_lshl_add_u32 v11, v12, 6, v11')
    a('v_add_u32 v10, v10, v11')
    a('v_and_b32 v11, 15, v4')
    a('v_xor_b32 v11, v11, v5')
    a('v_lshlrev_b32 v11, 4, v11')
    a('v_lshl_add_u32 v11, v4, 8, v11')
    a('s_lshl_b32 s14, s13, 13')
    a(f's_add_u32 s15, s14, {HT}')
    a('v_add_u32 v11, s15, v11')
    a('v_and_b32 v12, 15, v4')
    a('v_lshlrev_b32 v13, 1, v5')
    a('s_lshl_b32 s15, s12, 2')
    a('v_add_u32 v13, s15, v13')
    a('v_xor_b32 v13, v13, v12')
    a('v_lshlrev_b32 v13, 4, v13')
    a('v_lshl_add_u32 v13, v4, 8, v13')
    a(f's_add_u32 s14, s14, {OT}')
    a('v_add_u32 v13, s14, v13')
    a('v_xor_b32 v14, 16, v13')
    a('v_lshlrev_b32 v15, 4, v1')
    a(f's_add_u32 s14, s5, {OT}')
    a('v_add_u32 v15, s14, v15')
    a(f's_mov_b32 s14, {NLOG2E}')
    a(f's_mov_b32 s15, {NLOG2E}')
    a(f's_waitcnt vmcnt({T1})')
    stamp(a, SV, 2)
    a('s_barrier')
    a('s_cmp_ge_u32 s4, 8')
    a('s_cbranch_scc1 ' + ('K1_PF' if 'codepf' in OPT else 'K1_G2'))
    XB = 32
    for s in range(8):
        a(f'ds_read_b64_tr_b16 {vr(XB+4*s,2)}, v10 offset:{s*4096}')
        a(f'ds_read_b64_tr_b16 {vr(XB+4*s+2,2)}, v10 offset:{s*4096+1024}')
    DB = 96
    HB = 64
    for s in range(8):
        if s: a(f'v_xor_b32 v12, {32*s}, v11')
        a(f'ds_read_b128 {vr(HB+4*s,4)}, v{12 if s else 11}')
    for s in range(8):
        a(f's_waitcnt lgkmcnt({7-s})')
        cin = '0' if s == 0 else vr(DB, 16)
        a(f'v_mfma_f32_32x32x16_bf16 {vr(DB,16)}, {vr(XB+4*s,4)}, {vr(HB+4*s,4)}, {cin}')
    stamp(a, SV, 3)
    a('s_nop 7'); a('s_nop 3')
    for p in range(8):
        a(f'v_pk_mul_f32 {vr(DB+2*p,2)}, {vr(DB+2*p,2)}, s[14:15]')
    for p in range(8):
        a(f'v_cvt_pk_bf16_f32 v{XB+p}, v{DB+2*p}, v{DB+2*p+1}')
    a(f'ds_write_b128 v13, {vr(XB,4)}')
    a(f'ds_write_b128 v14, {vr(XB+4,4)}')
    a.label('K1_G2')
    a('s_waitcnt lgkmcnt(0)')
    a('s_barrier')
    a(f'ds_read_b128 {vr(XB,4)}, v15')
    a('s_waitcnt lgkmcnt(0)')
    a(f'buffer_store_dwordx4 {vr(XB,4)}, v6, s[48:51], s9 offen{SC}')
    endstamps()
    a('s_endpgm')

    if 'codepf' in OPT:
        a.label('K1_PF')
        a('s_getpc_b64 s[92:93]')
        a.label('K1_PCL')
        a('s_add_u32 s92, s92, egnn_edge_kernel-K1_PCL')
        a('s_addc_u32 s93, s93, 0')
        a('v_subrev_u32 v70, 512, v0')
        a('v_lshlrev_b32 v70, 6, v70')
        a('v_cmp_gt_u32 vcc, K2_END-egnn_edge_kernel, v70')
        a('s_and_saveexec_b64 s[70:71], vcc')
        a('s_cbranch_execz K1_PF2')
        a('global_load_dword v71, v70, s[92:93]')
        a.label('K1_PF2')
        a('s_mov_b64 exec, s[70:71]')
        a('s_branch K1_G2')
    a.label('K1_TR')
    a(f's_sub_u32 s3, s2, {NCH + N_GEMM}')
    a('v_and_b32 v1, 63, v0')
    a('v_lshrrev_b32 v2, 8, v0')
    a('s_lshl_b32 s4, s3, 2')
    a('v_add_u32 v2, s4, v2')
    a('v_and_b32 v4, 7, v2')
    a('v_bfe_u32 v5, v0, 6, 2')
    a('v_lshlrev_b32 v6, 5, v5')
    a('v_lshrrev_b32 v7, 4, v1')
    a('v_lshl_add_u32 v6, v7, 3, v6')
    a('v_lshlrev_b32 v6, 8, v6')
    a('v_lshrrev_b32 v7, 1, v4')
    a('v_lshlrev_b32 v7, 5, v7')
    a('v_bfe_u32 v8, v1, 2, 2')
    a('v_lshl_add_u32 v7, v8, 3, v7')
    a('v_and_b32 v8, 1, v4')
    a('v_lshl_add_u32 v7, v8, 2, v7')
    a('v_and_b32 v8, 3, v1')
    a('v_add_u32 v7, v8, v7')
    a('v_lshl_add_u32 v6, v7, 1, v6')
    a('s_lshr_b32 s5, s3, 1')
    a('s_waitcnt lgkmcnt(0)')
    stamp(a, SV, 0, True); stamp(a, SV, 1)
    a('s_cmp_eq_u32 s5, 0')
    a('s_cselect_b32 s40, s26, s30')
    a('s_cselect_b32 s41, s27, s31')
    a('s_mov_b32 s42, 65536')
    a('s_mov_b32 s43, 0x20000')
    a('s_cmp_eq_u32 s5, 2')
    a('s_cselect_b32 s6, 32768, 0')
    a.srd(44, 36, 3*32768, WS_W)
    a('v_add_u32 v6, s6, v6')
    for i in range(8):
        a(f'buffer_load_ushort v{16+i}, v6, s[40:43], 0 offen offset:{i*256}')
    a('v_lshlrev_b32 v5, 4, v0')
    a('s_lshl_b32 s9, s3, 14')
    a('s_waitcnt vmcnt(0)')
    for p in range(4):
        a(f'v_lshl_or_b32 v{8+p}, v{16+2*p+1}, 16, v{16+2*p}')
    a(f'buffer_store_dwordx4 v[8:11], v5, s[44:47], s9 offen{SC}')
    endstamps()
    a('s_endpgm')

    a.label('K1_P8')
    a(f's_sub_u32 s3, s2, {NCH + N_GEMM + N_TR}')
    a('s_lshl_b32 s3, s3, 10')
    a('v_add_u32 v1, s3, v0')
    a(f'v_cmp_gt_u32 vcc, {N//2}, v1')
    a('s_and_saveexec_b64 s[70:71], vcc')
    a('s_cbranch_execz K1_END')
    a('v_mul_u32_u24 v2, 12, v1')
    a('v_lshlrev_b32 v3, 4, v1')
    a('s_waitcnt lgkmcnt(0)')
    a.srd(40, 18, N*6)
    a.srd(44, 36, N*8, WS_P8)
    a('buffer_load_dwordx3 v[4:6], v2, s[40:43], 0 offen')
    a('s_waitcnt vmcnt(0)')
    a('v_alignbit_b32 v10, v6, v5, 16')
    a('v_lshrrev_b32 v11, 16, v6')
    a('v_mov_b32 v8, v4')
    a('v_and_b32 v9, 0xffff, v5')
    a(f'buffer_store_dwordx4 v[8:11], v3, s[44:47], 0 offen{SC}')
    a('s_endpgm')

    a.label('K1_WDE')
    a('v_cmp_gt_u32 vcc, 256, v0')
    a('s_and_saveexec_b64 s[70:71], vcc')
    a('s_cbranch_execz K1_END')
    a('v_lshlrev_b32 v1, 1, v0')
    a('s_waitcnt lgkmcnt(0)')
    a.srd(40, 26, 258*256)
    a.srd(44, 36, 1024, WS_WDE)
    a('s_mov_b32 s10, 65536')
    a('buffer_load_short_d16_hi v2, v1, s[40:43], s10 offen')
    a(f's_mov_b32 s11, {NLOG2E}')
    a('s_waitcnt vmcnt(0)')
    a('v_mul_f32 v2, s11, v2')
    a('v_cvt_pk_bf16_f32 v3, v2, v2')
    a('v_lshlrev_b32 v4, 16, v3')
    a('v_sub_f32 v4, v2, v4')
    a('v_cvt_pk_bf16_f32 v4, v4, v4')
    a(f'buffer_store_short v3, v1, s[44:47], 0 offen{SC}')
    a(f'buffer_store_short v4, v1, s[44:47], 0 offen offset:512{SC}')
    a.label('K1_END')
    a('s_endpgm')
    a.raw(kd(name, 128))

def build(k2=True):
    a = Asm()
    hdr = HEADER
    hdr += f'; @launch kernel=egnn_prep_kernel grid=({K1_GRID},1,1) block=(1024,1,1) lds={K1_LDS}\n'
    if k2:
        import gen8_k2
        hdr += f'; @launch kernel=egnn_edge_kernel grid=({NB},1,1) block=(1024,1,1) lds={gen8_k2.K2_LDS}\n'
    a.raw(hdr + '.amdgcn_target "amdgcn-amd-amdhsa--gfx950"\n.text')
    gen_k1(a)
    if k2:
        gen8_k2.gen_k2(a)
    return a.text()

if __name__ == '__main__':
    k2 = '--nok2' not in sys.argv
    out = sys.argv[1] if len(sys.argv) > 1 and not sys.argv[1].startswith('--') else 'full8.s'
    open(out, 'w').write(build(k2))
    print('wrote', out)
```

```python
from asmlib import Asm, vr, sr, stamp, stamp_flush, STAMP
import gen9 as G
import os

X2 = 0; X2T = 1280
X1 = 40960
RAW = 57344
CNT = 61440
FLAG = CNT + 64
Z = 61568
WX = 62208
AR = 62464; ARS = 272
WDEL = AR + 40*ARS
HS = WDEL + 1024
UB = HS + 10240
RING = UB + 10240
SW = RING + 65536
POSL = SW + 64
K2_LDS = POSL + 320
CAP = 128
assert AR % 256 == 0 and RING % 128 == 0 and K2_LDS <= 163840

LANE = 1
V_CB = 2; V_X1B = 3; V_X2B = 4; V_RAWB = 5; V_GOFF = 6; PEND = 7; RR = 8
Y1 = 20; X1R = 28; X2R = 32; MP = 40; EE = 48; DA = 52
D0 = 56; D1 = 72; ACC = 88
OVCV = 120; SA = 121; SB = 122; VY0 = 123; VY1 = 124; POSV = 125
SV = 126
VSH = 36; VCN = 37; VD0 = 38; VD1 = 39
NV = 128
PRIO = os.environ.get('PRIO', '1') == '1'
OPT = G.OPT
ONT = ' nt' if 'noont' not in OPT else ''
UPOS = os.environ.get('UPOS', 'afterC')
GP = int(os.environ.get('GP', '2'))

def gen_k2(a):
    name = 'egnn_edge_kernel'
    G.kernel_head(a, name)
    a(f's_cmp_ge_u32 s2, {G.NB}')
    a('s_cbranch_scc1 K2_END')
    stamp(a, SV, 20, True); stamp(a, SV, 21)
    G.load_kernargs(a)
    a('v_lshrrev_b32 v11, 6, v0')
    a(f'v_and_b32 v{LANE}, 63, v0')
    a('v_readfirstlane_b32 s4, v11')
    def zero_lds():
        a('v_mov_b32 v16, 0'); a('v_mov_b32 v17, 0'); a('v_mov_b32 v18, 0'); a('v_mov_b32 v19, 0')
        a('v_lshlrev_b32 v13, 4, v0')
        for i in range(3):
            a(f'ds_write_b128 v13, v[16:19] offset:{i*16384}')
        lab = a.newlabel('K2_Z')
        a('s_cmp_ge_u32 s4, 12')
        a(f's_cbranch_scc1 {lab}')
        a(f'ds_write_b128 v13, v[16:19] offset:{3*16384}')
        a.label(lab)
        lab = a.newlabel('K2_Z')
        a('s_cmp_lg_u32 s4, 15')
        a(f's_cbranch_scc1 {lab}')
        a(f'v_lshlrev_b32 v13, 4, v{LANE}')
        a('s_mov_b32 exec_hi, 0xffff')
        a(f'ds_write_b128 v13, v[16:19] offset:{CNT}')
        a('s_mov_b64 exec, -1')
        a.label(lab)
    zero_lds()
    a('s_and_b32 s5, s4, 3')
    a('s_lshr_b32 s6, s5, 1')
    a('s_lshr_b32 s7, s4, 2')
    a('s_xor_b32 s13, s7, s4')
    a('s_and_b32 s13, s13, 1')
    a('s_lshl_b32 s7, s7, 1')
    a('s_lshl_b32 s9, s4, 12')
    a(f's_add_u32 s9, s9, {RING}')
    a('v_lshlrev_b32 v19, 3, v0')
    a(f'v_lshlrev_b32 v15, 4, v{LANE}')
    a(f'v_lshlrev_b32 v13, 2, v{LANE}')
    a('s_lshl_b32 s8, s2, 13')
    a(f's_mul_i32 s78, s2, {G.NPB*8}')
    a('s_waitcnt lgkmcnt(0)')
    stamp(a, SV, 0, True); stamp(a, SV, 1)
    a.srd(40, 36, G.C_BYTES, G.WS_C1)
    a(f'buffer_load_dwordx2 {vr(RR,2)}, v19, s[40:43], s8 offen')
    a.srd(44, 36, 256, G.WS_OVC)
    a(f'buffer_load_dword v{OVCV}, v13, s[44:47], 0 offen')
    a.srd(48, 36, G.N*256, G.WS_B)
    a('s_barrier')
    stamp(a, SV, 2)
    a.srd(56, 36, 3*32768, G.WS_W)
    a.srd(64, 36, G.N*8, G.WS_P8)
    a('s_and_b32 s5, s4, 3')
    a('s_cmp_ge_u32 s4, 8')
    a('s_cbranch_scc1 K2_JA')
    a('s_cmp_lt_u32 s4, 4')
    a('s_cbranch_scc1 K2_J3')
    a.srd(52, 16, G.N*256)
    a(f's_mul_i32 s10, s2, {G.NPB*256}')
    a(f'v_lshrrev_b32 v16, 4, v{LANE}')
    a(f'v_and_b32 v18, 15, v{LANE}')
    a('v_xor_b32 v17, v16, v18')
    a('v_lshlrev_b32 v17, 4, v17')
    a('v_lshl_add_u32 v17, v16, 8, v17')
    def hs_dma(i):
        x = (i & 3) * 64
        if x: a(f'v_xor_b32 v18, {x}, v17')
        a(f's_add_u32 s11, s10, {i*1024}')
        a(f's_mov_b32 m0, {HS + i*1024}')
        a('s_nop 0')
        a(f'buffer_load_dwordx4 v{18 if x else 17}, s[52:55], s11 offen lds')
    a('s_cmp_eq_u32 s4, 5')
    a('s_cbranch_scc1 K2_JH5')
    a('s_cmp_eq_u32 s4, 6')
    a('s_cbranch_scc1 K2_JH6')
    a('s_cmp_eq_u32 s4, 7')
    a('s_cbranch_scc1 K2_JH7')
    for i in (0, 1, 2): hs_dma(i)
    a('s_branch K2_J3')
    a.label('K2_JH5')
    for i in (3, 4, 5): hs_dma(i)
    a('s_branch K2_J3')
    a.label('K2_JH6')
    for i in (6, 7): hs_dma(i)
    a(f's_mov_b32 m0, {POSL}')
    a(f's_mov_b64 exec, 0xfffff')
    a('buffer_load_dwordx4 v15, s[64:67], s78 offen lds')
    a('s_mov_b64 exec, -1')
    a('s_branch K2_J3')
    a.label('K2_JH7')
    for i in (8, 9): hs_dma(i)
    a('s_branch K2_J3')
    a.label('K2_JA')
    a('s_lshl_b32 s10, s5, 13')
    a('s_lshl_b32 s11, s4, 10')
    a('s_and_b32 s11, s11, 4096')
    a('s_add_u32 s10, s10, s11')
    for i in range(4):
        a(f'buffer_load_dwordx4 {vr(D1+4*i,4)}, v15, s[56:59], s10 offen offset:{i*1024}')
    a('s_cmp_lt_u32 s4, 12')
    a('s_cbranch_scc1 K2_J3')
    a('s_cmp_eq_u32 s4, 14')
    a('s_cbranch_scc1 K2_JX')
    a('s_cmp_eq_u32 s4, 15')
    a('s_cbranch_scc1 K2_JW')
    a.srd(72, 32, G.N*256 + G.N*6)
    a(f's_mul_i32 s10, s2, {G.NPB*256}')
    a(f's_mul_i32 s11, s2, {G.NPB*6}')
    a(f's_add_u32 s11, s11, {G.N*256}')
    a('s_cmp_eq_u32 s4, 12')
    a('s_cselect_b32 s10, s10, s11')
    a('v_mov_b32 v13, 0')
    a('s_mov_b64 exec, 1')
    a('buffer_load_dword v127, v13, s[72:75], s10 offen')
    a('s_mov_b64 exec, -1')
    a('s_branch K2_J3')
    a.label('K2_JX')
    a.srd(72, 28, 256)
    a(f's_mov_b32 m0, {WX}')
    a('s_mov_b64 exec, 0xffff')
    a('buffer_load_dwordx4 v15, s[72:75], 0 offen lds')
    a('s_mov_b64 exec, -1')
    a('s_branch K2_J3')
    a.label('K2_JW')
    a.srd(72, 36, 1024, G.WS_WDE)
    a(f's_mov_b32 m0, {WDEL}')
    a('s_nop 0')
    a('buffer_load_dwordx4 v15, s[72:75], 0 offen lds')
    a('s_branch K2_J3')
    a.label('K2_J3')
    a.srd(68, 32, G.N*256 + G.N*6)
    a('s_mov_b32 s77, 0x003fff00')
    a('s_mov_b32 s76, 1')
    a(f's_mov_b32 s79, {POSL}')
    a(f'v_and_b32 v13, 31, v{LANE}')
    a(f'v_lshrrev_b32 v14, 5, v{LANE}')
    a('v_bfe_u32 v15, v13, 2, 1')
    a('v_lshlrev_b32 v15, 4, v15')
    a('v_lshrrev_b32 v16, 3, v13')
    a('v_lshl_add_u32 v15, v16, 2, v15')
    a('v_and_b32 v16, 3, v13')
    a('v_add_u32 v15, v15, v16')
    a('v_lshlrev_b32 v15, 1, v15')
    a('v_lshl_add_u32 v15, v14, 9, v15')
    a(f'v_add_u32 v{V_CB}, s9, v15')
    def tile0_addresses():
        a('s_lshl_b32 s10, s7, 11')
        a(f's_add_u32 s10, s10, {X1}')
        a('v_lshlrev_b32 v15, 4, v13')
        a(f'v_add_u32 v{V_X1B}, s10, v15')
        a(f's_mul_i32 s10, s7, {4*X2T}')
        a(f'v_bfe_u32 v15, v{LANE}, 2, 2')
        a('v_lshl_add_u32 v15, v14, 2, v15')
        a('v_mul_u32_u24 v15, 40, v15')
        a(f'v_bfe_u32 v16, v{LANE}, 4, 1')
        a('v_lshl_add_u32 v15, v16, 5, v15')
        a(f'v_and_b32 v16, 3, v{LANE}')
        a('v_lshl_add_u32 v15, v16, 3, v15')
        a(f'v_add_u32 v{V_X2B}, s10, v15')
        a('s_lshl_b32 s10, s7, 9')
        a(f's_add_u32 s10, s10, {RAW}')
        a(f'v_lshrrev_b32 v15, 3, v{LANE}')
        a('v_lshlrev_b32 v15, 2, v15')
        a(f'v_add_u32 v{V_RAWB}, s10, v15')
    tile0_addresses()
    a('s_lshl_b32 s11, s6, 7')
    a(f'v_and_b32 v15, 7, v{LANE}')
    a('v_lshlrev_b32 v15, 4, v15')
    a(f'v_add_u32 v{V_GOFF}, s11, v15')
    a(f'v_and_b32 v16, 15, v{LANE}')
    a('v_lshrrev_b32 v17, 2, v16')
    a('v_and_b32 v16, 3, v16')
    a('v_and_b32 v18, 1, v16')
    a('v_lshlrev_b32 v18, 5, v18')
    a('v_lshrrev_b32 v16, 1, v16')
    a('v_lshl_add_u32 v18, v16, 3, v18')
    a(f'v_bfe_u32 v16, v{LANE}, 4, 1')
    a('v_lshl_add_u32 v18, v16, 4, v18')
    a('s_lshl_b32 s10, s6, 7')
    a('v_add_u32 v18, s10, v18')
    a(f's_mul_i32 s11, s7, {5*ARS}')
    a(f'v_cmp_lt_u32 vcc, 31, v{LANE}')
    a('v_cmp_gt_u32 s[80:81], 2, v17')
    a('v_cmp_gt_u32 s[82:83], 3, v17')
    a(f's_add_u32 s12, s11, {AR - 2*ARS}')
    a(f'v_mul_u32_u24 v13, {ARS}, v17')
    a('v_add_u32 v13, s12, v13')
    a('v_lshlrev_b32 v14, 8, v17')
    a(f'v_add_u32 v15, {WDEL}, v14')
    a('v_cndmask_b32 v13, v13, v15, s[80:81]')
    a(f'v_add_u32 v15, {WDEL+512}, v14')
    a(f'v_mov_b32 v16, {Z}')
    a('v_cndmask_b32 v15, v16, v15, s[80:81]')
    a('v_cndmask_b32 v13, v13, v15, vcc')
    a(f'v_add_u32 v{VY0}, v13, v18')
    a(f's_add_u32 s12, s11, {AR + 2*ARS}')
    a(f'v_mul_u32_u24 v13, {ARS}, v17')
    a('v_add_u32 v13, s12, v13')
    a('v_cndmask_b32 v13, v16, v13, s[82:83]')
    a('v_cndmask_b32 v13, v13, v16, vcc')
    a(f'v_add_u32 v{VY1}, v13, v18')
    a(f'v_mov_b32 v{VD0}, {5*ARS}')
    a(f'v_cndmask_b32 v{VD1}, 0, v{VD0}, s[82:83]')
    a(f'v_cndmask_b32 v{VD0}, v{VD0}, 0, s[80:81]')
    a(f'v_cndmask_b32 v{VD1}, v{VD1}, 0, vcc')
    a(f'v_cndmask_b32 v{VD0}, v{VD0}, 0, vcc')
    a(f'v_and_b32 v{VSH}, 3, v{LANE}')
    a(f'v_lshlrev_b32 v{VSH}, 3, v{VSH}')
    a(f'v_and_b32 v{VCN}, 7, v{LANE}')
    a(f'v_lshlrev_b32 v{VCN}, 3, v{VCN}')
    a('s_mov_b32 s82, 0x0fff0fff'); a('s_mov_b32 s83, 0x0fff0fff')
    a('s_mov_b32 s92, 0')
    for i in range(24):
        a(f'v_mov_b32 v{ACC+i}, 0')
    a('s_cmp_ge_u32 s4, 8')
    a('s_cbranch_scc1 K2_W9')
    for i in range(24, 32):
        a(f'v_mov_b32 v{ACC+i}, 0')
    a('s_cmp_eq_u32 s4, 7')
    a('s_cbranch_scc1 K2_W3')
    a('s_cmp_ge_u32 s4, 4')
    a('s_cbranch_scc1 K2_W4')
    a('s_waitcnt vmcnt(1)')
    a('s_branch K2_WD')
    a.label('K2_W3')
    a('s_waitcnt vmcnt(3)')
    a('s_branch K2_WD')
    a.label('K2_W4')
    a('s_waitcnt vmcnt(4)')
    a('s_branch K2_WD')
    a.label('K2_W9')
    a(f'v_and_b32 v18, 15, v{LANE}')
    a(f'v_lshrrev_b32 v19, 4, v{LANE}')
    a('v_xor_b32 v17, v19, v18')
    a('v_lshlrev_b32 v17, 4, v17')
    a('v_lshl_add_u32 v112, v18, 8, v17')
    a(f'v_add_u32 v112, {AR}, v112')
    a('v_xor_b32 v113, 64, v112')
    a('v_xor_b32 v114, 128, v112')
    a('v_xor_b32 v115, 192, v112')
    a(f'v_mul_u32_u24 v116, {ARS}, v18')
    a('v_lshl_add_u32 v116, v19, 4, v116')
    a('s_lshl_b32 s10, s5, 6')
    a('s_lshl_b32 s11, s4, 1')
    a('s_and_b32 s11, s11, 8')
    a('s_add_u32 s10, s10, s11')
    a(f's_add_u32 s10, s10, {AR}')
    a('v_add_u32 v116, s10, v116')
    a('v_cmp_gt_u32 s[86:87], 8, v18')
    a(f's_mov_b32 s88, {G.NLOG2E}'); a(f's_mov_b32 s89, {G.NLOG2E}')
    a('s_cmp_ge_u32 s4, 12')
    a('s_cbranch_scc1 K2_W2R')
    a('s_waitcnt vmcnt(5)')
    a('s_branch K2_WD')
    a.label('K2_W2R')
    a('s_waitcnt vmcnt(6)')
    a.label('K2_WD')
    stamp(a, SV, 3)
    for k in range(4):
        a(f'v_mov_b32_dpp v16, v{RR+1} row_newbcast:{12+k} row_mask:0xf bank_mask:{1<<k:#x}')
    a(f'v_cndmask_b32 v{RR+2}, -1, v{RR+1}, s[82:83]')
    a(f'v_cmp_ne_u32 vcc, -1, v{RR}')
    a(f'v_lshrrev_b32 v16, v{VSH}, v16')
    a(f'v_cmp_ne_u32 s[84:85], -1, v{RR+2}')
    a(f'v_and_b32 v{RR+1}, 0xfff00000, v{RR}')
    a('v_and_b32 v17, 15, v16')
    a(f'v_cndmask_b32 v{PEND}, 0, 1, vcc')
    a(f'v_lshl_or_b32 v{RR+1}, v17, 16, v{RR+1}')
    a('s_cmp_eq_u64 s[84:85], 0')
    a('s_cbranch_scc1 K2_ROUND')
    a(f'v_and_b32 v{RR+3}, 0xfff00000, v{RR+2}')
    a('v_bfe_u32 v17, v16, 4, 4')
    a(f'v_lshl_or_b32 v{RR+3}, v17, 16, v{RR+3}')
    a(f'v_cndmask_b32 v13, 0, 2, s[84:85]')
    a(f'v_or_b32 v{PEND}, v{PEND}, v13')

    PSA = 56; PDA = 58; PSB = 60; PDB = 62
    def p1_issue(w0, ps, pd, rank, g8):
        a(f'v_and_b32 v{g8}, 0x38, v{w0}')
        a(f'ds_add_rtn_u32 v{rank}, v{g8}, v12 offset:{CNT}')
        a(f'v_bfe_u32 v13, v{w0}, 6, 14')
        a('v_lshlrev_b32 v13, 3, v13')
        a(f'v_and_b32 v15, 7, v{w0}')
        a(f'buffer_load_dwordx2 {vr(ps,2)}, v13, s[64:67], 0 offen')
        a('v_lshl_add_u32 v15, v15, 3, s79')
        a(f'v_mad_u32_u24 v{pd}, v{g8}, 5, v15')
    def p1_finish(w0, rank, g8, S, pm, keep):
        a(f'v_cmp_gt_u32 vcc, {CAP}, v{rank}')
        a(f'v_lshl_add_u32 v{S}, v{g8}, 4, v{rank}')
        a(f'v_lshlrev_b32 v15, 2, v{w0}')
        a('s_and_b64 exec, exec, vcc')
        a(f's_mov_b64 s[{pm}:{pm+1}], exec')
        a(f'v_lshlrev_b32 v13, 2, v{S}')
        a(f'ds_write_b32 v13, v15 offset:{RAW}')
        a(f'v_and_b32 v15, 7, v{w0}')
        a(f'v_lshlrev_b32 v13, 3, v{S}')
        a('v_add_lshl_u32 v13, v13, v15, 1')
        a('v_mov_b32 v15, 0x3f80')
        a(f'ds_write_b16 v13, v15 offset:{X1+4}')
        a(f'v_and_b32 v{PEND}, {keep}, v{PEND}')
    def xaddr(w0, S, o1, o2):
        a(f'v_lshlrev_b32 v{o1}, 4, v{S}')
        a(f'v_mul_u32_u24 v16, 40, v{S}')
        a(f'v_and_b32 v17, 7, v{w0}')
        a(f'v_lshl_add_u32 v{o2}, v17, 3, v16')
    def xbuild(ea, ps, pd, o1, o2, pm):
        a(f'v_lshlrev_b32 v64, 16, v{pd}')
        a(f'v_and_b32 v65, 0xffff0000, v{pd}')
        a(f'v_lshlrev_b32 v66, 16, v{ps}')
        a(f'v_and_b32 v67, 0xffff0000, v{ps}')
        a(f'v_lshlrev_b32 v68, 16, v{pd+1}')
        a(f'v_lshlrev_b32 v69, 16, v{ps+1}')
        a('v_pk_add_f32 v[64:65], v[64:65], v[66:67] neg_lo:[0,1] neg_hi:[0,1]')
        a('v_sub_f32 v68, v68, v69')
        a('v_cvt_pk_bf16_f32 v70, v64, v65')
        a('v_cvt_pk_bf16_f32 v71, v68, v68')
        a('v_lshlrev_b32 v64, 16, v70')
        a('v_and_b32 v65, 0xffff0000, v70')
        a('v_lshlrev_b32 v66, 16, v71')
        a('v_or_b32 v68, 0x3f80, v64')
        a('v_mul_f32 v64, v64, v64')
        a('v_alignbit_b32 v69, v71, v70, 16')
        a('v_fma_f32 v64, v65, v65, v64')
        a('v_fma_f32 v64, v66, v66, v64')
        a(f'v_cvt_pk_bf16_f32 v64, v64, v{ea}')
        a(f's_mov_b64 exec, s[{pm}:{pm+1}]')
        a(f'ds_write_b64 v{o2}, v[68:69] offset:{X2}')
        a(f'ds_write_b32 v{o1}, v64 offset:{X1}')
        a('s_mov_b64 exec, -1')
    def dma0():
        for i in range(4):
            a(f'ds_read_b32 v{DA+i}, v{V_RAWB} offset:{32*i}')
        a('s_waitcnt lgkmcnt(0)')
        for i in range(4):
            a(f'v_and_or_b32 v{DA+i}, v{DA+i}, s77, v{V_GOFF}')
        for i in range(4):
            a(f's_add_u32 m0, s9, {i*1024}')
            a('s_nop 0')
            a(f'buffer_load_dwordx4 v{DA+i}, s[48:51], 0 offen lds')
    def node_gemm():
        F = D1; BS = (56, 40, 20); AC = (88, 92, 96)
        XA0 = (112, 113, 114, 115)
        for nt in range(3):
            for s in range(4):
                a(f'ds_read_b128 {vr(BS[nt]+4*s,4)}, v{XA0[s]} offset:{HS - AR + nt*4096}')
        def fin(nt):
            u = AC[nt]
            a(f'v_pk_mul_f32 {vr(u,2)}, {vr(u,2)}, s[88:89]')
            a(f'v_pk_mul_f32 {vr(u+2,2)}, {vr(u+2,2)}, s[88:89]')
            a(f'v_cvt_pk_bf16_f32 v{u}, v{u}, v{u+1}')
            a(f'v_cvt_pk_bf16_f32 v{u+1}, v{u+2}, v{u+3}')
            if nt == 2: a('s_mov_b64 exec, s[86:87]')
            a(f'ds_write_b64 v116, {vr(u,2)} offset:{nt*16*ARS}')
        for s in range(4):
            for nt in range(3):
                pass
        for nt in range(3):
            for s in range(4):
                a(f's_waitcnt lgkmcnt({11 - 4*nt - s})')
                u = vr(AC[nt], 4)
                a(f'v_mfma_f32_16x16x32_bf16 {u}, {vr(F+4*s,4)}, {vr(BS[nt]+4*s,4)}, {"0" if s == 0 else u}')
        stamp(a, SV, 19)
        fin(0)
        fin(1)
        a('s_nop 3')
        fin(2)
        a('s_mov_b64 exec, -1')

    a.label('K2_ROUND')
    a('v_mov_b32 v12, 1')
    a(f'v_and_b32 v13, 1, v{PEND}')
    a('v_cmp_ne_u32 s[80:81], 0, v13')
    a('s_lshr_b32 s10, s4, 2')
    a('s_cmp_lg_u64 s[84:85], 0')
    a('s_mov_b64 exec, s[80:81]')
    a('s_cbranch_scc1 K2_P1B')
    p1_issue(RR, PSA, PDA, 16, 14)
    a('s_waitcnt lgkmcnt(0)')
    p1_finish(RR, 16, 14, SA, 96, 2)
    a('s_mov_b64 exec, -1')
    a('s_cmp_eq_u32 s10, 1')
    a('s_cbranch_scc0 K2_RH')
    a('s_cmp_eq_u64 s[80:81], 0')
    a('s_cbranch_scc1 K2_RH0')
    a('s_waitcnt vmcnt(1)')
    a('s_branch K2_RH')
    a.label('K2_P1B')
    p1_issue(RR, PSA, PDA, 16, 14)
    a('s_mov_b64 exec, s[84:85]')
    p1_issue(RR+2, PSB, PDB, 17, 18)
    a('s_mov_b64 exec, s[80:81]')
    a('s_waitcnt lgkmcnt(0)')
    p1_finish(RR, 16, 14, SA, 96, 2)
    a('s_mov_b64 exec, s[84:85]')
    p1_finish(RR+2, 17, 18, SB, 98, 1)
    a('s_mov_b64 exec, -1')
    a('s_cmp_eq_u32 s10, 1')
    a('s_cbranch_scc0 K2_RH')
    a('s_cmp_eq_u64 s[80:81], 0')
    a('s_cbranch_scc1 K2_RH0')
    a('s_waitcnt vmcnt(2)')
    a('s_branch K2_RH')
    a.label('K2_RH0')
    a('s_waitcnt vmcnt(0)')
    a.label('K2_RH')
    a('s_waitcnt lgkmcnt(0)')
    a('s_barrier')
    stamp(a, SV, 4)
    BP = os.environ.get('BP', '')
    if BP:
        lab = a.newlabel('K2_BP')
        a('s_cmp_ge_u32 s4, 4')
        a(f's_cbranch_scc1 {lab}')
        a(f's_setprio {BP}')
        a.label(lab)
    a('s_mov_b32 s95, 0')
    a('s_mov_b64 exec, s[96:97]')
    a(f'ds_read_b64 {vr(PDA,2)}, v{PDA}')
    a('s_cmp_eq_u64 s[84:85], 0')
    a('s_cbranch_scc1 K2_PD1')
    a('s_mov_b64 exec, s[98:99]')
    a(f'ds_read_b64 {vr(PDB,2)}, v{PDB}')
    a.label('K2_PD1')
    a('s_mov_b64 exec, -1')
    a('s_cmp_eq_u32 s76, 0')
    a('s_cbranch_scc1 K2_LATER')
    a('s_cmp_ge_u32 s4, 8')
    a('s_cbranch_scc1 K2_HW')
    a(f'ds_read_b32 v14, v{VCN} offset:{CNT}')
    a('s_add_u32 s12, s7, 1')
    def adjust():
        a('s_add_u32 s7, s7, s13')
        a('s_lshl_b32 s10, s13, 11')
        a(f's_mul_i32 s11, s13, {4*X2T}')
        a('s_lshl_b32 s12, s13, 9')
        a(f'v_add_u32 v{V_X1B}, s10, v{V_X1B}')
        a(f'v_add_u32 v{V_X2B}, s11, v{V_X2B}')
        a(f'v_add_u32 v{V_RAWB}, s12, v{V_RAWB}')
        a(f'v_mad_u32_u24 v{VY0}, v{VD0}, s13, v{VY0}')
        a(f'v_mad_u32_u24 v{VY1}, v{VD1}, s13, v{VY1}')
    def xb_b():
        lab = a.newlabel('K2_XB')
        a('s_cmp_eq_u64 s[84:85], 0')
        a(f's_cbranch_scc1 {lab}')
        xaddr(RR+2, SB, 44, 46)
        xbuild(RR+3, PSB, PDB, 44, 46, 98)
        a.label(lab)
    for i in range(4):
        a(f'ds_read2_b32 {vr(48+2*i,2)}, v{V_RAWB} offset0:{8*i} offset1:{8*i+128}')
    xaddr(RR, SA, 44, 46)
    a('s_waitcnt lgkmcnt(0)')
    a('v_readlane_b32 s10, v14, s7')
    a('v_readlane_b32 s11, v14, s12')
    a('s_mov_b32 s95, 1')
    a('s_cmp_gt_u32 s11, s10')
    a('s_cselect_b32 s10, 1, 0')
    a('s_xor_b32 s13, s13, s10')
    a('s_cbranch_scc1 K2_O1')
    for i in range(4):
        a(f'v_and_or_b32 v{40+i}, v{48+2*i}, s77, v{V_GOFF}')
    a('s_branch K2_O2')
    a.label('K2_O1')
    for i in range(4):
        a(f'v_and_or_b32 v{40+i}, v{49+2*i}, s77, v{V_GOFF}')
    a.label('K2_O2')
    stamp(a, SV, 15)
    for i in range(4):
        a(f's_add_u32 m0, s9, {i*1024}')
        a('s_nop 0')
        a(f'buffer_load_dwordx4 v{40+i}, s[48:51], 0 offen lds')
    stamp(a, SV, 16)
    a('s_waitcnt vmcnt(4)')
    stamp(a, SV, 17)
    xbuild(RR+1, PSA, PDA, 44, 46, 96)
    xb_b()
    adjust()
    a('s_cmp_eq_u32 s4, 4')
    a('s_cbranch_scc0 K2_C3')
    a('v_mov_b32_dpp v15, v14 quad_perm:[1,0,3,2] row_mask:0xf bank_mask:0xf')
    a('v_cmp_gt_u32 vcc, v15, v14')
    a('v_sad_u32 v15, v14, v15, 0')
    a('v_cndmask_b32 v17, 0, 1, vcc')
    a(f'v_bfe_u32 v18, v{LANE}, 1, 1')
    a('v_sub_u32_dpp v16, v15, v15 quad_perm:[2,3,0,1] row_mask:0xf bank_mask:0xf')
    a('v_xor_b32 v17, v17, v18')
    a(f'v_bfe_u32 v18, v{LANE}, 2, 1')
    a('v_readlane_b32 s10, v16, 0')
    a('v_readlane_b32 s11, v16, 4')
    a('s_mul_i32 s10, s10, s11')
    a('s_cmp_gt_i32 s10, 0')
    a('s_cselect_b32 s10, 1, 0')
    a('v_and_b32 v18, s10, v18')
    a('v_xor_b32 v17, v17, v18')
    a(f'v_lshlrev_b32 v13, 1, v{LANE}')
    a(f'v_add_u32 v13, {SW}, v13')
    a('s_mov_b64 exec, 0x55')
    a('ds_write_b32 v13, v17')
    a('s_mov_b64 exec, -1')
    a('s_branch K2_C3')
    a.label('K2_HW')
    xaddr(RR, SA, 44, 46)
    a('s_waitcnt vmcnt(0) lgkmcnt(0)')
    xbuild(RR+1, PSA, PDA, 44, 46, 96)
    xb_b()
    a('s_branch K2_C3')
    a.label('K2_LATER')
    xaddr(RR, SA, 44, 46)
    a('s_waitcnt vmcnt(0) lgkmcnt(0)')
    xbuild(RR+1, PSA, PDA, 44, 46, 96)
    xb_b()
    a.label('K2_C3')
    stamp(a, SV, 5)
    a(f'v_cmp_ne_u32 vcc, 0, v{PEND}')
    a('s_cbranch_vccz K2_NF')
    a(f'v_mov_b32 v13, {FLAG}')
    a('s_mov_b64 exec, vcc')
    a('ds_write_b32 v13, v12')
    a('s_mov_b64 exec, -1')
    a.label('K2_NF')
    a('s_cmp_lt_u32 s4, 8')
    a('s_cbranch_scc1 K2_C4')
    a('s_cmp_eq_u32 s76, 0')
    a('s_cbranch_scc1 K2_C4')
    node_gemm()
    stamp(a, SV, 6)
    a('s_branch K2_C5')
    a.label('K2_C4')
    for i in range(8):
        a(f'v_mov_b32 v{MP+i}, 0')
    stamp(a, SV, 6)
    a.label('K2_C5')
    a('s_waitcnt lgkmcnt(0)')
    a('s_barrier')
    stamp(a, SV, 7)
    CP = os.environ.get('CP', '')
    if CP == 'H':
        lab = a.newlabel('K2_CP')
        a('s_cmp_lt_u32 s4, 8')
        a(f's_cbranch_scc1 {lab}')
        a('s_setprio 3')
        a.label(lab)
    elif CP: a(f's_setprio {CP}')
    a('s_cmp_eq_u32 s76, 0')
    a('s_cbranch_scc1 K2_D2')
    a('s_cmp_lt_u32 s4, 8')
    a('s_cbranch_scc1 K2_D2')
    a('s_and_b32 s10, s4, 12')
    a(f's_add_u32 s10, s10, {SW}')
    a('v_mov_b32 v13, s10')
    a('ds_read_b32 v14, v13')
    a('s_and_b32 s13, s4, 1')
    a('s_waitcnt lgkmcnt(0)')
    a('v_readfirstlane_b32 s10, v14')
    a('s_xor_b32 s13, s13, s10')
    adjust()
    for i in list(range(12)) + list(range(24, 32)):
        a(f'v_mov_b32 v{ACC+i}, 0')
    for i in range(8):
        a(f'v_mov_b32 v{MP+i}, 0')
    a.label('K2_D2')
    a('s_lshl_b32 s10, s7, 3')
    a('v_mov_b32 v13, s10')
    a(f'ds_read_b32 v14, v13 offset:{CNT}')
    a(f'v_mov_b32 v13, {FLAG}')
    a('ds_read_b32 v16, v13')
    for ct in range(2):
        a(f'ds_read_b64_tr_b16 {vr(Y1+4*ct,2)}, v{VY0} offset:{64*ct}')
        a(f'ds_read_b64_tr_b16 {vr(Y1+4*ct+2,2)}, v{VY1} offset:{64*ct}')
    a(f'ds_read_b128 {vr(X1R,4)}, v{V_X1B}')
    a('s_waitcnt lgkmcnt(5)')
    a('v_readfirstlane_b32 s8, v14')
    a('v_readfirstlane_b32 s93, v16')
    a('s_cmp_eq_u32 s76, 0')
    a('s_cbranch_scc1 K2_SKIPY')
    a(f'v_cmp_ne_u32 vcc, 0, v{OVCV}')
    a('s_mov_b64 s[90:91], vcc')
    a.label('K2_SKIPY')
    a('s_cmp_eq_u32 s95, 0')
    a('s_cbranch_scc0 K2_D1')
    dma0()
    a.label('K2_D1')
    a(f's_min_u32 s8, s8, {CAP}')
    def dma_rows(lab):
        for i in range(4):
            a(f's_cmp_le_u32 s12, {i}')
            a(f's_cbranch_scc1 {lab}')
            a(f's_add_u32 m0, s9, {i*1024}')
            a('s_nop 0')
            a(f'buffer_load_dwordx4 v{DA+i}, s[48:51], 0 offen lds')
        a.label(lab)

    def quad(d, mp):
        e = EE
        for i in range(4): a(f'v_exp_f32 v{e+i}, v{d+i}')
        a(f'v_pk_add_f32 {vr(e,2)}, {vr(e,2)}, 1.0 op_sel_hi:[1,0]')
        a(f'v_pk_add_f32 {vr(e+2,2)}, {vr(e+2,2)}, 1.0 op_sel_hi:[1,0]')
        for i in range(4): a(f'v_rcp_f32 v{e+i}, v{e+i}')
        a(f'v_pk_mul_f32 {vr(d,2)}, {vr(d,2)}, {vr(e,2)}')
        a(f'v_pk_mul_f32 {vr(d+2,2)}, {vr(d+2,2)}, {vr(e+2,2)}')
        a(f'v_cvt_pk_bf16_f32 v{mp}, v{d}, v{d+1}')
        a(f'v_cvt_pk_bf16_f32 v{mp+1}, v{d+2}, v{d+3}')
    def creads(d, ct):
        for q in range(4):
            for i in range(4):
                a(f'ds_read_u16_d16_hi v{d+4*q+i}, v{V_CB} offset:{(8*q+i)*128 + 64*ct}')
    def x2reads():
        for k in range(4):
            a(f'ds_read_b64_tr_b16 {vr(X2R+2*k,2)}, v{V_X2B} offset:{320*k}')
    def front(d, ct):
        a(f'v_mfma_f32_32x32x16_bf16 {vr(d,16)}, {vr(X1R,4)}, {vr(Y1+4*ct,4)}, {vr(d,16)}')
    def back(ct, m, pad=True):
        acc = vr(ACC+16*ct, 16)
        if pad: a('s_nop 1')
        a(f'v_mfma_f32_32x32x16_bf16 {acc}, {vr(MP+4*m,4)}, {vr(X2R+4*m,4)}, {acc}')
    F0 = (D0, D0+4, D0+8, D0+12)
    F1 = (104, 108, 112, 116)
    FU = (20, 24, 28, DA)
    def wload(F, base, sh, lab=True):
        if lab:
            lab = a.newlabel('K2_W2')
            a('s_cmp_ge_u32 s4, 8')
            a(f's_cbranch_scc1 {lab}')
        a(f'v_lshlrev_b32 v15, 4, v{LANE}')
        a(f's_lshl_b32 s10, {"s4" if sh == 12 else "s5"}, {sh}')
        a(f's_add_u32 s10, s10, {base}')
        for s in range(4):
            a(f'buffer_load_dwordx4 {vr(F[s],4)}, v15, s[56:59], s10 offen offset:{s*1024}')
        if lab: a.label(lab)
    def w2load(j):
        if j == 1: wload(FU, 32768, 12)
        else: wload(F0, 65536, 13)
    def setprio(levels):
        if not PRIO: return
        end = a.newlabel('K2_PE')
        for (rem_le, pr) in levels[:-1]:
            nxt = a.newlabel('K2_PN')
            a(f's_cmp_gt_u32 s8, {rem_le}')
            a(f's_cbranch_scc1 {nxt}')
            a(f's_setprio {pr}')
            a(f's_branch {end}')
            a.label(nxt)
        a(f's_setprio {levels[-1][1]}')
        a.label(end)

    a('s_cmp_eq_u32 s8, 0')
    a('s_cbranch_scc1 K2_EMPTY')
    a('s_waitcnt vmcnt(0)')
    stamp(a, SV, 8)
    creads(D0, 0)
    a('s_waitcnt lgkmcnt(0)')
    front(D0, 0)
    a('s_nop 7')
    a('s_cmp_gt_u32 s8, 32')
    a('s_nop 1')
    a('s_cbranch_scc0 K2_LAST')
    a.label('K2_FULL')
    if PRIO: a('s_setprio 3')
    creads(D1, 1)
    x2reads()
    for i in range(4):
        a(f'ds_read_b32 v{DA+i}, v{V_RAWB} offset:{128 + 32*i}')
    a('s_sub_u32 s11, s8, 32')
    a('s_add_u32 s12, s11, 7')
    a('s_lshr_b32 s12, s12, 3')
    a('s_min_u32 s12, s12, 4')
    quad(D0, MP); quad(D0+4, MP+2)
    a('s_waitcnt lgkmcnt(0)')
    back(0, 0)
    for i in range(4):
        a(f'v_and_or_b32 v{DA+i}, v{DA+i}, s77, v{V_GOFF}')
    quad(D0+8, MP+4)
    front(D1, 1)
    dma_rows(a.newlabel('K2_ND'))
    quad(D0+12, MP+6)
    back(0, 1)
    setprio([(64, 2), (None, 3)])
    quad(D1, MP); quad(D1+4, MP+2)
    back(1, 0)
    a('s_waitcnt vmcnt(0)')
    creads(D0, 0)
    a(f'ds_read_b128 {vr(X1R,4)}, v{V_X1B} offset:512')
    a(f'v_add_u32 v{V_RAWB}, 128, v{V_RAWB}')
    a(f'v_add_u32 v{V_X1B}, 512, v{V_X1B}')
    a(f'v_add_u32 v{V_X2B}, {X2T}, v{V_X2B}')
    quad(D1+8, MP+4)
    a('s_waitcnt lgkmcnt(0)')
    front(D0, 0)
    quad(D1+12, MP+6)
    back(1, 1)
    a('s_mov_b32 s8, s11')
    a('s_cmp_gt_u32 s8, 32')
    a('s_cbranch_scc1 K2_FULL')
    a.label('K2_LAST')
    if PRIO: a('s_setprio 1')
    a('s_add_u32 s10, s8, 7')
    a('s_lshr_b32 s14, s10, 3')
    creads(D1, 1)
    x2reads()
    def skip_lt(n):
        lab = a.newlabel('K2_S')
        a(f's_cmp_lt_u32 s14, {n}')
        a(f's_cbranch_scc1 {lab}')
        return lab
    quad(D0, MP)
    l = skip_lt(2); quad(D0+4, MP+2); a.label(l)
    a('s_waitcnt lgkmcnt(0)')
    back(0, 0)
    l = skip_lt(3); quad(D0+8, MP+4); a.label(l)
    front(D1, 1)
    w2load(1)
    l3 = skip_lt(3)
    l = skip_lt(4); quad(D0+12, MP+6); a.label(l)
    back(0, 1)
    a.label(l3)
    w2load(0)
    if PRIO: a('s_setprio 0')
    quad(D1, MP)
    l = skip_lt(2); quad(D1+4, MP+2); a.label(l)
    back(1, 0)
    l3 = skip_lt(3)
    quad(D1+8, MP+4)
    l = skip_lt(4); quad(D1+12, MP+6); a.label(l)
    back(1, 1)
    a.label(l3)
    a('s_branch K2_LOOP_END')
    a.label('K2_EMPTY')
    a('s_waitcnt vmcnt(0) lgkmcnt(0)')
    w2load(1)
    w2load(0)
    a.label('K2_LOOP_END')
    stamp(a, SV, 9)
    a('s_or_b32 s10, s90, s91')
    a('s_or_b32 s10, s10, s93')
    a('s_cmp_eq_u32 s10, 0')
    a('s_cbranch_scc1 K2_EPI')
    a('s_waitcnt vmcnt(0) lgkmcnt(0)')
    a('s_barrier')
    zero_lds()
    a(f'v_and_b32 v13, 31, v{LANE}')
    a(f'v_lshrrev_b32 v14, 5, v{LANE}')
    tile0_addresses()
    a('s_mov_b32 s76, 0')
    a('s_cmp_lg_u32 s93, 0')
    a('s_cbranch_scc1 K2_NOREFILL')
    a('s_ff1_i32_b64 s94, s[90:91]')
    a.srd(44, 36, G.OVF_BYTES, G.WS_OVF)
    a.srd(72, 36, 256, G.WS_OVC)
    a('s_lshl_b32 s10, s94, 2')
    a('v_mov_b32 v16, s10')
    a('buffer_load_dword v17, v16, s[72:75], 0 offen')
    a(f's_mul_i32 s11, s94, {G.CH*16}')
    a('v_add_u32 v16, s92, v0')
    a('v_lshlrev_b32 v18, 4, v16')
    a('buffer_load_dwordx4 v[60:63], v18, s[44:47], s11 offen')
    a('s_waitcnt vmcnt(0)')
    a('v_cmp_lt_u32 vcc, v16, v17')
    a('v_cmp_eq_u32 s[80:81], s2, v62')
    a('s_and_b64 vcc, vcc, s[80:81]')
    a('s_nop 1')
    a(f'v_cndmask_b32 v{RR}, -1, v60, vcc')
    a(f'v_mov_b32 v{RR+1}, v61')
    a(f'v_cndmask_b32 v{PEND}, 0, 1, vcc')
    a(f'v_mov_b32 v{RR+2}, -1')
    a('v_readfirstlane_b32 s10, v17')
    a('s_add_u32 s92, s92, 1024')
    a('s_cmp_lt_u32 s92, s10')
    a('s_cbranch_scc1 K2_NOREFILL')
    a('s_bitset0_b64 s[90:91], s94')
    a('s_mov_b32 s92, 0')
    a.label('K2_NOREFILL')
    a(f'v_and_b32 v13, 2, v{PEND}')
    a('v_cmp_ne_u32 s[84:85], 0, v13')
    a('s_waitcnt lgkmcnt(0)')
    a('s_barrier')
    a('s_branch K2_ROUND')

    a.label('K2_EPI')
    P = ACC
    a(f'v_and_b32 v48, 3, v{LANE}')
    a('v_lshlrev_b32 v48, 2, v48')
    a(f'v_add_u32 v48, {SW}, v48')
    a('ds_read_b32 v49, v48')
    WXPRE = 'nowxpre' not in OPT
    if WXPRE:
        a('s_cmp_lt_u32 s4, 8')
        a('s_cbranch_scc1 K2_EW')
        a(f'v_lshrrev_b32 v12, 4, v{LANE}')
        a('v_lshlrev_b32 v12, 4, v12')
        for s in range(4):
            a(f'ds_read_b128 {vr(32+4*s,4)}, v12 offset:{WX + 64*s}')
        a(f'v_and_b32 v16, 15, v{LANE}')
        a('s_sub_u32 s10, s4, 8')
        a('s_lshl_b32 s10, s10, 4')
        a('v_add_u32 v16, s10, v16')
        a('v_min_u32 v16, 119, v16')
        a('v_mul_u32_u24 v17, 171, v16')
        a('v_lshrrev_b32 v17, 9, v17')
        a('v_add_u32 v17, v17, v16')
        a('v_lshl_add_u32 v17, v17, 1, s79')
        a(f'ds_read_u16_d16_hi v{POSV}, v17')
        a.label('K2_EW')
    a(f'v_and_b32 v13, 31, v{LANE}')
    a(f'v_lshrrev_b32 v14, 5, v{LANE}')
    a('v_lshrrev_b32 v16, 2, v13')
    a('v_and_b32 v17, 3, v13')
    a('v_lshl_add_u32 v16, v17, 1, v16')
    a('s_mul_i32 s11, s7, 5')
    a('v_add_u32 v16, s11, v16')
    a('v_lshlrev_b32 v14, 1, v14')
    a('v_xor_b32 v16, v16, v14')
    a('v_and_b32 v16, 7, v16')
    a('v_lshlrev_b32 v16, 4, v16')
    a('v_lshl_add_u32 v16, v13, 7, v16')
    a('v_add_u32 v16, s9, v16')
    a('s_waitcnt lgkmcnt(0)')
    a('v_cmp_ne_u32 vcc, 0, v49')
    a('s_and_b32 s15, vcc_lo, 15')
    a('v_cmp_gt_u32 vcc, 20, v13')
    a('v_xor_b32 v17, 16, v16')
    a('v_xor_b32 v18, 64, v16')
    a('v_xor_b32 v19, 80, v16')
    for ct in range(2):
        for p in range(8):
            a(f'v_cvt_pk_bf16_f32 v{P+8*ct+p}, v{ACC+16*ct+2*p}, v{ACC+16*ct+2*p+1}')
    a('s_mov_b64 exec, vcc')
    for k in range(4):
        ct, h2 = k >> 1, k & 1
        a(f'ds_write_b128 v{16+k}, {vr(P+8*ct+4*h2,4)}')
    a('s_mov_b64 exec, -1')
    a('s_cmp_lt_u32 s4, 8')
    a('s_cbranch_scc1 K2_EG')
    a('s_waitcnt lgkmcnt(0)')
    stamp(a, SV, 10)
    a('s_barrier')
    stamp(a, SV, 11)
    ZP = os.environ.get('ZP', '2')
    if PRIO: a(f's_setprio {ZP}')
    def row_addr(dst, node, kind2, tmp1, tmp2):
        a(f'v_mul_u32_u24 v{tmp1}, 13, v{node}')
        a(f'v_lshrrev_b32 v{tmp1}, 6, v{tmp1}')
        a(f'v_mul_u32_u24 v{tmp2}, 5, v{tmp1}')
        a(f'v_sub_u32 v{tmp2}, v{node}, v{tmp2}')
        a(f'v_lshlrev_b32 v{dst}, 9, v{tmp2}')
        a(f'v_lshrrev_b32 v{tmp2}, 1, v{tmp1}')
        a(f'v_lshl_add_u32 v{dst}, v{tmp2}, 14, v{dst}')
        a(f'v_lshrrev_b32 v{tmp2}, v{tmp2}, s15')
        a(f'v_xor_b32 v{tmp1}, v{tmp1}, v{tmp2}')
        a(f'v_and_b32 v{tmp1}, 1, v{tmp1}')
        a(f'v_lshl_add_u32 v{dst}, v{tmp1}, 12, v{dst}')
        if kind2 is not None:
            a(f'v_lshl_add_u32 v{dst}, v{kind2}, 7, v{dst}')
            a(f'v_lshl_add_u32 v{tmp1}, v{kind2}, 1, v{node}')
            a(f'v_xor_b32 v{tmp1}, v{tmp1}, v19')
        else:
            a(f'v_xor_b32 v{tmp1}, v{node}, v19')
        a(f'v_and_b32 v{tmp1}, 7, v{tmp1}')
        a(f'v_lshl_add_u32 v{dst}, v{tmp1}, 4, v{dst}')
        a(f'v_add_u32 v{dst}, {RING}, v{dst}')
    a(f'v_and_b32 v18, 15, v{LANE}')
    a(f'v_lshrrev_b32 v19, 4, v{LANE}')
    if not WXPRE:
        a('v_lshlrev_b32 v12, 4, v19')
        for s in range(4):
            a(f'ds_read_b128 {vr(32+4*s,4)}, v12 offset:{WX + 64*s}')
    a('s_sub_u32 s10, s4, 8')
    a('s_lshl_b32 s10, s10, 4')
    a('v_add_u32 v18, s10, v18')
    a('v_min_u32 v17, 119, v18')
    a('v_mul_u32_u24 v13, 171, v17')
    a('v_lshrrev_b32 v13, 9, v13')
    a('v_mul_u32_u24 v14, 3, v13')
    a('v_sub_u32 v14, v17, v14')
    a('v_add_u32 v14, 1, v14')
    row_addr(16, 13, 14, 15, 17)
    a('v_xor_b32 v17, 64, v16')
    a(f'ds_read_b128 {vr(56,4)}, v16')
    a(f'ds_read_b128 {vr(60,4)}, v17')
    a(f'ds_read_b128 {vr(64,4)}, v16 offset:8192')
    a(f'ds_read_b128 {vr(68,4)}, v17 offset:8192')
    a(f's_mov_b32 s86, {G.NLN2}')
    a(f's_mul_i32 s5, s2, {G.NPB*6}')
    a(f's_add_u32 s5, s5, {G.N*256}')
    a('v_lshlrev_b32 v15, 1, v18')
    a('v_cmp_gt_u32 vcc, 120, v18')
    a(f'v_cmp_gt_u32 s[80:81], 16, v{LANE}')
    a('s_and_b64 vcc, vcc, s[80:81]')
    for s in range(4):
        a(f's_waitcnt lgkmcnt({3-s})')
        a(f'v_mfma_f32_16x16x32_bf16 v[72:75], {vr(32+4*s,4)}, {vr(56+4*s,4)}, {"0" if s == 0 else "v[72:75]"}')
    a('s_waitcnt vmcnt(0)')
    a('s_nop 7')
    a(f'v_fma_f32 v16, s86, v72, v{POSV}')
    a('v_cvt_pk_bf16_f32 v16, v16, v16')
    a('s_mov_b64 exec, vcc')
    a('buffer_store_short v16, v15, s[68:71], s5 offen' + ONT)
    a('s_branch K2_FIN')
    a.label('K2_EG')
    BA = (72, 76, 80, 84); BB = FU
    wload(F1, 65536 + 4096, 13, lab=False)
    a(f'v_and_b32 v18, 15, v{LANE}')
    a(f'v_lshrrev_b32 v19, 4, v{LANE}')
    a('v_xor_b32 v17, v19, v18')
    a('v_lshlrev_b32 v17, 4, v17')
    a('v_lshl_add_u32 v16, v18, 8, v17')
    a(f'v_add_u32 v16, {AR}, v16')
    a('v_xor_b32 v13, 64, v16')
    a('v_xor_b32 v14, 128, v16')
    a('v_xor_b32 v15, 192, v16')
    XA0 = (16, 13, 14, 15)
    UBS = (72, 32)
    UAC = (88, 92, 96)
    a(f's_mov_b32 s88, {G.NLOG2E}'); a(f's_mov_b32 s89, {G.NLOG2E}')
    def ureads(nt):
        for s in range(4):
            a(f'ds_read_b128 {vr(UBS[nt&1]+4*s,4)}, v{XA0[s]} offset:{HS - AR + nt*4096}')
    def umm(nt, w):
        for s in range(4):
            a(f's_waitcnt lgkmcnt({w + 3 - s})')
            u = vr(UAC[nt], 4)
            a(f'v_mfma_f32_16x16x32_bf16 {u}, {vr(FU[s],4)}, {vr(UBS[nt&1]+4*s,4)}, {"0" if s == 0 else u}')
    ureads(0); ureads(1)
    a('s_waitcnt vmcnt(8)')
    umm(0, 4)
    ureads(2)
    umm(1, 4)
    umm(2, 0)
    a('s_lshr_b32 s10, s4, 1')
    a('s_lshl_b32 s10, s10, 6')
    a('v_xor_b32 v16, s10, v16')
    a('s_and_b32 s10, s4, 1')
    a('s_lshl_b32 s10, s10, 3')
    a('v_add_u32 v16, s10, v16')
    a('v_cmp_gt_u32 vcc, 8, v18')
    for nt in range(3):
        u = UAC[nt]
        if nt == 2: a('s_nop 2')
        a(f'v_pk_mul_f32 {vr(u,2)}, {vr(u,2)}, s[88:89]')
        a(f'v_pk_mul_f32 {vr(u+2,2)}, {vr(u+2,2)}, s[88:89]')
        a(f'v_cvt_pk_bf16_f32 v{u}, v{u}, v{u+1}')
        a(f'v_cvt_pk_bf16_f32 v{u+1}, v{u+2}, v{u+3}')
        if nt == 2: a('s_mov_b64 exec, vcc')
        a(f'ds_write_b64 v16, {vr(u,2)} offset:{UB - AR + nt*4096}')
    a('s_mov_b64 exec, -1')
    UA = (32, 36); UBB = (40, 44)
    RA = 88; RB = 96
    SEL = 2; UQA = 8; UQB = 120; VUA = 100; VUB = 101
    a(f'v_and_b32 v18, 15, v{LANE}')
    a(f'v_lshrrev_b32 v19, 4, v{LANE}')
    a('s_lshr_b32 s12, s4, 2')
    a('s_lshl_b32 s10, s12, 4')
    a('v_add_u32 v13, s10, v18')
    a('s_lshl_b32 s10, s5, 2')
    a('v_add_u32 v14, s10, v19')
    a('v_xor_b32 v14, v14, v18')
    a('v_lshlrev_b32 v14, 4, v14')
    a('v_lshl_add_u32 v14, v13, 8, v14')
    a(f'v_add_u32 v14, {AR}, v14')
    a(f'ds_read_b128 {vr(72,4)}, v14 offset:{HS - AR}')
    a(f'v_mov_b32 v{VUA}, v14')
    row_addr(12, 13, None, 15, 16)
    a('v_lshlrev_b32 v13, 8, v13')
    a('v_lshl_add_u32 v13, v19, 4, v13')
    a('s_lshl_b32 s10, s5, 6')
    a(f's_mul_i32 s11, s2, {G.NPB*256}')
    a('s_add_u32 s11, s11, s10')
    a('s_waitcnt lgkmcnt(0)')
    def unpack(dst, src, n):
        for i in range(n):
            a(f'v_lshlrev_b32 v{dst+2*i}, 16, v{src+i}')
            a(f'v_and_b32 v{dst+2*i+1}, 0xffff0000, v{src+i}')
    unpack(RA, 72, 4)
    a('v_lshrrev_b32 v15, 2, v18')
    a('v_cmp_eq_u32 vcc, v15, v19')
    a('v_and_b32 v15, 1, v18')
    a('v_lshlrev_b32 v15, 4, v15')
    a('v_mov_b32 v16, 0x3f80')
    a('v_lshlrev_b32 v15, v15, v16')
    a('v_cndmask_b32 v15, 0, v15, vcc')
    a('v_and_b32 v16, 2, v18')
    a('v_cmp_eq_u32 vcc, 0, v16')
    a(f'v_mov_b32 v{SEL}, 0'); a(f'v_mov_b32 v{SEL+1}, 0'); a(f'v_mov_b32 v{SEL+4}, 0'); a(f'v_mov_b32 v{SEL+5}, 0')
    a(f'v_cndmask_b32 v{SEL+2}, 0, v15, vcc')
    a(f'v_cndmask_b32 v{SEL+3}, v15, 0, vcc')
    a('s_cmp_eq_u32 s12, 0')
    a('s_cbranch_scc0 K2_EG1')
    a('v_and_b32 v16, 7, v18')
    a('v_add_u32 v16, 32, v16')
    a('s_lshl_b32 s10, s5, 2')
    a('v_add_u32 v14, s10, v19')
    a('v_xor_b32 v14, v14, v16')
    a('v_and_b32 v14, 15, v14')
    a('v_lshlrev_b32 v14, 4, v14')
    a('v_lshl_add_u32 v14, v16, 8, v14')
    a(f'v_add_u32 v14, {AR}, v14')
    a(f'v_mov_b32 v{VUB}, v14')
    a('v_lshrrev_b32 v15, 3, v18')
    a('v_lshl_add_u32 v14, v15, 3, v14')
    a(f'ds_read_b64 {vr(72,2)}, v14 offset:{HS - AR}')
    a('v_lshlrev_b32 v17, 8, v16')
    a('v_lshl_add_u32 v17, v19, 4, v17')
    a('v_lshl_add_u32 v17, v15, 3, v17')
    row_addr(18, 16, None, 15, 14)
    a('s_waitcnt lgkmcnt(0)')
    unpack(RB, 72, 2)
    a.label('K2_EG1')
    a(f's_mov_b32 s86, {G.NLN2}'); a(f's_mov_b32 s87, {G.NLN2}')
    a('v_xor_b32 v14, 64, v12')
    a('v_xor_b32 v15, 64, v18')
    a('s_waitcnt vmcnt(0) lgkmcnt(0)')
    stamp(a, SV, 10)
    a('s_barrier')
    stamp(a, SV, 11)
    LP = os.environ.get('LP', '0')
    if PRIO and LP != '0': a(f's_setprio {LP}')
    def breads(B, v, vx, uq, vu):
        a(f'ds_read_b128 {vr(uq,4)}, v{vu} offset:{UB - AR}')
        a(f'ds_read_b128 {vr(B[0],4)}, v{v}')
        a(f'ds_read_b128 {vr(B[1],4)}, v{vx}')
        a(f'ds_read_b128 {vr(B[2],4)}, v{v} offset:8192')
        a(f'ds_read_b128 {vr(B[3],4)}, v{vx} offset:8192')
    def mms(B, U, w, uq):
        a(f's_waitcnt lgkmcnt({w + 4})')
        a(f'v_mfma_f32_16x16x32_bf16 {vr(U[0],4)}, {vr(SEL+2,4)}, {vr(uq,4)}, 0')
        a(f'v_mfma_f32_16x16x32_bf16 {vr(U[1],4)}, {vr(SEL,4)}, {vr(uq,4)}, 0')
        for s in range(4):
            a(f's_waitcnt lgkmcnt({w + 3 - s})')
            a(f'v_mfma_f32_16x16x32_bf16 {vr(U[0],4)}, {vr(F0[s],4)}, {vr(B[s],4)}, {vr(U[0],4)}')
            a(f'v_mfma_f32_16x16x32_bf16 {vr(U[1],4)}, {vr(F1[s],4)}, {vr(B[s],4)}, {vr(U[1],4)}')
    def silu(u, r, o, e=48):
        for i in range(4): a(f'v_exp_f32 v{e+i}, v{u+i}')
        a(f'v_pk_add_f32 {vr(e,2)}, {vr(e,2)}, 1.0 op_sel_hi:[1,0]')
        a(f'v_pk_add_f32 {vr(e+2,2)}, {vr(e+2,2)}, 1.0 op_sel_hi:[1,0]')
        for i in range(4): a(f'v_rcp_f32 v{e+i}, v{e+i}')
        a(f'v_pk_mul_f32 {vr(u,2)}, {vr(u,2)}, {vr(e,2)}')
        a(f'v_pk_mul_f32 {vr(u+2,2)}, {vr(u+2,2)}, {vr(e+2,2)}')
        a(f'v_pk_fma_f32 {vr(r,2)}, {vr(u,2)}, s[86:87], {vr(r,2)}')
        a(f'v_pk_fma_f32 {vr(r+2,2)}, {vr(u+2,2)}, s[86:87], {vr(r+2,2)}')
        a(f'v_cvt_pk_bf16_f32 v{o}, v{r}, v{r+1}')
        a(f'v_cvt_pk_bf16_f32 v{o+1}, v{r+2}, v{r+3}')
    breads(BA, 12, 14, UQA, VUA)
    a('s_cmp_eq_u32 s12, 0')
    a('s_cbranch_scc1 K2_EG0')
    mms(BA, UA, 0, UQA)
    a('s_nop 7')
    silu(UA[0], RA, 72)
    silu(UA[1], RA+4, 74)
    a('buffer_store_dwordx4 v[72:75], v13, s[68:71], s11 offen' + ONT)
    a('s_branch K2_FIN')
    a.label('K2_EG0')
    breads(BB, 18, 15, UQB, VUB)
    mms(BA, UA, 5, UQA)
    mms(BB, UBB, 0, UQB)
    silu(UA[0], RA, 72)
    silu(UA[1], RA+4, 74)
    a('buffer_store_dwordx4 v[72:75], v13, s[68:71], s11 offen' + ONT)
    for i in range(4):
        a(f'v_mov_b32_dpp v{UBB[0]+i}, v{UBB[1]+i} row_shr:8 row_mask:0xf bank_mask:0xc')
    a('s_nop 1')
    silu(UBB[0], RB, 76)
    a('buffer_store_dwordx2 v[76:77], v17, s[68:71], s11 offen' + ONT)
    a.label('K2_FIN')
    a('s_mov_b64 exec, -1')
    stamp(a, SV, 12)
    if STAMP: a('s_waitcnt vmcnt(0)')
    stamp(a, SV, 13); stamp(a, SV, 14, True)
    if STAMP:
        a('v_lshlrev_b32 v127, 2, v0')
        a.srd(40, 36, 2 << 20, 0x1100000)
        a('s_lshl_b32 s38, s2, 12')
        a(f'buffer_store_dword v{SV}, v127, s[40:43], s38 offen')
    a.label('K2_END')
    a('s_endpgm')
    a.raw(G.kd(name, NV))
```

```python
import sys, os
from asmlib import Asm, vr, sr, stamp, stamp_flush, STAMP

N = 10000; E = 160000; D = 128
NCH = 64; CH = E // NCH
NPB = 40; NB = N // NPB
WS_B = 0
WS_W = 0x280000
WS_WDE = WS_W + 0x18000
WS_OVC = 0x2A0000
WS_P8 = 0x2B0000
WS_C1 = 0x300000
WS_C2 = 0x500000
C_BYTES = NB * NCH * 128
WS_OVF = 0xA00000
OVF_BYTES = E * 16
GN = 64
N_GEMM = (N + GN - 1) // GN
N_P8 = 5
N_TR = 6
K1_GRID = NCH + N_GEMM + N_P8 + N_TR + 1
K1_LDS = 66560
CCAP = 28
NLOG2E = 0xbfb8aa3b
NLN2 = 0xbf317218

HEADER = open('standalone__cheap_equivariant_egnn__graph.s.ref').read().split('; Override')[0]

def kd(name, vgpr, sgpr=102):
    acc = (vgpr + 3) // 4 * 4
    return f'''.section .rodata,"a"
.p2align 6
.amdhsa_kernel {name}
  .amdhsa_next_free_vgpr {vgpr}
  .amdhsa_next_free_sgpr {sgpr}
  .amdhsa_accum_offset {acc}
  .amdhsa_group_segment_fixed_size 0
  .amdhsa_kernarg_size 88
  .amdhsa_user_sgpr_count 2
  .amdhsa_user_sgpr_kernarg_segment_ptr 1
  .amdhsa_system_sgpr_workgroup_id_x 1
.end_amdhsa_kernel
.text
'''

def kernel_head(a, name):
    a.raw(f'.globl {name}')
    a.raw('.p2align 8')
    a.raw(f'.type {name},@function')
    a.label(name)

def load_kernargs(a):
    a('s_load_dwordx16 s[16:31], s[0:1], 0')
    a('s_load_dwordx4 s[32:35], s[0:1], 64')
    a('s_load_dwordx2 s[36:37], s[0:1], 80')

SC = os.environ.get('SC', ' sc1')
OPT = set(os.environ.get('OPT', 'codepf,k1touch').split(','))


def gen_k1(a):
    name = 'egnn_prep_kernel'
    SV = 126
    kernel_head(a, name)
    a(f's_cmp_ge_u32 s2, {K1_GRID}')
    a('s_cbranch_scc1 K1_END')
    stamp(a, SV, 7, True); stamp(a, SV, 8)
    load_kernargs(a)
    a(f's_cmp_lt_u32 s2, {NCH}')
    a('s_cbranch_scc1 K1_BIN')
    a(f's_cmp_lt_u32 s2, {NCH + N_GEMM}')
    a('s_cbranch_scc1 K1_GEMM')
    a(f's_cmp_lt_u32 s2, {NCH + N_GEMM + N_TR}')
    a('s_cbranch_scc1 K1_TR')
    a(f's_cmp_lt_u32 s2, {NCH + N_GEMM + N_TR + N_P8}')
    a('s_cbranch_scc1 K1_P8')
    a('s_branch K1_WDE')
    def endstamps():
        stamp(a, SV, 4)
        if STAMP: a('s_waitcnt vmcnt(0)')
        stamp(a, SV, 5); stamp(a, SV, 6, True)
        if STAMP:
            a('v_lshlrev_b32 v125, 2, v0')
            a.srd(40, 36, 1 << 20, 0x1000000)
            a('s_mov_b64 exec, -1')
            a('s_lshl_b32 s38, s2, 12')
            a(f'buffer_store_dword v{SV}, v125, s[40:43], s38 offen')

    CNT = 32768; OVFC = CNT + 1024
    NE = 3
    CCAP = 28
    a.label('K1_BIN')
    a('v_mov_b32 v4, -1'); a('v_mov_b32 v5, -1'); a('v_mov_b32 v6, -1'); a('v_mov_b32 v7, -1')
    a('v_lshlrev_b32 v3, 4, v0')
    a('v_lshlrev_b32 v1, 2, v0')
    a('v_lshlrev_b32 v2, 1, v0')
    a('v_mov_b32 v8, 0')
    a(f'v_cmp_gt_u32 vcc, 257, v0')
    a('s_and_saveexec_b64 s[70:71], vcc')
    a(f'ds_write_b32 v1, v8 offset:{CNT}')
    a('s_mov_b64 exec, s[70:71]')
    a('ds_write_b128 v3, v[4:7]')
    LASTV = (NB*128 - 16384)//16
    a(f'v_cmp_gt_u32 vcc, {LASTV}, v0')
    a('s_mov_b64 s[66:67], vcc')
    a('s_mov_b64 exec, vcc')
    a(f'ds_write_b128 v3, v[4:7] offset:16384')
    a('s_mov_b64 exec, -1')
    a(f's_mul_i32 s60, s2, {CH*4}')
    a('s_add_u32 s61, s60, 4096')
    a('s_add_u32 s62, s60, 8192')
    a(f's_mul_i32 s63, s2, {CH*2}')
    a('s_add_u32 s64, s63, 4096')
    a('s_waitcnt lgkmcnt(0)')
    stamp(a, SV, 0, True); stamp(a, SV, 1)
    a.srd(40, 24, E*4)
    a.srd(44, 22, E*4)
    a.srd(48, 20, E*2)
    TAIL = CH - 2048
    a(f'v_cmp_gt_u32 vcc, {TAIL}, v0')
    a('s_mov_b64 s[68:69], vcc')
    def tail_on(j):
        if j == NE-1: a('s_mov_b64 exec, s[68:69]')
    def tail_off(j):
        if j == NE-1: a('s_mov_b64 exec, -1')
    for j in range(NE):
        tail_on(j)
        a(f'buffer_load_dword v{10+j}, v1, s[40:43], s{60+j} offen')
        tail_off(j)
    for j in range(NE):
        tail_on(j)
        a(f'buffer_load_dword v{15+j}, v1, s[44:47], s{60+j} offen')
        tail_off(j)
    for j in range(NE):
        tail_on(j)
        a(f'buffer_load_short_d16_hi v{41+2*j}, v2, s[48:51], s{63 + j//2} offen offset:{(j%2)*2048}')
        tail_off(j)
    a.srd(52, 36, C_BYTES, WS_C1)
    a.srd(56, 36, OVF_BYTES, WS_OVF)
    a.srd(72, 36, NCH*4, WS_OVC)
    T1 = 1 if 'k1touch' in OPT else 0
    if T1:
        a('v_and_b32 v99, 1, v0')
        a('v_lshlrev_b32 v99, 20, v99')
        a('s_mov_b64 exec, 3')
        a('buffer_load_dword v100, v99, s[52:55], 0 offen')
        a('s_mov_b64 exec, -1')
    a('v_lshrrev_b32 v9, 3, v0')
    a('v_and_b32 v7, 7, v0')
    a('v_add_u32 v8, v7, v9')
    a('v_and_b32 v8, 7, v8')
    a('v_lshlrev_b32 v8, 4, v8')
    a('v_lshl_add_u32 v60, v9, 7, v8')
    a('v_lshlrev_b32 v63, 13, v9')
    a('v_lshl_add_u32 v63, v7, 4, v63')
    a('s_lshl_b32 s77, s2, 7')
    a(f's_add_u32 s78, s77, {128*8192}')
    a('s_mov_b32 s79, 0xfff00000')
    a('s_barrier')
    a('s_mov_b32 s65, 52429')
    a('v_mov_b32 v6, 1')
    for j in range(NE):
        a(f's_waitcnt vmcnt({3*NE-1-j+T1})')
        a(f'v_mul_u32_u24 v{25+j}, s65, v{10+j}')
        a(f'v_lshrrev_b32 v{25+j}, 21, v{25+j}')
        a(f'v_mul_u32_u24 v7, 40, v{25+j}')
        a(f'v_sub_u32 v{10+j}, v{10+j}, v7')
        a(f'v_lshlrev_b32 v{30+j}, 2, v{25+j}')
        tail_on(j)
        a(f'ds_add_rtn_u32 v{35+j}, v{30+j}, v6 offset:{CNT}')
        tail_off(j)
    for j in range(NE):
        a(f'v_mul_u32_u24 v7, 13, v{10+j}')
        a('v_lshrrev_b32 v7, 6, v7')
        a('v_mul_u32_u24 v8, 5, v7')
        a(f'v_sub_u32 v8, v{10+j}, v8')
        a('v_lshl_or_b32 v8, v7, 3, v8')
        a(f's_waitcnt vmcnt({2*NE-1-j+T1})')
        a(f'v_lshl_or_b32 v{40+2*j}, v{15+j}, 6, v8')
    for j in range(NE):
        a(f's_waitcnt vmcnt({NE-1-j+T1})')
        a(f'v_and_or_b32 v{40+2*j}, v{41+2*j}, s79, v{40+2*j}')
        a(f'v_bfe_u32 v{50+j}, v{41+2*j}, 16, 4')
        a(f'v_xor_b32 v{50+j}, 15, v{50+j}')
    for j in range(NE):
        r = 35 + j; b = 25 + j
        a(f's_waitcnt lgkmcnt({(1, 2, 4)[j]})')
        a(f'v_cmp_gt_u32 vcc, {CCAP}, v{r}')
        if j == NE-1:
            a('s_and_b64 vcc, vcc, s[68:69]')
        a(f'v_lshl_add_u32 v7, v{b}, 1, v{r}')
        a('v_and_b32 v7, 15, v7')
        a(f'v_lshlrev_b32 v8, 7, v{b}')
        a('v_lshl_add_u32 v7, v7, 3, v8')
        a(f'v_lshrrev_b32 v9, 4, v{r}')
        a('v_lshl_add_u32 v7, v9, 2, v7')
        a(f'v_bfe_u32 v54, v{r}, 2, 2')
        a(f'v_lshl_add_u32 v54, v{b}, 1, v54')
        a('v_add_u32 v54, 12, v54')
        a('v_and_b32 v54, 15, v54')
        a('v_lshl_add_u32 v54, v54, 3, v8')
        a(f'v_and_b32 v55, 3, v{r}')
        a('v_lshlrev_b32 v55, 1, v55')
        a('v_add_u32 v55, v55, v9')
        a('v_lshlrev_b32 v55, 2, v55')
        a(f'v_lshlrev_b32 v55, v55, v{50+j}')
        a('s_mov_b64 exec, vcc')
        a(f'ds_write_b32 v7, v{40+2*j}')
        a('ds_xor_b32 v54, v55 offset:4')
        if j == NE-1:
            a('s_andn2_b64 exec, s[68:69], vcc')
        else:
            a('s_not_b64 exec, vcc')
        lab = a.newlabel('K1_NOV')
        a(f's_cbranch_execz {lab}')
        a(f'v_mov_b32 v9, {OVFC}')
        a('ds_add_rtn_u32 v8, v9, v6')
        a(f's_mul_i32 s76, s2, {CH*16}')
        a(f'v_mov_b32 v56, v{40+2*j}')
        a(f'v_mov_b32 v57, v{41+2*j}')
        a(f'v_mov_b32 v58, v{b}')
        a('v_mov_b32 v59, 0')
        a('s_waitcnt lgkmcnt(0)')
        a('v_lshlrev_b32 v8, 4, v8')
        a('buffer_store_dwordx4 v[56:59], v8, s[56:59], s76 offen')
        a('s_nop 1')
        a.label(lab)
        a('s_mov_b64 exec, -1')
    a('s_waitcnt lgkmcnt(0)')
    stamp(a, SV, 2)
    a('s_barrier')
    a('ds_read_b128 v[64:67], v60')
    a(f'ds_read_b128 v[68:71], v60 offset:16384')
    a(f'v_mov_b32 v9, {OVFC}')
    a('ds_read_b32 v8, v9')
    a('s_waitcnt lgkmcnt(2)')
    a(f'buffer_store_dwordx4 v[64:67], v63, s[52:55], s77 offen{SC}')
    a('s_waitcnt lgkmcnt(1)')
    a('s_mov_b64 exec, s[66:67]')
    a(f'buffer_store_dwordx4 v[68:71], v63, s[52:55], s78 offen{SC}')
    a('s_mov_b64 exec, -1')
    a('s_waitcnt lgkmcnt(0)')
    a('v_cmp_eq_u32 vcc, 0, v0')
    a('s_and_saveexec_b64 s[70:71], vcc')
    a('s_cbranch_execz K1_BIN_SK2')
    a('s_lshl_b32 s77, s2, 2')
    a('v_mov_b32 v9, 0')
    a(f'buffer_store_dword v8, v9, s[72:75], s77 offen{SC}')
    a.label('K1_BIN_SK2')
    a('s_mov_b64 exec, s[70:71]')
    endstamps()
    a('s_endpgm')

    a.label('K1_GEMM')
    W2S = 0; HT = 32768; OT = 49152
    a(f's_sub_u32 s3, s2, {NCH}')
    a('v_and_b32 v1, 63, v0')
    a('v_lshrrev_b32 v2, 6, v0')
    a('v_lshrrev_b32 v3, 4, v1')
    a('v_readfirstlane_b32 s4, v2')
    a('v_and_b32 v4, 15, v1')
    a('v_lshlrev_b32 v5, 2, v3')
    a('v_xor_b32 v5, v5, v4')
    a('v_lshlrev_b32 v5, 4, v5')
    a('v_lshl_add_u32 v5, v3, 8, v5')
    a('s_and_b32 s10, s4, 3')
    a('s_lshl_b32 s10, s10, 2')
    a('v_or_b32 v6, s10, v3')
    a('v_xor_b32 v6, v6, v4')
    a('v_lshlrev_b32 v6, 4, v6')
    a('v_lshl_add_u32 v6, v3, 8, v6')
    a('s_lshl_b32 s5, s4, 10')
    a(f's_mul_i32 s8, s3, {GN*256}')
    a('s_add_u32 s9, s8, s5')
    a('s_lshl_b32 s6, s4, 11')
    a('s_add_u32 s7, s6, 32768')
    a('s_waitcnt lgkmcnt(0)')
    stamp(a, SV, 0, True); stamp(a, SV, 1)
    a.srd(44, 16, N*256)
    a.srd(40, 26, 258*256)
    a(f's_add_u32 m0, s5, {HT}')
    a('s_nop 0')
    a(f'buffer_load_dwordx4 v6, s[44:47], s9 offen lds')
    for i in range(2):
        a(f's_add_u32 m0, s6, {W2S + i*1024}')
        a('s_nop 0')
        a('buffer_load_dwordx4 v5, s[40:43], s7 offen lds')
        a('s_add_u32 s7, s7, 1024')
    a.srd(48, 36, N*256, WS_B)
    if T1:
        a('s_mov_b64 exec, 1')
        a('buffer_load_dword v120, v6, s[48:51], s9 offen')
        a('s_mov_b64 exec, -1')
    a('s_and_b32 s12, s4, 3')
    a('s_lshr_b32 s13, s4, 2')
    a('v_and_b32 v4, 31, v1')
    a('v_lshrrev_b32 v5, 5, v1')
    a('v_and_b32 v7, 15, v1')
    a('v_lshrrev_b32 v8, 2, v7')
    a('v_and_b32 v9, 3, v7')
    a('v_lshl_add_u32 v10, v5, 3, v8')
    a('v_lshlrev_b32 v10, 8, v10')
    a('v_and_b32 v11, 1, v9')
    a('v_lshlrev_b32 v11, 5, v11')
    a('v_lshrrev_b32 v12, 1, v9')
    a('v_lshl_add_u32 v11, v12, 3, v11')
    a('v_bfe_u32 v12, v1, 4, 1')
    a('v_lshl_add_u32 v11, v12, 4, v11')
    a('v_xor_b32 v12, s12, v8')
    a('v_lshl_add_u32 v11, v12, 6, v11')
    a('v_add_u32 v10, v10, v11')
    a('v_and_b32 v11, 15, v4')
    a('v_xor_b32 v11, v11, v5')
    a('v_lshlrev_b32 v11, 4, v11')
    a('v_lshl_add_u32 v11, v4, 8, v11')
    a('s_lshl_b32 s14, s13, 13')
    a(f's_add_u32 s15, s14, {HT}')
    a('v_add_u32 v11, s15, v11')
    a('v_and_b32 v12, 15, v4')
    a('v_lshlrev_b32 v13, 1, v5')
    a('s_lshl_b32 s15, s12, 2')
    a('v_add_u32 v13, s15, v13')
    a('v_xor_b32 v13, v13, v12')
    a('v_lshlrev_b32 v13, 4, v13')
    a('v_lshl_add_u32 v13, v4, 8, v13')
    a(f's_add_u32 s14, s14, {OT}')
    a('v_add_u32 v13, s14, v13')
    a('v_xor_b32 v14, 16, v13')
    a('v_lshlrev_b32 v15, 4, v1')
    a(f's_add_u32 s14, s5, {OT}')
    a('v_add_u32 v15, s14, v15')
    a(f's_mov_b32 s14, {NLOG2E}')
    a(f's_mov_b32 s15, {NLOG2E}')
    a(f's_waitcnt vmcnt({T1})')
    stamp(a, SV, 2)
    a('s_barrier')
    a('s_cmp_ge_u32 s4, 8')
    a('s_cbranch_scc1 ' + ('K1_PF' if 'codepf' in OPT else 'K1_G2'))
    XB = 32
    for s in range(8):
        a(f'ds_read_b64_tr_b16 {vr(XB+4*s,2)}, v10 offset:{s*4096}')
        a(f'ds_read_b64_tr_b16 {vr(XB+4*s+2,2)}, v10 offset:{s*4096+1024}')
    DB = 96
    HB = 64
    for s in range(8):
        if s: a(f'v_xor_b32 v12, {32*s}, v11')
        a(f'ds_read_b128 {vr(HB+4*s,4)}, v{12 if s else 11}')
    for s in range(8):
        a(f's_waitcnt lgkmcnt({7-s})')
        cin = '0' if s == 0 else vr(DB, 16)
        a(f'v_mfma_f32_32x32x16_bf16 {vr(DB,16)}, {vr(XB+4*s,4)}, {vr(HB+4*s,4)}, {cin}')
    stamp(a, SV, 3)
    a('s_nop 7'); a('s_nop 3')
    for p in range(8):
        a(f'v_pk_mul_f32 {vr(DB+2*p,2)}, {vr(DB+2*p,2)}, s[14:15]')
    for p in range(8):
        a(f'v_cvt_pk_bf16_f32 v{XB+p}, v{DB+2*p}, v{DB+2*p+1}')
    a(f'ds_write_b128 v13, {vr(XB,4)}')
    a(f'ds_write_b128 v14, {vr(XB+4,4)}')
    a.label('K1_G2')
    a('s_waitcnt lgkmcnt(0)')
    a('s_barrier')
    a(f'ds_read_b128 {vr(XB,4)}, v15')
    a('s_waitcnt lgkmcnt(0)')
    a(f'buffer_store_dwordx4 {vr(XB,4)}, v6, s[48:51], s9 offen{SC}')
    endstamps()
    a('s_endpgm')

    if 'codepf' in OPT:
        a.label('K1_PF')
        a('s_getpc_b64 s[92:93]')
        a.label('K1_PCL')
        a('s_add_u32 s92, s92, egnn_edge_kernel-K1_PCL')
        a('s_addc_u32 s93, s93, 0')
        a('v_subrev_u32 v70, 512, v0')
        a('v_lshlrev_b32 v70, 6, v70')
        a('v_cmp_gt_u32 vcc, K2_END-egnn_edge_kernel, v70')
        a('s_and_saveexec_b64 s[70:71], vcc')
        a('s_cbranch_execz K1_PF2')
        a('global_load_dword v71, v70, s[92:93]')
        a.label('K1_PF2')
        a('s_mov_b64 exec, s[70:71]')
        a('s_branch K1_G2')
    a.label('K1_TR')
    a(f's_sub_u32 s3, s2, {NCH + N_GEMM}')
    a('v_and_b32 v1, 63, v0')
    a('v_lshrrev_b32 v2, 8, v0')
    a('s_lshl_b32 s4, s3, 2')
    a('v_add_u32 v2, s4, v2')
    a('v_and_b32 v4, 7, v2')
    a('v_bfe_u32 v5, v0, 6, 2')
    a('v_lshlrev_b32 v6, 5, v5')
    a('v_lshrrev_b32 v7, 4, v1')
    a('v_lshl_add_u32 v6, v7, 3, v6')
    a('v_lshlrev_b32 v6, 8, v6')
    a('v_lshrrev_b32 v7, 1, v4')
    a('v_lshlrev_b32 v7, 5, v7')
    a('v_bfe_u32 v8, v1, 2, 2')
    a('v_lshl_add_u32 v7, v8, 3, v7')
    a('v_and_b32 v8, 1, v4')
    a('v_lshl_add_u32 v7, v8, 2, v7')
    a('v_and_b32 v8, 3, v1')
    a('v_add_u32 v7, v8, v7')
    a('v_lshl_add_u32 v6, v7, 1, v6')
    a('s_lshr_b32 s5, s3, 1')
    a('s_waitcnt lgkmcnt(0)')
    stamp(a, SV, 0, True); stamp(a, SV, 1)
    a('s_cmp_eq_u32 s5, 0')
    a('s_cselect_b32 s40, s26, s30')
    a('s_cselect_b32 s41, s27, s31')
    a('s_mov_b32 s42, 65536')
    a('s_mov_b32 s43, 0x20000')
    a('s_cmp_eq_u32 s5, 2')
    a('s_cselect_b32 s6, 32768, 0')
    a.srd(44, 36, 3*32768, WS_W)
    a('v_add_u32 v6, s6, v6')
    for i in range(8):
        a(f'buffer_load_ushort v{16+i}, v6, s[40:43], 0 offen offset:{i*256}')
    a('v_lshlrev_b32 v5, 4, v0')
    a('s_lshl_b32 s9, s3, 14')
    a('s_waitcnt vmcnt(0)')
    for p in range(4):
        a(f'v_lshl_or_b32 v{8+p}, v{16+2*p+1}, 16, v{16+2*p}')
    a(f'buffer_store_dwordx4 v[8:11], v5, s[44:47], s9 offen{SC}')
    endstamps()
    a('s_endpgm')

    a.label('K1_P8')
    a(f's_sub_u32 s3, s2, {NCH + N_GEMM + N_TR}')
    a('s_lshl_b32 s3, s3, 10')
    a('v_add_u32 v1, s3, v0')
    a(f'v_cmp_gt_u32 vcc, {N//2}, v1')
    a('s_and_saveexec_b64 s[70:71], vcc')
    a('s_cbranch_execz K1_END')
    a('v_mul_u32_u24 v2, 12, v1')
    a('v_lshlrev_b32 v3, 4, v1')
    a('s_waitcnt lgkmcnt(0)')
    a.srd(40, 18, N*6)
    a.srd(44, 36, N*8, WS_P8)
    a('buffer_load_dwordx3 v[4:6], v2, s[40:43], 0 offen')
    a('s_waitcnt vmcnt(0)')
    a('v_alignbit_b32 v10, v6, v5, 16')
    a('v_lshrrev_b32 v11, 16, v6')
    a('v_mov_b32 v8, v4')
    a('v_and_b32 v9, 0xffff, v5')
    a(f'buffer_store_dwordx4 v[8:11], v3, s[44:47], 0 offen{SC}')
    a('s_endpgm')

    a.label('K1_WDE')
    a('v_cmp_gt_u32 vcc, 256, v0')
    a('s_and_saveexec_b64 s[70:71], vcc')
    a('s_cbranch_execz K1_END')
    a('v_lshlrev_b32 v1, 1, v0')
    a('s_waitcnt lgkmcnt(0)')
    a.srd(40, 26, 258*256)
    a.srd(44, 36, 1024, WS_WDE)
    a('s_mov_b32 s10, 65536')
    a('buffer_load_short_d16_hi v2, v1, s[40:43], s10 offen')
    a(f's_mov_b32 s11, {NLOG2E}')
    a('s_waitcnt vmcnt(0)')
    a('v_mul_f32 v2, s11, v2')
    a('v_cvt_pk_bf16_f32 v3, v2, v2')
    a('v_lshlrev_b32 v4, 16, v3')
    a('v_sub_f32 v4, v2, v4')
    a('v_cvt_pk_bf16_f32 v4, v4, v4')
    a(f'buffer_store_short v3, v1, s[44:47], 0 offen{SC}')
    a(f'buffer_store_short v4, v1, s[44:47], 0 offen offset:512{SC}')
    a.label('K1_END')
    a('s_endpgm')
    a.raw(kd(name, 128))

def build(k2=True):
    a = Asm()
    hdr = HEADER
    hdr += f'; @launch kernel=egnn_prep_kernel grid=({K1_GRID},1,1) block=(1024,1,1) lds={K1_LDS}\n'
    if k2:
        import gen9_k2
        hdr += f'; @launch kernel=egnn_edge_kernel grid=({NB},1,1) block=(1024,1,1) lds={gen9_k2.K2_LDS}\n'
    a.raw(hdr + '.amdgcn_target "amdgcn-amd-amdhsa--gfx950"\n.text')
    gen_k1(a)
    if k2:
        gen9_k2.gen_k2(a)
    return a.text()

if __name__ == '__main__':
    k2 = '--nok2' not in sys.argv
    out = sys.argv[1] if len(sys.argv) > 1 and not sys.argv[1].startswith('--') else 'full9.s'
    open(out, 'w').write(build(k2))
    print('wrote', out)
```
